```python
import torch

def _softmax(x, axis=-1):
    return torch.softmax(x, dim=axis)
def _gelu(x):
    return torch.nn.functional.gelu(x, approximate="tanh")
def _silu(x):
    return torch.nn.functional.silu(x)
def _sigmoid(x):
    return torch.sigmoid(x)
def _layernorm(x, axis=-1, eps=1e-5):
    m = x.mean(dim=axis, keepdim=True)
    v = x.var(dim=axis, keepdim=True, unbiased=False)
    return (x - m) / torch.sqrt(v + eps)
def _scatter_add(tgt, idx, src, axis=0):
    return tgt.clone().index_add_(axis, idx, src)
def _segment_sum(src, seg, n):
    out = torch.zeros((n,) + src.shape[1:], dtype=src.dtype)
    return out.index_add_(0, seg, src)
def _pad(x, pw):
    flat = tuple(v for pair in reversed(pw) for v in pair)
    return torch.nn.functional.pad(x, flat)

kernel_name = 'standalone__qk_norm__prompt'

def setup_inputs():

    _w = (lambda a: (lambda t: t.to(torch.bfloat16) if t.is_floating_point() else t)(torch.as_tensor(a)))
    B, H, S, D = 2, 16, 2048, 448
    Dh = D // H
    return {
        "q": _w((lambda *s: torch.randn(*s, dtype=torch.bfloat16) * 0.05)(B, H, S, Dh)),
        "k": _w((lambda *s: torch.randn(*s, dtype=torch.bfloat16) * 0.05)(B, H, S, Dh)),
        "v": _w((lambda *s: torch.randn(*s, dtype=torch.bfloat16) * 1.6)(B, H, S, Dh)),
        "t": _w(torch.abs((lambda *s: torch.randn(*s, dtype=torch.bfloat16) * 1.6)(H)) + 1.0),
    }

def reference(q, k, v, t):
    eps = 1e-6
    qn = q / (torch.sqrt((q * q).sum(axis=-1, keepdims=True)) + eps)
    kn = k / (torch.sqrt((k * k).sum(axis=-1, keepdims=True)) + eps)
    logits = torch.einsum('bhqd,bhkd->bhqk', qn, kn) * t[None, :, None, None]
    attn = _softmax(logits, axis=-1)
    return torch.einsum('bhqk,bhkd->bhqd', attn, v)
```

```python
import sys

HEADER = """; Kernarg layout for this problem (56 bytes, ptrs only, base s[0:1]):
"""

class Opt:
    prio = True
    stamps = False
    warm = True

def gen(opt):
    L = []
    def e(s): L.append("    " + s)
    def lab(s): L.append(s + ":")
    def c(s): L.append("    ; " + s)

    HB = 114688
    LDS_V = 0
    LDS_K = 65536
    LDS_TOTAL = 98304
    vLane = 0
    vKoff, vVoff, vKw, vKr, vVr, vIdx, vT0 = 1, 2, 3, 4, 5, 6, 7
    vQ = 8
    vO = 16
    vS = 32
    vKf = 96
    vVf = 112
    vRaw = 144
    vKp = 152
    vU = 160
    vSS, vTmp = 174, 175
    vR = 176
    vVbase = 178
    vOoff = 179
    NV = 180
    sQ, sK, sV, sO = 16, 20, 24, 28
    sWave, sHead, sQb = 32, 33, 34
    sIter, sKoffs, sVoffs, sVslot, sM0 = 35, 36, 37, 38, 39
    sT, sC = 40, 41
    sMask = 42
    sEps = 43
    sExV = 44
    sTmp = 46
    sTmp2 = 47

    def vr(b, n): return f"v[{b}:{b+n-1}]"

    def prep(raw, out, scale_sgpr=None):
        P = []
        P.append(f"v_dot2_f32_bf16 v{vSS}, v{raw}, v{raw}, 0")
        for j in range(1, 7):
            P.append(f"v_dot2_f32_bf16 v{vSS}, v{raw+j}, v{raw+j}, v{vSS}")
        for j in range(0, 2):
            P.append(f"v_lshlrev_b32 v{vU+2*j}, 16, v{raw+j}")
            P.append(f"v_and_b32 v{vU+2*j+1}, s{sMask}, v{raw+j}")
        P.append(f"v_mov_b32 v{vTmp}, v{vSS}")
        for j in range(2, 3):
            P.append(f"v_lshlrev_b32 v{vU+2*j}, 16, v{raw+j}")
            P.append(f"v_and_b32 v{vU+2*j+1}, s{sMask}, v{raw+j}")
        P.append(f"v_permlane32_swap_b32 v{vSS}, v{vTmp}")
        P.append(f"v_lshlrev_b32 v{vU+6}, 16, v{raw+3}")
        P.append(f"v_add_f32 v{vSS}, v{vSS}, v{vTmp}")
        P.append(f"v_and_b32 v{vU+7}, s{sMask}, v{raw+3}")
        P.append(f"v_sqrt_f32 v{vSS}, v{vSS}")
        P.append(f"v_lshlrev_b32 v{vU+8}, 16, v{raw+4}")
        P.append(f"v_add_f32 v{vSS}, s{sEps}, v{vSS}")
        P.append(f"v_and_b32 v{vU+9}, s{sMask}, v{raw+4}")
        P.append(f"v_rcp_f32 v{vR}, v{vSS}")
        P.append(f"v_lshlrev_b32 v{vU+10}, 16, v{raw+5}")
        if scale_sgpr is not None:
            P.append(f"v_mul_f32 v{vR}, s{scale_sgpr}, v{vR}")
        P.append(f"v_and_b32 v{vU+11}, s{sMask}, v{raw+5}")
        P.append(f"v_lshlrev_b32 v{vU+12}, 16, v{raw+6}")
        P.append(f"v_and_b32 v{vU+13}, s{sMask}, v{raw+6}")
        for j in range(7):
            P.append(f"v_pk_mul_f32 {vr(vU+2*j,2)}, {vr(vU+2*j,2)}, {vr(vR,2)} op_sel_hi:[1,0]")
        for j in range(7):
            P.append(f"v_cvt_pk_bf16_f32 v{out+j}, v{vU+2*j}, v{vU+2*j+1}")
        return P

    def kraw_load(dst, srd, soff):
        return [f"buffer_load_dwordx4 {vr(dst,4)}, v{vKoff}, s[{srd}:{srd+3}], {soff} offen",
                f"buffer_load_dwordx3 {vr(dst+4,3)}, v{vKoff}, s[{srd}:{srd+3}], {soff} offen offset:16"]

    def vdma(soff, m0reg):
        return [f"s_mov_b32 m0, s{m0reg}",
                f"s_mov_b64 exec, s[{sExV}:{sExV+1}]",
                f"buffer_load_dwordx4 v{vVoff}, s[{sV}:{sV+3}], s{soff} offen lds",
                f"s_add_u32 m0, s{m0reg}, 128",
                f"s_nop 0",
                f"buffer_load_dwordx4 v{vVoff}, s[{sV}:{sV+3}], s{soff} offen offset:896 lds",
                f"s_mov_b64 exec, -1"]

    def stamp(i):
        if opt.stamps:
            e(f"s_memtime s[{60+2*i}:{61+2*i}]")

    e("s_cmp_ge_u32 s2, 256")
    e("s_cbranch_scc1 L_end")
    stamp(0)
    e("s_load_dwordx4 s[4:7], s[0:1], 0")
    e("s_load_dwordx4 s[8:11], s[0:1], 16")
    e("s_load_dwordx2 s[12:13], s[0:1], 32")
    if opt.stamps:
        e("s_load_dwordx2 s[14:15], s[0:1], 40")
    c("head = (wg&7)*4 + ((wg>>3)&3), qblk = wg>>5")
    e("s_and_b32 s3, s2, 7")
    e("s_lshl_b32 s3, s3, 2")
    e(f"s_bfe_u32 s{sHead}, s2, 0x20003")
    e(f"s_add_u32 s{sHead}, s{sHead}, s3")
    e(f"s_lshr_b32 s{sQb}, s2, 5")
    e(f"v_lshrrev_b32 v{vT0}, 6, v0")
    e(f"v_and_b32 v{vLane}, 63, v0")
    e(f"v_readfirstlane_b32 s{sWave}, v{vT0}")
    c("vKoff = (lane&31)*56 + (lane>>5)*28")
    e(f"v_and_b32 v{vKoff}, 31, v{vLane}")
    e(f"v_lshrrev_b32 v{vT0}, 5, v{vLane}")
    e(f"v_mul_u32_u24 v{vKoff}, 56, v{vKoff}")
    e(f"v_mad_u32_u24 v{vOoff}, v{vT0}, 32, v{vKoff}")
    e(f"v_mad_u32_u24 v{vKoff}, v{vT0}, 28, v{vKoff}")
    c("vVoff = (lane>>3)*112 + (lane&7)*16")
    e(f"v_lshrrev_b32 v{vVoff}, 3, v{vLane}")
    e(f"v_and_b32 v{vT0}, 7, v{vLane}")
    e(f"v_mul_u32_u24 v{vVoff}, 0x70, v{vVoff}")
    e(f"v_lshl_add_u32 v{vVoff}, v{vT0}, 4, v{vVoff}")
    e(f"s_mul_i32 s3, s{sHead}, {HB}")
    e(f"s_mov_b32 s{sExV}, 0x7f7f7f7f")
    e(f"s_mov_b32 s{sExV+1}, 0x7f7f7f7f")
    e(f"s_mul_i32 s{sKoffs}, s{sWave}, 1792")
    e(f"s_lshl_b32 s{sM0}, s{sWave}, 11")
    e(f"s_mul_i32 s{sTmp}, s{sQb}, 14336")
    e(f"s_add_u32 s{sTmp}, s{sTmp}, s{sKoffs}")
    e("s_waitcnt lgkmcnt(0)")
    for srd, p in ((sQ, 4), (sK, 6), (sV, 8), (sO, 12)):
        e(f"s_add_u32 s{srd}, s{p}, s3")
        e(f"s_addc_u32 s{srd+1}, s{p+1}, 0")
        e(f"s_mov_b32 s{srd+2}, {HB}")
        e(f"s_mov_b32 s{srd+3}, 0x00020000")
    c("t load")
    e(f"s_and_b32 s{sTmp2}, s{sHead}, 14")
    e(f"s_lshl_b32 s{sTmp2}, s{sTmp2}, 1")
    e(f"s_load_dword s{sT}, s[10:11], s{sTmp2}")
    c("raw loads: Q -> S0 area, K0 -> S1 area")
    qraw, k0raw = vS, vS + 16
    for s in kraw_load(qraw, sQ, f"s{sTmp}"): e(s)
    for s in kraw_load(k0raw, sK, f"s{sKoffs}"): e(s)
    for s in vdma(sKoffs, sM0): e(s)
    nwarm = 0
    if opt.warm:
        c("touch this block's share of K and V so that later chunks are L2 hits")
        e(f"v_min_u32 v{vT0}, 27, v{vLane}")
        e(f"v_lshlrev_b32 v{vT0}, 6, v{vT0}")
        e(f"buffer_load_dword v{vS+32}, v{vT0}, s[{sK}:{sK+3}], s{sTmp} offen")
        e(f"buffer_load_dword v{vS+33}, v{vT0}, s[{sV}:{sV+3}], s{sTmp} offen")
        nwarm = 2
    e(f"s_add_u32 s{sKoffs}, s{sKoffs}, 14336")
    e(f"s_add_u32 s{sM0}, s{sM0}, 16384")
    for s in vdma(sKoffs, sM0): e(s)
    for s in kraw_load(vRaw, sK, f"s{sKoffs}"): e(s)
    e(f"s_add_u32 s{sVoffs}, s{sKoffs}, 14336")
    e(f"s_add_u32 s{sM0}, s{sM0}, 16384")
    for s in vdma(sVoffs, sM0): e(s)
    c("constants / addresses")
    e(f"s_mov_b32 s{sMask}, 0xffff0000")
    e(f"s_mov_b32 s{sEps}, 0x358637bd")
    e(f"v_mov_b32 v{vIdx}, 0xdddddddd")
    e(f"v_mov_b32 v{vKp+7}, 0x3f803f80")
    c("ones pads in the V ring: lane -> slot lane>>4, pair lane&15")
    e(f"v_lshrrev_b32 v{vT0}, 4, v{vLane}")
    e(f"v_lshlrev_b32 v{vT0}, 14, v{vT0}")
    e(f"v_and_b32 v{vTmp}, 15, v{vLane}")
    e(f"v_lshl_add_u32 v{vT0}, v{vTmp}, 7, v{vT0}")
    e(f"s_lshl_b32 s{sTmp2}, s{sWave}, 11")
    e(f"v_add_u32 v{vT0}, s{sTmp2}, v{vT0}")
    e(f"v_mov_b32 v{vU}, 0x3f80")
    e(f"v_mov_b32 v{vU+1}, 0")
    e(f"v_mov_b32 v{vU+2}, 0x3f80")
    e(f"v_mov_b32 v{vU+3}, 0")
    e(f"ds_write_b128 v{vT0}, {vr(vU,4)} offset:112")
    c("K frag addresses")
    e(f"v_lshlrev_b32 v{vKr}, 4, v{vLane}")
    e(f"v_add_u32 v{vKr}, {LDS_K}, v{vKr}")
    e(f"v_add_u32 v{vKw}, s{sTmp2}, v{vKr}")
    c("V transpose-read address: h'=lane>>5, g1=(lane>>4)&1, r=(lane>>2)&3, c=lane&3; ci=4*g1+c; pi=(ci>>1)+4*(ci&1)")
    e(f"v_lshrrev_b32 v{vT0}, 5, v{vLane}")
    e(f"v_lshlrev_b32 v{vVbase}, 9, v{vT0}")
    e(f"v_bfe_u32 v{vT0}, v{vLane}, 3, 1")
    e(f"v_lshl_add_u32 v{vVbase}, v{vT0}, 7, v{vVbase}")
    e(f"v_bfe_u32 v{vU}, v{vLane}, 2, 1")
    e(f"v_bfe_u32 v{vU+1}, v{vLane}, 4, 1")
    e(f"v_bfe_u32 v{vU+2}, v{vLane}, 1, 1")
    e(f"v_and_b32 v{vU+3}, 1, v{vLane}")
    e(f"v_lshl_add_u32 v{vU+2}, v{vU+1}, 1, v{vU+2}")
    e(f"v_lshl_add_u32 v{vU+2}, v{vU+3}, 2, v{vU+2}")
    e(f"v_lshlrev_b32 v{vU+4}, 3, v{vU+2}")
    e(f"v_mad_u32_u24 v{vU+4}, v{vU}, 56, v{vU+4}")
    e(f"v_lshlrev_b32 v{vU+5}, 3, v{vU}")
    e(f"v_add_u32 v{vU+5}, 0x70, v{vU+5}")
    e(f"v_cmp_eq_u32 vcc, 7, v{vU+2}")
    e(f"v_mov_b32 v{vO}, 0")
    e(f"v_mov_b32 v{vO+1}, 0")
    e(f"v_cndmask_b32 v{vU+4}, v{vU+4}, v{vU+5}, vcc")
    e(f"v_add_u32 v{vVbase}, v{vVbase}, v{vU+4}")
    e(f"v_mov_b32 v{vVr}, v{vVbase}")
    for j in range(2, 16): e(f"v_mov_b32 v{vO+j}, 0")
    for j in range(8, 16): e(f"v_mov_b32 v{vS+48+j}, 0")
    for j in range(4, 8): e(f"v_mov_b32 v{vVf+24+j}, 0")
    c("t -> f32, c = t*log2e")
    e("s_waitcnt lgkmcnt(0)")
    e(f"s_bitcmp1_b32 s{sHead}, 0")
    e(f"s_cselect_b32 s{sTmp2}, 0, 16")
    e(f"s_lshl_b32 s{sT}, s{sT}, s{sTmp2}")
    e(f"s_and_b32 s{sT}, s{sT}, 0xffff0000")
    e(f"v_mov_b32 v{vT0}, 0x3fb8aa3b")
    e(f"v_mul_f32 v{vT0}, s{sT}, v{vT0}")
    e(f"s_nop 0")
    e(f"v_readfirstlane_b32 s{sC}, v{vT0}")
    c("Q pad slot: -|c| as bf16 in the low half for lanes < 32")
    e(f"v_or_b32 v{vT0}, 0x80000000, v{vT0}")
    e(f"v_lshrrev_b32 v{vT0}, 16, v{vT0}")
    e(f"v_cmp_gt_u32 vcc, 32, v{vLane}")
    e(f"s_and_b32 s{sTmp2}, s{sT}, 0x7fffffff")
    e(f"s_nop 0")
    e(f"v_cndmask_b32 v{vQ+7}, 0, v{vT0}, vcc")
    stamp(1)
    e(f"s_waitcnt vmcnt({2+2+nwarm+6})")
    stamp(2)
    for s in prep(qraw, vQ, sC): e(s)
    e(f"s_waitcnt vmcnt({2+nwarm+6})")
    for s in prep(k0raw, vKp): e(s)
    e(f"ds_write_b128 v{vKw}, {vr(vKp,4)}")
    e(f"ds_write_b128 v{vKw}, {vr(vKp+4,4)} offset:1024")
    e(f"v_xor_b32 v{vKw}, 0x4000, v{vKw}")
    c("the shift |t|*log2e bounds every logit; it is only used while it cannot underflow the row")
    e(f"s_cmp_gt_u32 s{sTmp2}, 0x41800000")
    e(f"s_cbranch_scc1 L_truemax")
    lab("L_go")
    e(f"s_mov_b32 s{sIter}, 0")
    e(f"s_mov_b32 s{sVslot}, 0")
    e(f"s_waitcnt vmcnt({nwarm+6}) lgkmcnt(0)")
    e("s_barrier")
    stamp(3)

    def kread(tile_in_slot, buf):
        o = tile_in_slot * 2048
        return [f"ds_read_b128 {vr(vKf+8*buf,4)}, v{vKr} offset:{o}",
                f"ds_read_b128 {vr(vKf+8*buf+4,4)}, v{vKr} offset:{o+1024}"]
    def vread(tile_in_slot, buf):
        o = tile_in_slot * 2048
        return [f"ds_read_b64_tr_b16 {vr(vVf+8*buf+4*s+2*u,2)}, v{vVr} offset:{o+s*1024+u*256}" for s in range(2) for u in range(2)]
    def m1(T):
        return f"v_mfma_f32_32x32x16_bf16 {vr(vS+16*(T%4),16)}, {vr(vKf+8*(T%2),4)}, {vr(vQ,4)}, 0"
    def m2(T):
        return f"v_mfma_f32_32x32x16_bf16 {vr(vS+16*(T%4),16)}, {vr(vKf+8*(T%2)+4,4)}, {vr(vQ+4,4)}, {vr(vS+16*(T%4),16)}"
    def sm(T, s):
        return f"v_smfmac_f32_32x32x32_bf16 {vr(vO,16)}, {vr(vVf+8*(T%4)+4*s,4)}, {vr(vS+16*(T%4)+8*s,8)}, v{vIdx}"
    def ex(T, j):
        r = vS + 16*(T%4) + j
        return f"v_exp_f32 v{r}, v{r}"

    c("pipeline fill")
    for s in kread(0, 0) + kread(1, 1): e(s)
    for s in vread(0, 0): e(s)
    e("s_waitcnt lgkmcnt(6)")
    e(m1(0)); e(m2(0))
    e("s_waitcnt lgkmcnt(4)")
    e(m1(1)); e(m2(1))
    for s in kread(2, 0): e(s)
    for s in vread(1, 1) + vread(2, 2): e(s)
    c("the loop's first wait expects 4 younger LDS ops after the K(2) reads; here there are 8 (stricter, fine)")
    e("s_nop 7")
    e("s_nop 3")

    L.append(".p2align 3")
    lab("L_loop")
    P = prep(vRaw, vKp)
    nblk = 4
    per = (len(P) + nblk - 1) // nblk
    for T in range(8):
        c(f"---- tile {T}")
        rt = (T + 3) % 8
        if T == 0:
            if opt.prio: e("s_setprio 3")
            e("s_waitcnt vmcnt(2)")
        if T == 5:
            e("s_waitcnt lgkmcnt(0)")
            e("s_barrier")
            if opt.prio: e("s_setprio 3")
            e(f"s_add_u32 s{sVslot}, s{sVslot}, 0x4000")
            e(f"s_and_b32 s{sVslot}, s{sVslot}, 0xffff")
            e(f"v_xor_b32 v{vKr}, 0x4000, v{vKr}")
            e(f"v_add_u32 v{vVr}, s{sVslot}, v{vVbase}")
        kr = kread(rt, (T + 3) % 2)
        vrd = vread(rt, (T + 3) % 4)
        e(ex(T, 0)); e(ex(T, 1))
        e(sm(T - 1, 1))
        e(kr[0])
        e(ex(T, 2))
        e(kr[1])
        e(ex(T, 3)); e(ex(T, 4)); e(ex(T, 5))
        if T != 5:
            e("s_waitcnt lgkmcnt(6)")
        e(m1(T + 2))
        e(vrd[0])
        e(ex(T, 6))
        e(vrd[1])
        e(ex(T, 7)); e(ex(T, 8)); e(ex(T, 9))
        e(m2(T + 2))
        e(vrd[2])
        e(ex(T, 10))
        e(vrd[3])
        e(ex(T, 11)); e(ex(T, 12)); e(ex(T, 13))
        e(sm(T, 0))
        e(ex(T, 14)); e(ex(T, 15))
        if T < nblk:
            for s in P[T*per:(T+1)*per]: e(s)
        if T == nblk - 1:
            e(f"ds_write_b128 v{vKw}, {vr(vKp,4)}")
            e(f"ds_write_b128 v{vKw}, {vr(vKp+4,4)} offset:1024")
            e(f"v_xor_b32 v{vKw}, 0x4000, v{vKw}")
        if opt.prio:
            if T == 2: e("s_setprio 2")
            if T == 3: e("s_setprio 1")
        if T == 5:
            c("next loads: K raw chunk i+2, V chunk i+3 (clamped)")
            e(f"s_add_u32 s{sKoffs}, s{sKoffs}, 14336")
            e(f"s_min_u32 s{sKoffs}, s{sKoffs}, {HB-1792}")
            e(f"s_add_u32 s{sVoffs}, s{sVoffs}, 14336")
            e(f"s_min_u32 s{sVoffs}, s{sVoffs}, {HB-1792}")
            e(f"s_add_u32 s{sM0}, s{sM0}, 16384")
            e(f"s_and_b32 s{sM0}, s{sM0}, 0xffff")
            for s in kraw_load(vRaw, sK, f"s{sKoffs}"): e(s)
            for s in vdma(sVoffs, sM0): e(s)
    e(f"s_add_u32 s{sIter}, s{sIter}, 1")
    e(f"s_cmp_lt_u32 s{sIter}, 8")
    e("s_cbranch_scc1 L_loop")
    e("s_nop 1")
    e(sm(7, 1))
    stamp(4)
    c("epilogue")
    e("s_nop 15")
    e(f"v_mov_b32 v{vTmp}, v{vO+12}")
    e(f"v_mov_b32 v{vSS}, v{vO+12}")
    e("s_nop 1")
    e(f"v_permlane32_swap_b32 v{vSS}, v{vTmp}")
    e("s_nop 1")
    e(f"v_rcp_f32 v{vR}, v{vTmp}")
    e("s_nop 0")
    for j in range(8):
        e(f"v_pk_mul_f32 {vr(vO+2*j,2)}, {vr(vO+2*j,2)}, {vr(vR,2)} op_sel_hi:[1,0]")
    for j in range(8):
        e(f"v_cvt_pk_bf16_f32 v{vU+j}, v{vO+2*j}, v{vO+2*j+1}")
    e(f"buffer_store_dwordx4 {vr(vU,4)}, v{vOoff}, s[{sO}:{sO+3}], s{sTmp} offen")
    e(f"buffer_store_dwordx2 {vr(vU+4,2)}, v{vOoff}, s[{sO}:{sO+3}], s{sTmp} offen offset:16")
    e("s_mov_b32 exec_hi, 0")
    e(f"buffer_store_dwordx2 {vr(vU+6,2)}, v{vOoff}, s[{sO}:{sO+3}], s{sTmp} offen offset:24")
    if opt.stamps:
        e("s_waitcnt vmcnt(0)")
        stamp(5)
        e("s_memrealtime s[72:73]")
        e("s_waitcnt lgkmcnt(0)")
        e("s_mov_b32 s80, s14"); e("s_mov_b32 s81, s15"); e("s_mov_b32 s82, 256"); e("s_mov_b32 s83, 0x00020000")
        e("s_cmp_lg_u32 s2, 0"); e("s_cbranch_scc1 L_end")
        e(f"s_cmp_gt_u32 s{sWave}, 4"); e("s_cbranch_scc1 L_end")
        e(f"s_and_b32 s3, s{sWave}, 3"); e("s_cmp_lg_u32 s3, 0"); e("s_cbranch_scc1 L_end")
        e(f"s_lshl_b32 s3, s{sWave}, 3")
        e("s_mov_b64 exec, 1")
        e("v_mov_b32 v1, 0")
        for i in range(1, 6):
            e(f"s_sub_u32 s84, s{60+2*i}, s60")
            e("v_mov_b32 v2, s84")
            e(f"buffer_store_dword v2, v1, s[80:83], s3 offen offset:{4*(i-1)}")
    lab("L_end")
    e("s_endpgm")

    lab("L_truemax")
    mx = vS + 32
    e("s_waitcnt vmcnt(0)")
    e(f"v_mov_b32 v{vQ+7}, 0")
    e(f"v_mov_b32 v{mx}, 0xff800000")
    e(f"s_mov_b32 s{sIter}, 0")
    lab("L_tm_loop")
    for s in kraw_load(vS + 16, sK, f"s{sIter}"): e(s)
    e("s_waitcnt vmcnt(0)")
    for s in prep(vS + 16, vKf): e(s)
    e(f"v_mov_b32 v{vKf+7}, 0")
    e("s_nop 1")
    e(f"v_mfma_f32_32x32x16_bf16 {vr(vS,16)}, {vr(vKf,4)}, {vr(vQ,4)}, 0")
    e(f"v_mfma_f32_32x32x16_bf16 {vr(vS,16)}, {vr(vKf+4,4)}, {vr(vQ+4,4)}, {vr(vS,16)}")
    e("s_nop 15")
    for j in range(0, 16, 2):
        e(f"v_max3_f32 v{mx}, v{vS+j}, v{vS+j+1}, v{mx}")
    e(f"s_add_u32 s{sIter}, s{sIter}, 1792")
    e(f"s_cmp_lt_u32 s{sIter}, {HB}")
    e("s_cbranch_scc1 L_tm_loop")
    e(f"v_mov_b32 v{mx+1}, v{mx}")
    e("s_nop 1")
    e(f"v_permlane32_swap_b32 v{mx}, v{mx+1}")
    e("s_nop 1")
    e(f"v_max_f32 v{mx}, v{mx}, v{mx+1}")
    c("split -max into three bf16 parts")
    e(f"v_sub_f32 v{mx}, 0, v{mx}")
    e(f"v_and_b32 v{mx+1}, s{sMask}, v{mx}")
    e(f"v_sub_f32 v{mx}, v{mx}, v{mx+1}")
    e(f"v_and_b32 v{mx+2}, s{sMask}, v{mx}")
    e(f"v_sub_f32 v{mx}, v{mx}, v{mx+2}")
    e(f"v_lshrrev_b32 v{mx+1}, 16, v{mx+1}")
    e(f"v_or_b32 v{mx+1}, v{mx+1}, v{mx+2}")
    e(f"v_lshrrev_b32 v{mx}, 16, v{mx}")
    e(f"v_cmp_gt_u32 vcc, 32, v{vLane}")
    e("s_nop 1")
    e(f"v_cndmask_b32 v{vQ+7}, v{mx}, v{mx+1}, vcc")
    e("s_branch L_go")

    txt = HEADER + f"; @launch grid=(256,1,1) block=(512,1,1) lds={LDS_TOTAL}\n"
    txt += """.amdgcn_target "amdgcn-amd-amdhsa--gfx950"
.text
.globl standalone__qk_norm__prompt_kernel
.p2align 8
.type standalone__qk_norm__prompt_kernel,@function
standalone__qk_norm__prompt_kernel:
"""
    txt += "\n".join(L) + "\n"
    txt += f""".section .rodata,"a"
.p2align 6
.amdhsa_kernel standalone__qk_norm__prompt_kernel
  .amdhsa_next_free_vgpr {NV}
  .amdhsa_next_free_sgpr 96
  .amdhsa_accum_offset {(NV+3)//4*4}
  .amdhsa_group_segment_fixed_size 0
  .amdhsa_kernarg_size 56
  .amdhsa_user_sgpr_count 2
  .amdhsa_user_sgpr_kernarg_segment_ptr 1
  .amdhsa_system_sgpr_workgroup_id_x 1
.end_amdhsa_kernel
"""
    return txt

if __name__ == "__main__":
    opt = Opt()
    out = sys.argv[1]
    for a in sys.argv[2:]:
        k, v = a.split("=")
        setattr(opt, k, eval(v))
    open(out, "w").write(gen(opt))
```

```python
import sys

HEADER = """; Kernarg layout for this problem (56 bytes, ptrs only, base s[0:1]):
"""

class Opt:
    prio = True
    stamps = False
    warm = True
    reps = 1

def gen(opt):
    L = []
    def e(s): L.append("    " + s)
    def lab(s): L.append(s + ":")
    def c(s): L.append("    ; " + s)

    HB = 114688
    LDS_V = 0
    LDS_K = 65536
    LDS_TOTAL = 98304
    vLane = 0
    vKoff, vVoff, vKw, vKr, vVr, vIdx, vT0 = 1, 2, 3, 4, 5, 6, 7
    vQ = 8
    vO = 16
    vS = 32
    vKf = 96
    vVf = 112
    vRaw = 144
    vKp = 152
    vU = 160
    vSS, vTmp = 174, 175
    vR = 176
    vVbase = 178
    vOoff = 179
    NV = 180
    sQ, sK, sV, sO = 16, 20, 24, 28
    sWave, sHead, sQb = 32, 33, 34
    sIter, sKoffs, sVoffs, sVslot, sM0 = 35, 36, 37, 38, 39
    sT, sC = 40, 41
    sMask = 42
    sEps = 43
    sExV = 44
    sTmp = 46
    sTmp2 = 47

    def vr(b, n): return f"v[{b}:{b+n-1}]"

    def prep(raw, out, scale_sgpr=None):
        P = []
        P.append(f"v_dot2_f32_bf16 v{vSS}, v{raw}, v{raw}, 0")
        for j in range(1, 7):
            P.append(f"v_dot2_f32_bf16 v{vSS}, v{raw+j}, v{raw+j}, v{vSS}")
        for j in range(0, 2):
            P.append(f"v_lshlrev_b32 v{vU+2*j}, 16, v{raw+j}")
            P.append(f"v_and_b32 v{vU+2*j+1}, s{sMask}, v{raw+j}")
        P.append(f"v_mov_b32 v{vTmp}, v{vSS}")
        for j in range(2, 3):
            P.append(f"v_lshlrev_b32 v{vU+2*j}, 16, v{raw+j}")
            P.append(f"v_and_b32 v{vU+2*j+1}, s{sMask}, v{raw+j}")
        P.append(f"v_permlane32_swap_b32 v{vSS}, v{vTmp}")
        P.append(f"v_lshlrev_b32 v{vU+6}, 16, v{raw+3}")
        P.append(f"v_add_f32 v{vSS}, v{vSS}, v{vTmp}")
        P.append(f"v_and_b32 v{vU+7}, s{sMask}, v{raw+3}")
        P.append(f"v_sqrt_f32 v{vSS}, v{vSS}")
        P.append(f"v_lshlrev_b32 v{vU+8}, 16, v{raw+4}")
        P.append(f"v_add_f32 v{vSS}, s{sEps}, v{vSS}")
        P.append(f"v_and_b32 v{vU+9}, s{sMask}, v{raw+4}")
        P.append(f"v_rcp_f32 v{vR}, v{vSS}")
        P.append(f"v_lshlrev_b32 v{vU+10}, 16, v{raw+5}")
        if scale_sgpr is not None:
            P.append(f"v_mul_f32 v{vR}, s{scale_sgpr}, v{vR}")
        P.append(f"v_and_b32 v{vU+11}, s{sMask}, v{raw+5}")
        P.append(f"v_lshlrev_b32 v{vU+12}, 16, v{raw+6}")
        P.append(f"v_and_b32 v{vU+13}, s{sMask}, v{raw+6}")
        for j in range(7):
            P.append(f"v_pk_mul_f32 {vr(vU+2*j,2)}, {vr(vU+2*j,2)}, {vr(vR,2)} op_sel_hi:[1,0]")
        for j in range(7):
            P.append(f"v_cvt_pk_bf16_f32 v{out+j}, v{vU+2*j}, v{vU+2*j+1}")
        return P

    def kraw_load(dst, srd, soff):
        return [f"buffer_load_dwordx4 {vr(dst,4)}, v{vKoff}, s[{srd}:{srd+3}], {soff} offen",
                f"buffer_load_dwordx3 {vr(dst+4,3)}, v{vKoff}, s[{srd}:{srd+3}], {soff} offen offset:16"]

    def vdma(soff, m0reg):
        return [f"s_mov_b32 m0, s{m0reg}",
                f"s_mov_b64 exec, s[{sExV}:{sExV+1}]",
                f"buffer_load_dwordx4 v{vVoff}, s[{sV}:{sV+3}], s{soff} offen lds",
                f"s_add_u32 m0, s{m0reg}, 128",
                f"s_nop 0",
                f"buffer_load_dwordx4 v{vVoff}, s[{sV}:{sV+3}], s{soff} offen offset:896 lds",
                f"s_mov_b64 exec, -1"]

    def stamp(i):
        if opt.stamps:
            e(f"s_memtime s[{60+2*i}:{61+2*i}]")

    e("s_cmp_ge_u32 s2, 256")
    e("s_cbranch_scc1 L_end")
    stamp(0)
    if opt.stamps: e("s_memrealtime s[74:75]")
    e("s_load_dwordx4 s[4:7], s[0:1], 0")
    e("s_load_dwordx4 s[8:11], s[0:1], 16")
    e("s_load_dwordx2 s[12:13], s[0:1], 32")
    if opt.stamps:
        e("s_load_dwordx2 s[14:15], s[0:1], 40")
    c("head = (wg&7)*4 + ((wg>>3)&3), qblk = wg>>5")
    e("s_and_b32 s3, s2, 7")
    e("s_lshl_b32 s3, s3, 2")
    e(f"s_bfe_u32 s{sHead}, s2, 0x20003")
    e(f"s_add_u32 s{sHead}, s{sHead}, s3")
    e(f"s_lshr_b32 s{sQb}, s2, 5")
    e(f"v_lshrrev_b32 v{vT0}, 6, v0")
    e(f"v_and_b32 v{vLane}, 63, v0")
    e(f"v_readfirstlane_b32 s{sWave}, v{vT0}")
    c("vKoff = (lane&31)*56 + (lane>>5)*28")
    e(f"v_and_b32 v{vKoff}, 31, v{vLane}")
    e(f"v_lshrrev_b32 v{vT0}, 5, v{vLane}")
    e(f"v_mul_u32_u24 v{vKoff}, 56, v{vKoff}")
    e(f"v_mad_u32_u24 v{vOoff}, v{vT0}, 32, v{vKoff}")
    e(f"v_mad_u32_u24 v{vKoff}, v{vT0}, 28, v{vKoff}")
    c("vVoff = (lane>>3)*112 + (lane&7)*16")
    e(f"v_lshrrev_b32 v{vVoff}, 3, v{vLane}")
    e(f"v_and_b32 v{vT0}, 7, v{vLane}")
    e(f"v_mul_u32_u24 v{vVoff}, 0x70, v{vVoff}")
    e(f"v_lshl_add_u32 v{vVoff}, v{vT0}, 4, v{vVoff}")
    e(f"s_mul_i32 s3, s{sHead}, {HB}")
    e(f"s_mov_b32 s{sExV}, 0x7f7f7f7f")
    e(f"s_mov_b32 s{sExV+1}, 0x7f7f7f7f")
    e(f"s_mul_i32 s{sKoffs}, s{sWave}, 1792")
    e(f"s_lshl_b32 s{sM0}, s{sWave}, 11")
    e(f"s_mul_i32 s{sTmp}, s{sQb}, 14336")
    e(f"s_add_u32 s{sTmp}, s{sTmp}, s{sKoffs}")
    e("s_waitcnt lgkmcnt(0)")
    for srd, p in ((sQ, 4), (sK, 6), (sV, 8), (sO, 12)):
        e(f"s_add_u32 s{srd}, s{p}, s3")
        e(f"s_addc_u32 s{srd+1}, s{p+1}, 0")
        e(f"s_mov_b32 s{srd+2}, {HB}")
        e(f"s_mov_b32 s{srd+3}, 0x00020000")
    c("t load")
    e(f"s_and_b32 s{sTmp2}, s{sHead}, 14")
    e(f"s_lshl_b32 s{sTmp2}, s{sTmp2}, 1")
    e(f"s_load_dword s{sT}, s[10:11], s{sTmp2}")
    c("raw loads: Q -> S0 area, K0 -> S1 area")
    qraw, k0raw = vS, vS + 16
    for s in kraw_load(qraw, sQ, f"s{sTmp}"): e(s)
    for s in kraw_load(k0raw, sK, f"s{sKoffs}"): e(s)
    for s in vdma(sKoffs, sM0): e(s)
    nwarm = 0
    if opt.warm:
        c("touch this block's share of K and V so that later chunks are L2 hits")
        e(f"v_min_u32 v{vT0}, 27, v{vLane}")
        e(f"v_lshlrev_b32 v{vT0}, 6, v{vT0}")
        e(f"buffer_load_dword v{vS+32}, v{vT0}, s[{sK}:{sK+3}], s{sTmp} offen")
        e(f"buffer_load_dword v{vS+33}, v{vT0}, s[{sV}:{sV+3}], s{sTmp} offen")
        nwarm = 2
    e(f"s_add_u32 s{sKoffs}, s{sKoffs}, 14336")
    e(f"s_add_u32 s{sM0}, s{sM0}, 16384")
    for s in vdma(sKoffs, sM0): e(s)
    for s in kraw_load(vRaw, sK, f"s{sKoffs}"): e(s)
    e(f"s_add_u32 s{sVoffs}, s{sKoffs}, 14336")
    e(f"s_add_u32 s{sM0}, s{sM0}, 16384")
    for s in vdma(sVoffs, sM0): e(s)
    c("constants / addresses")
    e(f"s_mov_b32 s{sMask}, 0xffff0000")
    e(f"s_mov_b32 s{sEps}, 0x358637bd")
    e(f"v_mov_b32 v{vIdx}, 0xdddddddd")
    e(f"v_mov_b32 v{vKp+7}, 0x3f803f80")
    c("ones pads in the V ring: lane -> slot lane>>4, pair lane&15")
    e(f"v_lshrrev_b32 v{vT0}, 4, v{vLane}")
    e(f"v_lshlrev_b32 v{vT0}, 14, v{vT0}")
    e(f"v_and_b32 v{vTmp}, 15, v{vLane}")
    e(f"v_lshl_add_u32 v{vT0}, v{vTmp}, 7, v{vT0}")
    e(f"s_lshl_b32 s{sTmp2}, s{sWave}, 11")
    e(f"v_add_u32 v{vT0}, s{sTmp2}, v{vT0}")
    e(f"v_mov_b32 v{vU}, 0x3f80")
    e(f"v_mov_b32 v{vU+1}, 0")
    e(f"v_mov_b32 v{vU+2}, 0x3f80")
    e(f"v_mov_b32 v{vU+3}, 0")
    e(f"ds_write_b128 v{vT0}, {vr(vU,4)} offset:112")
    c("K frag addresses")
    e(f"v_lshlrev_b32 v{vKr}, 4, v{vLane}")
    e(f"v_add_u32 v{vKr}, {LDS_K}, v{vKr}")
    e(f"v_add_u32 v{vKw}, s{sTmp2}, v{vKr}")
    c("V transpose-read address: h'=lane>>5, g1=(lane>>4)&1, r=(lane>>2)&3, c=lane&3; ci=4*g1+c; pi=(ci>>1)+4*(ci&1)")
    e(f"v_lshrrev_b32 v{vT0}, 5, v{vLane}")
    e(f"v_lshlrev_b32 v{vVbase}, 9, v{vT0}")
    e(f"v_bfe_u32 v{vT0}, v{vLane}, 3, 1")
    e(f"v_lshl_add_u32 v{vVbase}, v{vT0}, 7, v{vVbase}")
    e(f"v_bfe_u32 v{vU}, v{vLane}, 2, 1")
    e(f"v_bfe_u32 v{vU+1}, v{vLane}, 4, 1")
    e(f"v_bfe_u32 v{vU+2}, v{vLane}, 1, 1")
    e(f"v_and_b32 v{vU+3}, 1, v{vLane}")
    e(f"v_lshl_add_u32 v{vU+2}, v{vU+1}, 1, v{vU+2}")
    e(f"v_lshl_add_u32 v{vU+2}, v{vU+3}, 2, v{vU+2}")
    e(f"v_lshlrev_b32 v{vU+4}, 3, v{vU+2}")
    e(f"v_mad_u32_u24 v{vU+4}, v{vU}, 56, v{vU+4}")
    e(f"v_lshlrev_b32 v{vU+5}, 3, v{vU}")
    e(f"v_add_u32 v{vU+5}, 0x70, v{vU+5}")
    e(f"v_cmp_eq_u32 vcc, 7, v{vU+2}")
    e(f"v_mov_b32 v{vO}, 0")
    e(f"v_mov_b32 v{vO+1}, 0")
    e(f"v_cndmask_b32 v{vU+4}, v{vU+4}, v{vU+5}, vcc")
    e(f"v_add_u32 v{vVbase}, v{vVbase}, v{vU+4}")
    e(f"v_mov_b32 v{vVr}, v{vVbase}")
    for j in range(2, 16): e(f"v_mov_b32 v{vO+j}, 0")
    for j in range(8, 16): e(f"v_mov_b32 v{vS+48+j}, 0")
    for j in range(4, 8): e(f"v_mov_b32 v{vVf+24+j}, 0")
    c("t -> f32, c = t*log2e")
    e("s_waitcnt lgkmcnt(0)")
    e(f"s_bitcmp1_b32 s{sHead}, 0")
    e(f"s_cselect_b32 s{sTmp2}, 0, 16")
    e(f"s_lshl_b32 s{sT}, s{sT}, s{sTmp2}")
    e(f"s_and_b32 s{sT}, s{sT}, 0xffff0000")
    e(f"v_mov_b32 v{vT0}, 0x3fb8aa3b")
    e(f"v_mul_f32 v{vT0}, s{sT}, v{vT0}")
    e(f"s_nop 0")
    e(f"v_readfirstlane_b32 s{sC}, v{vT0}")
    c("Q pad slot: -|c| as bf16 in the low half for lanes < 32")
    e(f"v_or_b32 v{vT0}, 0x80000000, v{vT0}")
    e(f"v_lshrrev_b32 v{vT0}, 16, v{vT0}")
    e(f"v_cmp_gt_u32 vcc, 32, v{vLane}")
    e(f"s_and_b32 s{sTmp2}, s{sT}, 0x7fffffff")
    e(f"s_nop 0")
    e(f"v_cndmask_b32 v{vQ+7}, 0, v{vT0}, vcc")
    stamp(1)
    e(f"s_waitcnt vmcnt({2+2+nwarm+6})")
    stamp(2)
    for s in prep(qraw, vQ, sC): e(s)
    e(f"s_waitcnt vmcnt({2+nwarm+6})")
    for s in prep(k0raw, vKp): e(s)
    e(f"ds_write_b128 v{vKw}, {vr(vKp,4)}")
    e(f"ds_write_b128 v{vKw}, {vr(vKp+4,4)} offset:1024")
    e(f"v_xor_b32 v{vKw}, 0x4000, v{vKw}")
    c("the shift |t|*log2e bounds every logit; it is only used while it cannot underflow the row")
    e(f"s_cmp_gt_u32 s{sTmp2}, 0x41800000")
    e(f"s_cbranch_scc1 L_truemax")
    lab("L_go")
    e(f"s_mov_b32 s{sIter}, 0")
    e(f"s_mov_b32 s{sVslot}, 0")
    e(f"s_waitcnt vmcnt({nwarm+6}) lgkmcnt(0)")
    e("s_barrier")
    stamp(3)

    def kread(tile_in_slot, buf):
        o = tile_in_slot * 2048
        return [f"ds_read_b128 {vr(vKf+8*buf,4)}, v{vKr} offset:{o}",
                f"ds_read_b128 {vr(vKf+8*buf+4,4)}, v{vKr} offset:{o+1024}"]
    def vread(tile_in_slot, buf):
        o = tile_in_slot * 2048
        return [f"ds_read_b64_tr_b16 {vr(vVf+8*buf+4*s+2*u,2)}, v{vVr} offset:{o+s*1024+u*256}" for s in range(2) for u in range(2)]
    def m1(T):
        return f"v_mfma_f32_32x32x16_bf16 {vr(vS+16*(T%4),16)}, {vr(vKf+8*(T%2),4)}, {vr(vQ,4)}, 0"
    def m2(T):
        return f"v_mfma_f32_32x32x16_bf16 {vr(vS+16*(T%4),16)}, {vr(vKf+8*(T%2)+4,4)}, {vr(vQ+4,4)}, {vr(vS+16*(T%4),16)}"
    def sm(T, s):
        return f"v_smfmac_f32_32x32x32_bf16 {vr(vO,16)}, {vr(vVf+8*(T%4)+4*s,4)}, {vr(vS+16*(T%4)+8*s,8)}, v{vIdx}"
    def ex(T, j):
        r = vS + 16*(T%4) + j
        return f"v_exp_f32 v{r}, v{r}"

    c("pipeline fill")
    for s in kread(0, 0) + kread(1, 1): e(s)
    for s in vread(0, 0): e(s)
    e("s_waitcnt lgkmcnt(6)")
    e(m1(0)); e(m2(0))
    e("s_waitcnt lgkmcnt(4)")
    e(m1(1)); e(m2(1))
    for s in kread(2, 0): e(s)
    for s in vread(1, 1) + vread(2, 2): e(s)
    c("the loop's first wait expects 4 younger LDS ops after the K(2) reads; here there are 8 (stricter, fine)")
    e("s_nop 7")
    e("s_nop 3")

    L.append(".p2align 3")
    lab("L_loop")
    P = prep(vRaw, vKp)
    nblk = 4
    per = (len(P) + nblk - 1) // nblk
    for T in range(8):
        c(f"---- tile {T}")
        rt = (T + 3) % 8
        if T == 0:
            if opt.prio: e("s_setprio 3")
            e("s_waitcnt vmcnt(2)")
        if T == 5:
            e("s_waitcnt lgkmcnt(0)")
            e("s_barrier")
            if opt.prio: e("s_setprio 3")
            e(f"s_add_u32 s{sVslot}, s{sVslot}, 0x4000")
            e(f"s_and_b32 s{sVslot}, s{sVslot}, 0xffff")
            e(f"v_xor_b32 v{vKr}, 0x4000, v{vKr}")
            e(f"v_add_u32 v{vVr}, s{sVslot}, v{vVbase}")
        kr = kread(rt, (T + 3) % 2)
        vrd = vread(rt, (T + 3) % 4)
        e(ex(T, 0)); e(ex(T, 1))
        e(sm(T - 1, 1))
        e(kr[0])
        e(ex(T, 2))
        e(kr[1])
        e(ex(T, 3)); e(ex(T, 4)); e(ex(T, 5))
        if T != 5:
            e("s_waitcnt lgkmcnt(6)")
        e(m1(T + 2))
        e(vrd[0])
        e(ex(T, 6))
        e(vrd[1])
        e(ex(T, 7)); e(ex(T, 8)); e(ex(T, 9))
        e(m2(T + 2))
        e(vrd[2])
        e(ex(T, 10))
        e(vrd[3])
        e(ex(T, 11)); e(ex(T, 12)); e(ex(T, 13))
        e(sm(T, 0))
        e(ex(T, 14)); e(ex(T, 15))
        if T < nblk:
            for s in P[T*per:(T+1)*per]: e(s)
        if T == nblk - 1:
            e(f"ds_write_b128 v{vKw}, {vr(vKp,4)}")
            e(f"ds_write_b128 v{vKw}, {vr(vKp+4,4)} offset:1024")
            e(f"v_xor_b32 v{vKw}, 0x4000, v{vKw}")
        if opt.prio:
            if T == 2: e("s_setprio 2")
            if T == 3: e("s_setprio 1")
        if T == 5:
            c("next loads: K raw chunk i+2, V chunk i+3 (clamped)")
            e(f"s_add_u32 s{sKoffs}, s{sKoffs}, 14336")
            if opt.reps == 1:
                e(f"s_min_u32 s{sKoffs}, s{sKoffs}, {HB-1792}")
            else:
                e(f"s_sub_u32 s3, s{sKoffs}, {HB}")
                e(f"s_cselect_b32 s{sKoffs}, s{sKoffs}, s3")
            e(f"s_add_u32 s{sVoffs}, s{sVoffs}, 14336")
            if opt.reps == 1:
                e(f"s_min_u32 s{sVoffs}, s{sVoffs}, {HB-1792}")
            else:
                e(f"s_sub_u32 s3, s{sVoffs}, {HB}")
                e(f"s_cselect_b32 s{sVoffs}, s{sVoffs}, s3")
            e(f"s_add_u32 s{sM0}, s{sM0}, 16384")
            e(f"s_and_b32 s{sM0}, s{sM0}, 0xffff")
            for s in kraw_load(vRaw, sK, f"s{sKoffs}"): e(s)
            for s in vdma(sVoffs, sM0): e(s)
    e(f"s_add_u32 s{sIter}, s{sIter}, 1")
    e(f"s_cmp_lt_u32 s{sIter}, {8*opt.reps}")
    e("s_cbranch_scc1 L_loop")
    e("s_nop 1")
    e(sm(7, 1))
    stamp(4)
    c("epilogue")
    e("s_nop 15")
    e(f"v_mov_b32 v{vTmp}, v{vO+12}")
    e(f"v_mov_b32 v{vSS}, v{vO+12}")
    e("s_nop 1")
    e(f"v_permlane32_swap_b32 v{vSS}, v{vTmp}")
    e("s_nop 1")
    e(f"v_rcp_f32 v{vR}, v{vTmp}")
    e("s_nop 0")
    for j in range(8):
        e(f"v_pk_mul_f32 {vr(vO+2*j,2)}, {vr(vO+2*j,2)}, {vr(vR,2)} op_sel_hi:[1,0]")
    for j in range(8):
        e(f"v_cvt_pk_bf16_f32 v{vU+j}, v{vO+2*j}, v{vO+2*j+1}")
    e(f"buffer_store_dwordx4 {vr(vU,4)}, v{vOoff}, s[{sO}:{sO+3}], s{sTmp} offen")
    e(f"buffer_store_dwordx2 {vr(vU+4,2)}, v{vOoff}, s[{sO}:{sO+3}], s{sTmp} offen offset:16")
    e("s_mov_b32 exec_hi, 0")
    e(f"buffer_store_dwordx2 {vr(vU+6,2)}, v{vOoff}, s[{sO}:{sO+3}], s{sTmp} offen offset:24")
    if opt.stamps:
        e("s_waitcnt vmcnt(0)")
        stamp(5)
        e("s_memrealtime s[72:73]")
        e("s_waitcnt lgkmcnt(0)")
        e("s_mov_b32 s80, s14"); e("s_mov_b32 s81, s15"); e("s_mov_b32 s82, 256"); e("s_mov_b32 s83, 0x00020000")
        e("s_cmp_lg_u32 s2, 0"); e("s_cbranch_scc1 L_end")
        e(f"s_cmp_gt_u32 s{sWave}, 4"); e("s_cbranch_scc1 L_end")
        e(f"s_and_b32 s3, s{sWave}, 3"); e("s_cmp_lg_u32 s3, 0"); e("s_cbranch_scc1 L_end")
        e(f"s_lshl_b32 s3, s{sWave}, 3")
        e("s_mov_b64 exec, 1")
        e("v_mov_b32 v1, 0")
        for i in range(1, 6):
            e(f"s_sub_u32 s84, s{60+2*i}, s60")
            e("v_mov_b32 v2, s84")
            e(f"buffer_store_dword v2, v1, s[80:83], s3 offen offset:{4*(i-1)}")
        e("s_sub_u32 s84, s72, s74")
        e("v_mov_b32 v2, s84")
        e(f"buffer_store_dword v2, v1, s[80:83], s3 offen offset:20")
    lab("L_end")
    e("s_endpgm")

    lab("L_truemax")
    mx = vS + 32
    e("s_waitcnt vmcnt(0)")
    e(f"v_mov_b32 v{vQ+7}, 0")
    e(f"v_mov_b32 v{mx}, 0xff800000")
    e(f"s_mov_b32 s{sIter}, 0")
    lab("L_tm_loop")
    for s in kraw_load(vS + 16, sK, f"s{sIter}"): e(s)
    e("s_waitcnt vmcnt(0)")
    for s in prep(vS + 16, vKf): e(s)
    e(f"v_mov_b32 v{vKf+7}, 0")
    e("s_nop 1")
    e(f"v_mfma_f32_32x32x16_bf16 {vr(vS,16)}, {vr(vKf,4)}, {vr(vQ,4)}, 0")
    e(f"v_mfma_f32_32x32x16_bf16 {vr(vS,16)}, {vr(vKf+4,4)}, {vr(vQ+4,4)}, {vr(vS,16)}")
    e("s_nop 15")
    for j in range(0, 16, 2):
        e(f"v_max3_f32 v{mx}, v{vS+j}, v{vS+j+1}, v{mx}")
    e(f"s_add_u32 s{sIter}, s{sIter}, 1792")
    e(f"s_cmp_lt_u32 s{sIter}, {HB}")
    e("s_cbranch_scc1 L_tm_loop")
    e(f"v_mov_b32 v{mx+1}, v{mx}")
    e("s_nop 1")
    e(f"v_permlane32_swap_b32 v{mx}, v{mx+1}")
    e("s_nop 1")
    e(f"v_max_f32 v{mx}, v{mx}, v{mx+1}")
    c("split -max into three bf16 parts")
    e(f"v_sub_f32 v{mx}, 0, v{mx}")
    e(f"v_and_b32 v{mx+1}, s{sMask}, v{mx}")
    e(f"v_sub_f32 v{mx}, v{mx}, v{mx+1}")
    e(f"v_and_b32 v{mx+2}, s{sMask}, v{mx}")
    e(f"v_sub_f32 v{mx}, v{mx}, v{mx+2}")
    e(f"v_lshrrev_b32 v{mx+1}, 16, v{mx+1}")
    e(f"v_or_b32 v{mx+1}, v{mx+1}, v{mx+2}")
    e(f"v_lshrrev_b32 v{mx}, 16, v{mx}")
    e(f"v_cmp_gt_u32 vcc, 32, v{vLane}")
    e("s_nop 1")
    e(f"v_cndmask_b32 v{vQ+7}, v{mx}, v{mx+1}, vcc")
    e("s_branch L_go")

    txt = HEADER + f"; @launch grid=(256,1,1) block=(512,1,1) lds={LDS_TOTAL}\n"
    txt += """.amdgcn_target "amdgcn-amd-amdhsa--gfx950"
.text
.globl standalone__qk_norm__prompt_kernel
.p2align 8
.type standalone__qk_norm__prompt_kernel,@function
standalone__qk_norm__prompt_kernel:
"""
    txt += "\n".join(L) + "\n"
    txt += f""".section .rodata,"a"
.p2align 6
.amdhsa_kernel standalone__qk_norm__prompt_kernel
  .amdhsa_next_free_vgpr {NV}
  .amdhsa_next_free_sgpr 96
  .amdhsa_accum_offset {(NV+3)//4*4}
  .amdhsa_group_segment_fixed_size 0
  .amdhsa_kernarg_size 56
  .amdhsa_user_sgpr_count 2
  .amdhsa_user_sgpr_kernarg_segment_ptr 1
  .amdhsa_system_sgpr_workgroup_id_x 1
.end_amdhsa_kernel
"""
    return txt

if __name__ == "__main__":
    opt = Opt()
    out = sys.argv[1]
    for a in sys.argv[2:]:
        k, v = a.split("=")
        setattr(opt, k, eval(v))
    open(out, "w").write(gen(opt))
```

```python
import sys

HEADER = """; Kernarg layout for this problem (56 bytes, ptrs only, base s[0:1]):
"""

class Opt:
    prio = True
    stamps = False
    warm = True
    reps = 1
    padto = 0

def gen(opt):
    L = []
    def e(s): L.append("    " + s)
    def lab(s): L.append(s + ":")
    def c(s): L.append("    ; " + s)

    HB = 114688
    LDS_V = 0
    LDS_K = 65536
    LDS_TOTAL = 98304
    vLane = 0
    vKoff, vVoff, vKw, vKr, vVr, vIdx, vT0 = 1, 2, 3, 4, 5, 6, 7
    vQ = 8
    vO = 16
    vS = 32
    vKf = 96
    vVf = 112
    vRaw = 144
    vKp = 152
    vU = 160
    vSS, vTmp = 174, 175
    vR = 176
    vVbase = 178
    vOoff = 179
    NV = 180
    sQ, sK, sV, sO = 16, 20, 24, 28
    sWave, sHead, sQb = 32, 33, 34
    sIter, sKoffs, sVoffs, sVslot, sM0 = 35, 36, 37, 38, 39
    sT, sC = 40, 41
    sMask = 42
    sEps = 43
    sExV = 44
    sTmp = 46
    sTmp2 = 47

    def vr(b, n): return f"v[{b}:{b+n-1}]"

    def prep(raw, out, scale_sgpr=None):
        P = []
        P.append(f"v_dot2_f32_bf16 v{vSS}, v{raw}, v{raw}, 0")
        for j in range(1, 7):
            P.append(f"v_dot2_f32_bf16 v{vSS}, v{raw+j}, v{raw+j}, v{vSS}")
        for j in range(0, 2):
            P.append(f"v_lshlrev_b32 v{vU+2*j}, 16, v{raw+j}")
            P.append(f"v_and_b32 v{vU+2*j+1}, s{sMask}, v{raw+j}")
        P.append(f"v_mov_b32 v{vTmp}, v{vSS}")
        for j in range(2, 3):
            P.append(f"v_lshlrev_b32 v{vU+2*j}, 16, v{raw+j}")
            P.append(f"v_and_b32 v{vU+2*j+1}, s{sMask}, v{raw+j}")
        P.append(f"v_permlane32_swap_b32 v{vSS}, v{vTmp}")
        P.append(f"v_lshlrev_b32 v{vU+6}, 16, v{raw+3}")
        P.append(f"v_add_f32 v{vSS}, v{vSS}, v{vTmp}")
        P.append(f"v_and_b32 v{vU+7}, s{sMask}, v{raw+3}")
        P.append(f"v_sqrt_f32 v{vSS}, v{vSS}")
        P.append(f"v_lshlrev_b32 v{vU+8}, 16, v{raw+4}")
        P.append(f"v_add_f32 v{vSS}, s{sEps}, v{vSS}")
        P.append(f"v_and_b32 v{vU+9}, s{sMask}, v{raw+4}")
        P.append(f"v_rcp_f32 v{vR}, v{vSS}")
        P.append(f"v_lshlrev_b32 v{vU+10}, 16, v{raw+5}")
        if scale_sgpr is not None:
            P.append(f"v_mul_f32 v{vR}, s{scale_sgpr}, v{vR}")
        P.append(f"v_and_b32 v{vU+11}, s{sMask}, v{raw+5}")
        P.append(f"v_lshlrev_b32 v{vU+12}, 16, v{raw+6}")
        P.append(f"v_and_b32 v{vU+13}, s{sMask}, v{raw+6}")
        for j in range(7):
            P.append(f"v_pk_mul_f32 {vr(vU+2*j,2)}, {vr(vU+2*j,2)}, {vr(vR,2)} op_sel_hi:[1,0]")
        for j in range(7):
            P.append(f"v_cvt_pk_bf16_f32 v{out+j}, v{vU+2*j}, v{vU+2*j+1}")
        return P

    def kraw_load(dst, srd, soff):
        return [f"buffer_load_dwordx4 {vr(dst,4)}, v{vKoff}, s[{srd}:{srd+3}], {soff} offen",
                f"buffer_load_dwordx3 {vr(dst+4,3)}, v{vKoff}, s[{srd}:{srd+3}], {soff} offen offset:16"]

    def vdma(soff, m0reg):
        return [f"s_mov_b32 m0, s{m0reg}",
                f"s_mov_b64 exec, s[{sExV}:{sExV+1}]",
                f"buffer_load_dwordx4 v{vVoff}, s[{sV}:{sV+3}], s{soff} offen lds",
                f"s_add_u32 m0, s{m0reg}, 128",
                f"s_nop 0",
                f"buffer_load_dwordx4 v{vVoff}, s[{sV}:{sV+3}], s{soff} offen offset:896 lds",
                f"s_mov_b64 exec, -1"]

    def stamp(i):
        if opt.stamps:
            e(f"s_memtime s[{60+2*i}:{61+2*i}]")

    e("s_cmp_ge_u32 s2, 256")
    e("s_cbranch_scc1 L_end")
    stamp(0)
    if opt.stamps or opt.padto: e("s_memrealtime s[74:75]")
    e("s_load_dwordx4 s[4:7], s[0:1], 0")
    e("s_load_dwordx4 s[8:11], s[0:1], 16")
    e("s_load_dwordx2 s[12:13], s[0:1], 32")
    if opt.stamps:
        e("s_load_dwordx2 s[14:15], s[0:1], 40")
    c("head = (wg&7)*4 + ((wg>>3)&3), qblk = wg>>5")
    e("s_and_b32 s3, s2, 7")
    e("s_lshl_b32 s3, s3, 2")
    e(f"s_bfe_u32 s{sHead}, s2, 0x20003")
    e(f"s_add_u32 s{sHead}, s{sHead}, s3")
    e(f"s_lshr_b32 s{sQb}, s2, 5")
    e(f"v_lshrrev_b32 v{vT0}, 6, v0")
    e(f"v_and_b32 v{vLane}, 63, v0")
    e(f"v_readfirstlane_b32 s{sWave}, v{vT0}")
    c("vKoff = (lane&31)*56 + (lane>>5)*28")
    e(f"v_and_b32 v{vKoff}, 31, v{vLane}")
    e(f"v_lshrrev_b32 v{vT0}, 5, v{vLane}")
    e(f"v_mul_u32_u24 v{vKoff}, 56, v{vKoff}")
    e(f"v_mad_u32_u24 v{vOoff}, v{vT0}, 32, v{vKoff}")
    e(f"v_mad_u32_u24 v{vKoff}, v{vT0}, 28, v{vKoff}")
    c("vVoff = (lane>>3)*112 + (lane&7)*16")
    e(f"v_lshrrev_b32 v{vVoff}, 3, v{vLane}")
    e(f"v_and_b32 v{vT0}, 7, v{vLane}")
    e(f"v_mul_u32_u24 v{vVoff}, 0x70, v{vVoff}")
    e(f"v_lshl_add_u32 v{vVoff}, v{vT0}, 4, v{vVoff}")
    e(f"s_mul_i32 s3, s{sHead}, {HB}")
    e(f"s_mov_b32 s{sExV}, 0x7f7f7f7f")
    e(f"s_mov_b32 s{sExV+1}, 0x7f7f7f7f")
    e(f"s_mul_i32 s{sKoffs}, s{sWave}, 1792")
    e(f"s_lshl_b32 s{sM0}, s{sWave}, 11")
    e(f"s_mul_i32 s{sTmp}, s{sQb}, 14336")
    e(f"s_add_u32 s{sTmp}, s{sTmp}, s{sKoffs}")
    e("s_waitcnt lgkmcnt(0)")
    for srd, p in ((sQ, 4), (sK, 6), (sV, 8), (sO, 12)):
        e(f"s_add_u32 s{srd}, s{p}, s3")
        e(f"s_addc_u32 s{srd+1}, s{p+1}, 0")
        e(f"s_mov_b32 s{srd+2}, {HB}")
        e(f"s_mov_b32 s{srd+3}, 0x00020000")
    c("t load")
    e(f"s_and_b32 s{sTmp2}, s{sHead}, 14")
    e(f"s_lshl_b32 s{sTmp2}, s{sTmp2}, 1")
    e(f"s_load_dword s{sT}, s[10:11], s{sTmp2}")
    c("raw loads: Q -> S0 area, K0 -> S1 area")
    qraw, k0raw = vS, vS + 16
    for s in kraw_load(qraw, sQ, f"s{sTmp}"): e(s)
    for s in kraw_load(k0raw, sK, f"s{sKoffs}"): e(s)
    for s in vdma(sKoffs, sM0): e(s)
    nwarm = 0
    if opt.warm:
        c("touch this block's share of K and V so that later chunks are L2 hits")
        e(f"v_min_u32 v{vT0}, 27, v{vLane}")
        e(f"v_lshlrev_b32 v{vT0}, 6, v{vT0}")
        e(f"buffer_load_dword v{vS+32}, v{vT0}, s[{sK}:{sK+3}], s{sTmp} offen")
        e(f"buffer_load_dword v{vS+33}, v{vT0}, s[{sV}:{sV+3}], s{sTmp} offen")
        nwarm = 2
    e(f"s_add_u32 s{sKoffs}, s{sKoffs}, 14336")
    e(f"s_add_u32 s{sM0}, s{sM0}, 16384")
    for s in vdma(sKoffs, sM0): e(s)
    for s in kraw_load(vRaw, sK, f"s{sKoffs}"): e(s)
    e(f"s_add_u32 s{sVoffs}, s{sKoffs}, 14336")
    e(f"s_add_u32 s{sM0}, s{sM0}, 16384")
    for s in vdma(sVoffs, sM0): e(s)
    c("constants / addresses")
    e(f"s_mov_b32 s{sMask}, 0xffff0000")
    e(f"s_mov_b32 s{sEps}, 0x358637bd")
    e(f"v_mov_b32 v{vIdx}, 0xdddddddd")
    e(f"v_mov_b32 v{vKp+7}, 0x3f803f80")
    c("ones pads in the V ring: lane -> slot lane>>4, pair lane&15")
    e(f"v_lshrrev_b32 v{vT0}, 4, v{vLane}")
    e(f"v_lshlrev_b32 v{vT0}, 14, v{vT0}")
    e(f"v_and_b32 v{vTmp}, 15, v{vLane}")
    e(f"v_lshl_add_u32 v{vT0}, v{vTmp}, 7, v{vT0}")
    e(f"s_lshl_b32 s{sTmp2}, s{sWave}, 11")
    e(f"v_add_u32 v{vT0}, s{sTmp2}, v{vT0}")
    e(f"v_mov_b32 v{vU}, 0x3f80")
    e(f"v_mov_b32 v{vU+1}, 0")
    e(f"v_mov_b32 v{vU+2}, 0x3f80")
    e(f"v_mov_b32 v{vU+3}, 0")
    e(f"ds_write_b128 v{vT0}, {vr(vU,4)} offset:112")
    c("K frag addresses")
    e(f"v_lshlrev_b32 v{vKr}, 4, v{vLane}")
    e(f"v_add_u32 v{vKr}, {LDS_K}, v{vKr}")
    e(f"v_add_u32 v{vKw}, s{sTmp2}, v{vKr}")
    c("V transpose-read address: h'=lane>>5, g1=(lane>>4)&1, r=(lane>>2)&3, c=lane&3; ci=4*g1+c; pi=(ci>>1)+4*(ci&1)")
    e(f"v_lshrrev_b32 v{vT0}, 5, v{vLane}")
    e(f"v_lshlrev_b32 v{vVbase}, 9, v{vT0}")
    e(f"v_bfe_u32 v{vT0}, v{vLane}, 3, 1")
    e(f"v_lshl_add_u32 v{vVbase}, v{vT0}, 7, v{vVbase}")
    e(f"v_bfe_u32 v{vU}, v{vLane}, 2, 1")
    e(f"v_bfe_u32 v{vU+1}, v{vLane}, 4, 1")
    e(f"v_bfe_u32 v{vU+2}, v{vLane}, 1, 1")
    e(f"v_and_b32 v{vU+3}, 1, v{vLane}")
    e(f"v_lshl_add_u32 v{vU+2}, v{vU+1}, 1, v{vU+2}")
    e(f"v_lshl_add_u32 v{vU+2}, v{vU+3}, 2, v{vU+2}")
    e(f"v_lshlrev_b32 v{vU+4}, 3, v{vU+2}")
    e(f"v_mad_u32_u24 v{vU+4}, v{vU}, 56, v{vU+4}")
    e(f"v_lshlrev_b32 v{vU+5}, 3, v{vU}")
    e(f"v_add_u32 v{vU+5}, 0x70, v{vU+5}")
    e(f"v_cmp_eq_u32 vcc, 7, v{vU+2}")
    e(f"v_mov_b32 v{vO}, 0")
    e(f"v_mov_b32 v{vO+1}, 0")
    e(f"v_cndmask_b32 v{vU+4}, v{vU+4}, v{vU+5}, vcc")
    e(f"v_add_u32 v{vVbase}, v{vVbase}, v{vU+4}")
    e(f"v_mov_b32 v{vVr}, v{vVbase}")
    for j in range(2, 16): e(f"v_mov_b32 v{vO+j}, 0")
    for j in range(8, 16): e(f"v_mov_b32 v{vS+48+j}, 0")
    for j in range(4, 8): e(f"v_mov_b32 v{vVf+24+j}, 0")
    c("t -> f32, c = t*log2e")
    e("s_waitcnt lgkmcnt(0)")
    e(f"s_bitcmp1_b32 s{sHead}, 0")
    e(f"s_cselect_b32 s{sTmp2}, 0, 16")
    e(f"s_lshl_b32 s{sT}, s{sT}, s{sTmp2}")
    e(f"s_and_b32 s{sT}, s{sT}, 0xffff0000")
    e(f"v_mov_b32 v{vT0}, 0x3fb8aa3b")
    e(f"v_mul_f32 v{vT0}, s{sT}, v{vT0}")
    e(f"s_nop 0")
    e(f"v_readfirstlane_b32 s{sC}, v{vT0}")
    c("Q pad slot: -|c| as bf16 in the low half for lanes < 32")
    e(f"v_or_b32 v{vT0}, 0x80000000, v{vT0}")
    e(f"v_lshrrev_b32 v{vT0}, 16, v{vT0}")
    e(f"v_cmp_gt_u32 vcc, 32, v{vLane}")
    e(f"s_and_b32 s{sTmp2}, s{sT}, 0x7fffffff")
    e(f"s_nop 0")
    e(f"v_cndmask_b32 v{vQ+7}, 0, v{vT0}, vcc")
    stamp(1)
    e(f"s_waitcnt vmcnt({2+2+nwarm+6})")
    stamp(2)
    for s in prep(qraw, vQ, sC): e(s)
    e(f"s_waitcnt vmcnt({2+nwarm+6})")
    for s in prep(k0raw, vKp): e(s)
    e(f"ds_write_b128 v{vKw}, {vr(vKp,4)}")
    e(f"ds_write_b128 v{vKw}, {vr(vKp+4,4)} offset:1024")
    e(f"v_xor_b32 v{vKw}, 0x4000, v{vKw}")
    c("the shift |t|*log2e bounds every logit; it is only used while it cannot underflow the row")
    e(f"s_cmp_gt_u32 s{sTmp2}, 0x41800000")
    e(f"s_cbranch_scc1 L_truemax")
    lab("L_go")
    e(f"s_mov_b32 s{sIter}, 0")
    e(f"s_mov_b32 s{sVslot}, 0")
    e(f"s_waitcnt vmcnt({nwarm+6}) lgkmcnt(0)")
    e("s_barrier")
    stamp(3)

    def kread(tile_in_slot, buf):
        o = tile_in_slot * 2048
        return [f"ds_read_b128 {vr(vKf+8*buf,4)}, v{vKr} offset:{o}",
                f"ds_read_b128 {vr(vKf+8*buf+4,4)}, v{vKr} offset:{o+1024}"]
    def vread(tile_in_slot, buf):
        o = tile_in_slot * 2048
        return [f"ds_read_b64_tr_b16 {vr(vVf+8*buf+4*s+2*u,2)}, v{vVr} offset:{o+s*1024+u*256}" for s in range(2) for u in range(2)]
    def m1(T):
        return f"v_mfma_f32_32x32x16_bf16 {vr(vS+16*(T%4),16)}, {vr(vKf+8*(T%2),4)}, {vr(vQ,4)}, 0"
    def m2(T):
        return f"v_mfma_f32_32x32x16_bf16 {vr(vS+16*(T%4),16)}, {vr(vKf+8*(T%2)+4,4)}, {vr(vQ+4,4)}, {vr(vS+16*(T%4),16)}"
    def sm(T, s):
        return f"v_smfmac_f32_32x32x32_bf16 {vr(vO,16)}, {vr(vVf+8*(T%4)+4*s,4)}, {vr(vS+16*(T%4)+8*s,8)}, v{vIdx}"
    def ex(T, j):
        r = vS + 16*(T%4) + j
        return f"v_exp_f32 v{r}, v{r}"

    c("pipeline fill")
    for s in kread(0, 0) + kread(1, 1): e(s)
    for s in vread(0, 0): e(s)
    e("s_waitcnt lgkmcnt(6)")
    e(m1(0)); e(m2(0))
    e("s_waitcnt lgkmcnt(4)")
    e(m1(1)); e(m2(1))
    for s in kread(2, 0): e(s)
    for s in vread(1, 1) + vread(2, 2): e(s)
    c("the loop's first wait expects 4 younger LDS ops after the K(2) reads; here there are 8 (stricter, fine)")
    e("s_nop 7")
    e("s_nop 3")

    L.append(".p2align 3")
    lab("L_loop")
    P = prep(vRaw, vKp)
    nblk = 4
    per = (len(P) + nblk - 1) // nblk
    for T in range(8):
        c(f"---- tile {T}")
        rt = (T + 3) % 8
        if T == 0:
            if opt.prio: e("s_setprio 3")
            e("s_waitcnt vmcnt(2)")
        if T == 5:
            e("s_waitcnt lgkmcnt(0)")
            e("s_barrier")
            if opt.prio: e("s_setprio 3")
            e(f"s_add_u32 s{sVslot}, s{sVslot}, 0x4000")
            e(f"s_and_b32 s{sVslot}, s{sVslot}, 0xffff")
            e(f"v_xor_b32 v{vKr}, 0x4000, v{vKr}")
            e(f"v_add_u32 v{vVr}, s{sVslot}, v{vVbase}")
        kr = kread(rt, (T + 3) % 2)
        vrd = vread(rt, (T + 3) % 4)
        e(ex(T, 0)); e(ex(T, 1))
        e(sm(T - 1, 1))
        e(kr[0])
        e(ex(T, 2))
        e(kr[1])
        e(ex(T, 3)); e(ex(T, 4)); e(ex(T, 5))
        if T != 5:
            e("s_waitcnt lgkmcnt(6)")
        e(m1(T + 2))
        e(vrd[0])
        e(ex(T, 6))
        e(vrd[1])
        e(ex(T, 7)); e(ex(T, 8)); e(ex(T, 9))
        e(m2(T + 2))
        e(vrd[2])
        e(ex(T, 10))
        e(vrd[3])
        e(ex(T, 11)); e(ex(T, 12)); e(ex(T, 13))
        e(sm(T, 0))
        e(ex(T, 14)); e(ex(T, 15))
        if T < nblk:
            for s in P[T*per:(T+1)*per]: e(s)
        if T == nblk - 1:
            e(f"ds_write_b128 v{vKw}, {vr(vKp,4)}")
            e(f"ds_write_b128 v{vKw}, {vr(vKp+4,4)} offset:1024")
            e(f"v_xor_b32 v{vKw}, 0x4000, v{vKw}")
        if opt.prio:
            if T == 2: e("s_setprio 2")
            if T == 3: e("s_setprio 1")
        if T == 5:
            c("next loads: K raw chunk i+2, V chunk i+3 (clamped)")
            e(f"s_add_u32 s{sKoffs}, s{sKoffs}, 14336")
            if opt.reps == 1:
                e(f"s_min_u32 s{sKoffs}, s{sKoffs}, {HB-1792}")
            else:
                e(f"s_sub_u32 s3, s{sKoffs}, {HB}")
                e(f"s_cselect_b32 s{sKoffs}, s{sKoffs}, s3")
            e(f"s_add_u32 s{sVoffs}, s{sVoffs}, 14336")
            if opt.reps == 1:
                e(f"s_min_u32 s{sVoffs}, s{sVoffs}, {HB-1792}")
            else:
                e(f"s_sub_u32 s3, s{sVoffs}, {HB}")
                e(f"s_cselect_b32 s{sVoffs}, s{sVoffs}, s3")
            e(f"s_add_u32 s{sM0}, s{sM0}, 16384")
            e(f"s_and_b32 s{sM0}, s{sM0}, 0xffff")
            for s in kraw_load(vRaw, sK, f"s{sKoffs}"): e(s)
            for s in vdma(sVoffs, sM0): e(s)
    e(f"s_add_u32 s{sIter}, s{sIter}, 1")
    e(f"s_cmp_lt_u32 s{sIter}, {8*opt.reps}")
    e("s_cbranch_scc1 L_loop")
    e("s_nop 1")
    e(sm(7, 1))
    stamp(4)
    c("epilogue")
    e("s_nop 15")
    e(f"v_mov_b32 v{vTmp}, v{vO+12}")
    e(f"v_mov_b32 v{vSS}, v{vO+12}")
    e("s_nop 1")
    e(f"v_permlane32_swap_b32 v{vSS}, v{vTmp}")
    e("s_nop 1")
    e(f"v_rcp_f32 v{vR}, v{vTmp}")
    e("s_nop 0")
    for j in range(8):
        e(f"v_pk_mul_f32 {vr(vO+2*j,2)}, {vr(vO+2*j,2)}, {vr(vR,2)} op_sel_hi:[1,0]")
    for j in range(8):
        e(f"v_cvt_pk_bf16_f32 v{vU+j}, v{vO+2*j}, v{vO+2*j+1}")
    e(f"buffer_store_dwordx4 {vr(vU,4)}, v{vOoff}, s[{sO}:{sO+3}], s{sTmp} offen")
    e(f"buffer_store_dwordx2 {vr(vU+4,2)}, v{vOoff}, s[{sO}:{sO+3}], s{sTmp} offen offset:16")
    e("s_mov_b32 exec_hi, 0")
    e(f"buffer_store_dwordx2 {vr(vU+6,2)}, v{vOoff}, s[{sO}:{sO+3}], s{sTmp} offen offset:24")
    if opt.stamps:
        e("s_waitcnt vmcnt(0)")
        stamp(5)
        e("s_memrealtime s[72:73]")
        e("s_waitcnt lgkmcnt(0)")
        e("s_mov_b32 s80, s14"); e("s_mov_b32 s81, s15"); e("s_mov_b32 s82, 256"); e("s_mov_b32 s83, 0x00020000")
        e("s_cmp_lg_u32 s2, 0"); e("s_cbranch_scc1 L_end")
        e(f"s_cmp_gt_u32 s{sWave}, 4"); e("s_cbranch_scc1 L_end")
        e(f"s_and_b32 s3, s{sWave}, 3"); e("s_cmp_lg_u32 s3, 0"); e("s_cbranch_scc1 L_end")
        e(f"s_lshl_b32 s3, s{sWave}, 3")
        e("s_mov_b64 exec, 1")
        e("v_mov_b32 v1, 0")
        for i in range(1, 6):
            e(f"s_sub_u32 s84, s{60+2*i}, s60")
            e("v_mov_b32 v2, s84")
            e(f"buffer_store_dword v2, v1, s[80:83], s3 offen offset:{4*(i-1)}")
        e("s_sub_u32 s84, s72, s74")
        e("v_mov_b32 v2, s84")
        e(f"buffer_store_dword v2, v1, s[80:83], s3 offen offset:20")
    if opt.padto:
        e("s_waitcnt vmcnt(0)")
        lab("L_spin")
        e("s_memrealtime s[72:73]")
        e("s_waitcnt lgkmcnt(0)")
        e("s_sub_u32 s84, s72, s74")
        e(f"s_cmp_lt_u32 s84, {opt.padto}")
        e("s_cbranch_scc1 L_spin")
    lab("L_end")
    e("s_endpgm")

    lab("L_truemax")
    mx = vS + 32
    e("s_waitcnt vmcnt(0)")
    e(f"v_mov_b32 v{vQ+7}, 0")
    e(f"v_mov_b32 v{mx}, 0xff800000")
    e(f"s_mov_b32 s{sIter}, 0")
    lab("L_tm_loop")
    for s in kraw_load(vS + 16, sK, f"s{sIter}"): e(s)
    e("s_waitcnt vmcnt(0)")
    for s in prep(vS + 16, vKf): e(s)
    e(f"v_mov_b32 v{vKf+7}, 0")
    e("s_nop 1")
    e(f"v_mfma_f32_32x32x16_bf16 {vr(vS,16)}, {vr(vKf,4)}, {vr(vQ,4)}, 0")
    e(f"v_mfma_f32_32x32x16_bf16 {vr(vS,16)}, {vr(vKf+4,4)}, {vr(vQ+4,4)}, {vr(vS,16)}")
    e("s_nop 15")
    for j in range(0, 16, 2):
        e(f"v_max3_f32 v{mx}, v{vS+j}, v{vS+j+1}, v{mx}")
    e(f"s_add_u32 s{sIter}, s{sIter}, 1792")
    e(f"s_cmp_lt_u32 s{sIter}, {HB}")
    e("s_cbranch_scc1 L_tm_loop")
    e(f"v_mov_b32 v{mx+1}, v{mx}")
    e("s_nop 1")
    e(f"v_permlane32_swap_b32 v{mx}, v{mx+1}")
    e("s_nop 1")
    e(f"v_max_f32 v{mx}, v{mx}, v{mx+1}")
    c("split -max into three bf16 parts")
    e(f"v_sub_f32 v{mx}, 0, v{mx}")
    e(f"v_and_b32 v{mx+1}, s{sMask}, v{mx}")
    e(f"v_sub_f32 v{mx}, v{mx}, v{mx+1}")
    e(f"v_and_b32 v{mx+2}, s{sMask}, v{mx}")
    e(f"v_sub_f32 v{mx}, v{mx}, v{mx+2}")
    e(f"v_lshrrev_b32 v{mx+1}, 16, v{mx+1}")
    e(f"v_or_b32 v{mx+1}, v{mx+1}, v{mx+2}")
    e(f"v_lshrrev_b32 v{mx}, 16, v{mx}")
    e(f"v_cmp_gt_u32 vcc, 32, v{vLane}")
    e("s_nop 1")
    e(f"v_cndmask_b32 v{vQ+7}, v{mx}, v{mx+1}, vcc")
    e("s_branch L_go")

    txt = HEADER + f"; @launch grid=(256,1,1) block=(512,1,1) lds={LDS_TOTAL}\n"
    txt += """.amdgcn_target "amdgcn-amd-amdhsa--gfx950"
.text
.globl standalone__qk_norm__prompt_kernel
.p2align 8
.type standalone__qk_norm__prompt_kernel,@function
standalone__qk_norm__prompt_kernel:
"""
    txt += "\n".join(L) + "\n"
    txt += f""".section .rodata,"a"
.p2align 6
.amdhsa_kernel standalone__qk_norm__prompt_kernel
  .amdhsa_next_free_vgpr {NV}
  .amdhsa_next_free_sgpr 96
  .amdhsa_accum_offset {(NV+3)//4*4}
  .amdhsa_group_segment_fixed_size 0
  .amdhsa_kernarg_size 56
  .amdhsa_user_sgpr_count 2
  .amdhsa_user_sgpr_kernarg_segment_ptr 1
  .amdhsa_system_sgpr_workgroup_id_x 1
.end_amdhsa_kernel
"""
    return txt

if __name__ == "__main__":
    opt = Opt()
    out = sys.argv[1]
    for a in sys.argv[2:]:
        k, v = a.split("=")
        setattr(opt, k, eval(v))
    open(out, "w").write(gen(opt))
```

```python
import sys, re

HEADER = """; Kernarg layout for this problem (56 bytes, ptrs only, base s[0:1]):
"""

PAT_B = [
 "eeAw3keeeeBkeeeeCveeeeDvee",
 "eeAveeeeBveeeeCXXeeeeDXXee",
 "eeAwkeeeeBkeeeeCveeeeDvee",
 "eeA2veeeeBveeeeCfeeeeDee",
 "eeAwFkeeeeBkeeeeCveeeeDvee",
 "eeAveeeeByveeeeCVeeeeDUeeT",
 "eeAw1keeeeBakeeeeCaveeeeDaivee",
 "eeAiiveeeeBiveeeeC0eeeeDPee",
]
PAT_A = [
 "eeAw3keeeeBkeeeeCveeeeDvee",
 "eeAveeeeBveeeeCYnneeeeDnnee",
 "eeAwkteeegeBkteeegeCvteeegeDvtee",
 "egeA2vteeegeBvteeegeCfteeegeDee",
 "eeAwFkexexexeBkesesesesCvesseemeDvee",
 "emeAveecemeByvececemeCVececemeDUecec",
 "emeAw1kececemeBakWececeeCavWeceecceDaivee",
 "eeAiivWeeeeBivWeeeeC0eeeeDPee",
]
PAT_T = [
 "eeA1eeeeeeeeDeeeeee",
 "eeAeeee0eeeeDeeeOeOeOeO",
]

class Opt:
    ws = False
    patT = PAT_T
    st_flags = ''
    padto = 0
    force_fallback = False
    patA = PAT_A
    patB = PAT_B
    prio = True
    pmap = '0123'
    p_start = 3
    sleep = 1
    stampT = (4,)

def gen(opt):
    L = []
    def e(s): L.append("    " + s)
    def lab(s): L.append(s + ":")
    def c(s): L.append("    ; " + s)

    HB = 114688
    CH = 14336
    LDS_V = 0
    LDS_K = 65536
    LDS_Q = LDS_K + 3*16384
    LDS_R = 131072
    LDS_F = LDS_R + 8*3584
    LDS_TOTAL = LDS_F + 256
    vLane, vL16, vVoff, vKw, vKr, vVr, vIdx, vT0 = 0, 1, 2, 3, 4, 5, 6, 7
    vNat, vTr, vMa, vMb, vOoff, vT1, vSS, vR = 8, 9, 10, 11, 12, 13, 14, 15
    vQ = 16
    vO = 32
    vS = 64
    vKf = 128
    vVf = 144
    vP = 176
    vTt = 192
    vB = 206
    vD = 208
    vPad = 236
    vSt, vWarm, vWd = 240, 241, 242
    vFw, vFr, vFlag, vCnt = 243, 244, 245, 246
    NV = 247
    sK, sV, sO, sR = 20, 24, 28, 48
    sWave, sHead, sQb, sG, sQg = 32, 33, 34, 35, 36
    sIter, sKnext, sVoffs, sM0V, sM0R = 37, 38, 39, 40, 41
    sT, sScale, sEps, sOoff = 42, 43, 44, 45
    sTmp, sTmp2 = 46, 47
    sExV = 52
    sRet = 54
    sMode, sAbsT = 56, 57
    sPre, sX = 58, 59
    sAlt = 60
    sMk = 64

    def vr(b, n): return f"v[{b}:{b+n-1}]"

    def wst_l():
        if not opt.ws: return []
        return ["s_memtime s[74:75]", "s_waitcnt lgkmcnt(0)", "s_sub_u32 s74, s74, s72", "s_mov_b32 m0, s70", "s_nop 0",
                f"v_writelane_b32 v{vSt}, s74, m0", "s_add_u32 s70, s70, 1"]
    def wst():
        for s in wst_l(): e(s)

    def rawdma_l(srd, soff, m0=None):
        r = [f"s_mov_b32 m0, s{sM0R if m0 is None else m0}", "s_nop 0"]
        for i in range(3):
            r.append(f"buffer_load_dwordx4 v{vL16}, s[{srd}:{srd+3}], s{soff} offen offset:{1024*i} lds")
        r.append("s_mov_b32 exec_hi, 0")
        r.append(f"buffer_load_dwordx4 v{vL16}, s[{srd}:{srd+3}], s{soff} offen offset:3072 lds")
        r.append("s_mov_b32 exec_hi, -1")
        return r
    def rawnext_l():
        return rawdma_l(sK, sKnext) + [f"s_add_u32 s{sKnext}, s{sKnext}, {2*CH}"]

    def vdma_l(m0=None, off=None, adv=True):
        m0 = sM0V if m0 is None else m0
        off = sVoffs if off is None else off
        r = [f"s_mov_b32 m0, s{m0}",
             f"s_mov_b64 exec, s[{sExV}:{sExV+1}]",
             f"buffer_load_dwordx4 v{vVoff}, s[{sV}:{sV+3}], s{off} offen lds",
             f"s_add_u32 m0, s{m0}, 128",
             f"s_add_u32 s{sM0V}, s{sM0V}, 0x4000" if adv else "s_nop 0",
             f"buffer_load_dwordx4 v{vVoff}, s[{sV}:{sV+3}], s{off} offen offset:896 lds",
             f"s_mov_b64 exec, -1"]
        if adv:
            r += [f"s_and_b32 s{sM0V}, s{sM0V}, 0xffff", f"s_add_u32 s{sVoffs}, s{sVoffs}, {CH}"]
        return r

    def vtwo(chunk):
        for half in range(2):
            e(f"s_add_u32 s{sTmp}, s{sM0V}, {chunk*16384 + half*8192}")
            e(f"s_add_u32 s{sTmp2}, s{sVoffs}, {chunk*CH + half*7168}")
            for t in vdma_l(m0=sTmp, off=sTmp2, adv=False): e(t)

    nat_reads = [f"ds_read2_b64 {vr(vP+4*i,4)}, v{vNat} offset0:{2*i} offset1:{2*i+1}" for i in range(3)] + \
                [f"ds_read_b64 {vr(vP+12,2)}, v{vNat} offset:48"]
    tr_reads = [f"ds_read_b64_tr_b16 {vr(vTt+2*m,2)}, v{vTr} offset:{8*m}" for m in range(7)]
    dots = [f"v_dot2_f32_bf16 v{vSS}, v{vP+i}, v{vP+i}, {'0' if i == 0 else 'v%d' % vSS}" for i in range(14)]
    grams = [f"v_mfma_f32_4x4x4_16b_bf16 {vr(vD,4)}, {vr(vP+2*m,2)}, {vr(vP+2*m,2)}, {'0' if m == 0 else vr(vD,4)}" for m in range(7)]
    sels = [f"v_cndmask_b32 v{vSS}, v{vD if i == 0 else vSS}, v{vD+1+i}, s[{sMk+2*i}:{sMk+2*i+1}]" for i in range(3)]
    norm = [f"v_sqrt_f32 v{vSS}, v{vSS}", f"v_add_f32 v{vSS}, s{sEps}, v{vSS}", f"v_rcp_f32 v{vR}, v{vSS}",
            f"v_cvt_pk_bf16_f32 v{vR}, v{vR}, v{vR}", f"v_and_b32 v{vB}, v{vR}, v{vMa}", f"v_and_b32 v{vB+1}, v{vR}, v{vMb}"]
    smalls = [f"v_mfma_f32_4x4x4_16b_bf16 {vr(vD+4*m,4)}, {vr(vTt+2*m,2)}, {vr(vB,2)}, 0" for m in range(7)]
    cvts = [f"v_cvt_pk_bf16_f32 v{vP+i}, v{vD+2*i}, v{vD+2*i+1}" for i in range(14)]
    writes = [f"ds_write_b128 v{vKw}, {vr(vP+4*i,4)} offset:{512*i}" for i in range(4)]

    e("s_load_dwordx4 s[4:7], s[0:1], 0")
    e("s_load_dwordx4 s[8:11], s[0:1], 16")
    e("s_load_dwordx2 s[12:13], s[0:1], 32")
    e("s_cmp_ge_u32 s2, 256")
    e("s_cbranch_scc1 L_end")
    if opt.ws:
        e("s_memtime s[72:73]"); e("s_memrealtime s[76:77]"); e("s_mov_b32 s70, 0")
    if opt.padto: e("s_memrealtime s[76:77]")
    e(f"v_lshrrev_b32 v{vT0}, 6, v0")
    e(f"v_and_b32 v{vLane}, 63, v0")
    e(f"v_readfirstlane_b32 s{sWave}, v{vT0}")
    c("head = (wg&7)*4 + (wg>>6), qblk = (wg>>3)&7")
    e("s_and_b32 s3, s2, 7")
    e("s_lshl_b32 s3, s3, 2")
    e(f"s_lshr_b32 s{sHead}, s2, 6")
    e(f"s_add_u32 s{sHead}, s{sHead}, s3")
    e(f"s_bfe_u32 s{sQb}, s2, 0x30003")
    e(f"s_mov_b32 s{sMode}, 0")
    e(f"v_lshlrev_b32 v{vL16}, 4, v{vLane}")
    c("vVoff = (lane>>3)*112 + (lane&7)*16 = lane*16 - (lane>>3)*16")
    e(f"v_lshrrev_b32 v{vT0}, 3, v{vLane}")
    e(f"v_sub_u32 v{vVoff}, v{vLane}, v{vT0}")
    e(f"v_lshlrev_b32 v{vVoff}, 4, v{vVoff}")
    lab("L_restart")
    e(f"s_lshr_b32 s{sG}, s{sWave}, 2")
    e(f"s_and_b32 s{sQg}, s{sWave}, 3")
    e(f"s_mul_i32 s3, s{sHead}, {HB}")
    e(f"s_mul_i32 s{sKnext}, s{sQg}, 3584")
    e(f"s_mul_i32 s{sTmp}, s{sQb}, {CH}")
    e(f"s_add_u32 s{sOoff}, s{sTmp}, s{sKnext}")
    e(f"s_mul_i32 s{sM0R}, s{sWave}, 3584")
    e(f"s_add_u32 s{sM0R}, s{sM0R}, {LDS_R}")
    for srd in (sR, sV, sK, sO):
        e(f"s_mov_b32 s{srd+2}, {HB}")
        e(f"s_mov_b32 s{srd+3}, 0x00020000")
    e(f"s_mov_b32 s{sExV}, 0x7f7f7f7f")
    e(f"s_mov_b32 s{sExV+1}, 0x7f7f7f7f")
    e(f"s_mul_i32 s{sVoffs}, s{sQg}, 1792")
    e(f"s_lshl_b32 s{sM0V}, s{sQg}, 11")
    e(f"s_mov_b32 s{sPre}, s{sG}")
    e(f"s_cmp_lg_u32 s{sG}, 0")
    e("s_waitcnt lgkmcnt(0)")
    e("s_cbranch_scc1 L_st1")
    c("group 0: its Q rows")
    e(f"s_add_u32 s{sR}, s4, s3")
    e(f"s_addc_u32 s{sR+1}, s5, 0")
    for t in rawdma_l(sR, sOoff): e(t)
    for srd, p in ((sK, 6), (sV, 8)):
        e(f"s_add_u32 s{srd}, s{p}, s3")
        e(f"s_addc_u32 s{srd+1}, s{p+1}, 0")
    e("s_branch L_st2")
    lab("L_st1")
    c("group 1: K0 rows, V0 tiles qg and qg + 4")
    for srd, p in ((sK, 6), (sV, 8)):
        e(f"s_add_u32 s{srd}, s{p}, s3")
        e(f"s_addc_u32 s{srd+1}, s{p+1}, 0")
    for t in rawdma_l(sK, sKnext): e(t)
    vtwo(0)
    lab("L_st2")
    wst()
    c("t load")
    e(f"s_and_b32 s{sTmp2}, s{sHead}, 14")
    e(f"s_lshl_b32 s{sTmp2}, s{sTmp2}, 1")
    e(f"s_load_dword s{sT}, s[10:11], s{sTmp2}")
    e(f"s_add_u32 s{sO}, s12, s3")
    e(f"s_addc_u32 s{sO+1}, s13, 0")
    c("next raw chunk: group 0 -> K1, group 1 -> K2")
    e(f"s_add_u32 s{sTmp2}, s{sG}, 1")
    e(f"s_mul_i32 s{sTmp2}, s{sTmp2}, {CH}")
    e(f"s_add_u32 s{sKnext}, s{sKnext}, s{sTmp2}")
    e(f"s_mul_i32 s{sTmp2}, s{sG}, 1792")
    e(f"s_add_u32 s{sOoff}, s{sOoff}, s{sTmp2}")
    e(f"s_mov_b32 s{sEps}, 0x358637bd")
    for i in range(3):
        e(f"s_mov_b32 s{sMk+2*i}, {hex(0x11111111 << (i+1))}")
        e(f"s_mov_b32 s{sMk+2*i+1}, s{sMk+2*i}")
    c("staging addresses")
    e(f"v_mov_b32 v{vT1}, s{sM0R}")
    e(f"v_mad_u32_u24 v{vNat}, v{vLane}, 56, v{vT1}")
    e(f"v_and_b32 v{vT0}, 3, v{vLane}")
    e(f"v_bfe_u32 v{vSS}, v{vLane}, 2, 2")
    e(f"v_lshl_add_u32 v{vSS}, v{vT0}, 2, v{vSS}")
    e(f"v_and_or_b32 v{vSS}, v{vLane}, 48, v{vSS}")
    e(f"v_mad_u32_u24 v{vTr}, v{vSS}, 56, v{vT1}")
    c("diag masks: j=lane&3")
    e(f"v_lshlrev_b32 v{vSS}, 4, v{vT0}")
    e(f"v_mov_b32 v{vMa}, 0xffff")
    e(f"v_mov_b32 v{vMb}, 0")
    e(f"v_lshlrev_b64 {vr(vMa,2)}, v{vSS}, {vr(vMa,2)}")
    c("frag write address: (lane>>5)*2048 + (lane&31)*16 + qg*4096 + area")
    e(f"v_lshrrev_b32 v{vR}, 5, v{vLane}")
    e(f"v_mul_u32_u24 v{vKw}, 1536, v{vR}")
    e(f"v_add_u32 v{vKw}, v{vKw}, v{vL16}")
    e(f"s_lshl_b32 s{sTmp}, s{sQg}, 12")
    e(f"s_cmp_eq_u32 s{sG}, 0")
    e(f"s_cselect_b32 s{sTmp2}, {LDS_Q - LDS_K}, 0")
    e(f"s_add_u32 s{sTmp2}, s{sTmp2}, s{sTmp}")
    e(f"s_add_u32 s{sTmp2}, s{sTmp2}, {LDS_K}")
    e(f"v_add_u32 v{vKw}, s{sTmp2}, v{vKw}")
    c("ones pads in the V ring: lane -> slot lane>>4, pair lane&15")
    e(f"v_lshrrev_b32 v{vT1}, 4, v{vLane}")
    e(f"v_lshlrev_b32 v{vT1}, 14, v{vT1}")
    e(f"v_and_b32 v{vKr}, 15, v{vLane}")
    e(f"v_lshl_add_u32 v{vT1}, v{vKr}, 7, v{vT1}")
    e(f"s_lshl_b32 s{sTmp}, s{sWave}, 11")
    e(f"v_add_u32 v{vT1}, s{sTmp}, v{vT1}")
    e(f"v_mov_b32 v{vD}, 0x3f80")
    e(f"v_mov_b32 v{vD+1}, 0")
    e(f"v_mov_b32 v{vD+2}, 0x3f80")
    e(f"v_mov_b32 v{vD+3}, 0")
    e(f"ds_write_b128 v{vT1}, {vr(vD,4)} offset:112")
    c("progress flags: one word per wave")
    e(f"s_lshl_b32 s{sTmp}, s{sWave}, 2")
    e(f"s_add_u32 s{sTmp}, s{sTmp}, {LDS_F}")
    e(f"v_mov_b32 v{vFw}, s{sTmp}")
    e(f"ds_write_b32 v{vFw}, v{vD+1}")
    c("V transpose-read address: h'=lane>>5, g1=(lane>>4)&1, r=(lane>>2)&3, c=lane&3; ci=4*g1+c; pi=(ci>>1)+4*(ci&1)")
    e(f"v_bfe_u32 v{vSS}, v{vLane}, 4, 1")
    e(f"v_lshlrev_b32 v{vVr}, 9, v{vR}")
    e(f"v_bfe_u32 v{vT1}, v{vLane}, 3, 1")
    e(f"v_lshl_add_u32 v{vVr}, v{vT1}, 7, v{vVr}")
    e(f"v_bfe_u32 v{vT1}, v{vLane}, 2, 1")
    e(f"v_bfe_u32 v{vKr}, v{vLane}, 1, 1")
    e(f"v_lshl_add_u32 v{vKr}, v{vSS}, 1, v{vKr}")
    e(f"v_and_b32 v{vT0}, 1, v{vLane}")
    e(f"v_lshl_add_u32 v{vKr}, v{vT0}, 2, v{vKr}")
    e(f"v_cmp_eq_u32 vcc, 7, v{vKr}")
    e(f"v_mul_u32_u24 v{vT0}, 7, v{vT1}")
    e(f"v_add_u32 v{vKr}, v{vKr}, v{vT0}")
    e(f"v_add_u32 v{vT1}, 14, v{vT1}")
    e(f"v_cndmask_b32 v{vKr}, v{vKr}, v{vT1}, vcc")
    e(f"v_lshl_add_u32 v{vVr}, v{vKr}, 3, v{vVr}")
    e(f"s_lshl_b32 s{sTmp2}, s{sG}, 13")
    e(f"v_add_u32 v{vVr}, s{sTmp2}, v{vVr}")
    e(f"s_add_u32 s{sTmp2}, s{sTmp2}, {LDS_K}")
    e(f"v_add_u32 v{vKr}, s{sTmp2}, v{vL16}")
    c("output offset: (lane&31)*56 + h*32")
    e(f"v_and_b32 v{vOoff}, 31, v{vLane}")
    e(f"v_mul_u32_u24 v{vOoff}, 56, v{vOoff}")
    e(f"v_lshl_add_u32 v{vOoff}, v{vR}, 5, v{vOoff}")
    e(f"v_and_b32 v{vFr}, 7, v{vLane}")
    e(f"v_lshlrev_b32 v{vFr}, 2, v{vFr}")
    e(f"v_add_u32 v{vFr}, {LDS_F}, v{vFr}")
    e(f"v_mov_b32 v{vCnt}, 1")
    e(f"v_mov_b32 v{vIdx}, 0xdddddddd")
    for j in range(0, 32, 2): e(f"v_mov_b64 {vr(vO+j,2)}, 0")
    for j in range(8, 16, 2): e(f"v_mov_b64 {vr(vS+48+j,2)}, 0")
    for j in range(4, 8, 2): e(f"v_mov_b64 {vr(vVf+24+j,2)}, 0")
    c("t -> f32, c = t*log2e")
    e("s_waitcnt lgkmcnt(0)")
    e(f"s_bitcmp1_b32 s{sHead}, 0")
    e(f"s_cselect_b32 s{sTmp2}, 0, 16")
    e(f"s_lshl_b32 s{sT}, s{sT}, s{sTmp2}")
    e(f"s_and_b32 s{sT}, s{sT}, 0xffff0000")
    e(f"v_mov_b32 v{vT0}, 0x3fb8aa3b")
    e(f"v_mul_f32 v{vT0}, s{sT}, v{vT0}")
    e(f"s_and_b32 s{sAbsT}, s{sT}, 0x7fffffff")
    e(f"v_readfirstlane_b32 s{sScale}, v{vT0}")
    c("the shift |t|*log2e bounds every logit; it is used only while it cannot underflow a row (|t| <= 16)")
    e(f"s_cmp_gt_u32 s{sAbsT}, {'0x41800000' if not opt.force_fallback else '0'}")
    e(f"s_cselect_b32 s{sAbsT}, 1, 0")
    e(f"s_or_b32 s{sTmp2}, s{sScale}, 0x80000000")
    e(f"s_lshr_b32 s{sTmp2}, s{sTmp2}, 16")
    e(f"s_cmp_eq_u32 s{sAbsT}, 0")
    e(f"s_cselect_b32 s{sTmp2}, s{sTmp2}, 0")
    e(f"s_cmp_eq_u32 s{sG}, 0")
    e(f"s_cselect_b32 s{sTmp2}, s{sTmp2}, 0x3f803f80")
    e(f"s_cselect_b32 s{sTmp}, 0, 0x3f803f80")
    e(f"s_cselect_b32 s{sScale}, s{sScale}, 1.0")
    e(f"v_mov_b32 v{vP+14}, s{sTmp2}")
    e(f"v_mov_b32 v{vP+15}, s{sTmp}")
    e(f"s_mov_b32 s{sIter}, 0")
    e(f"s_mov_b32 s{sX}, 0x4000")
    wst()
    e(f"s_lshl_b32 s{sTmp}, s{sQg}, 12")
    e(f"s_lshl_b32 s{sTmp2}, s{sG}, 11")
    e(f"s_add_u32 s{sTmp}, s{sTmp}, s{sTmp2}")
    e(f"s_add_u32 s{sTmp}, s{sTmp}, {LDS_Q}")
    e(f"v_add_u32 v{vT1}, s{sTmp}, v{vL16}")
    e(f"v_xor_b32 v{vT0}, 0x800, v{vT1}")
    e(f"s_cmp_lg_u32 s{sG}, 0")
    e("s_cbranch_scc1 L_st3")
    c("group 0: K1 rows into the still unused K slot 2, V1")
    e(f"s_lshl_b32 s{sAlt}, s{sQg}, 12")
    e(f"s_add_u32 s{sAlt}, s{sAlt}, {LDS_K + 32768}")
    for t in rawdma_l(sK, sKnext, sAlt): e(t)
    e(f"s_add_u32 s{sKnext}, s{sKnext}, {2*CH}")
    e(f"s_sub_u32 s{sAlt}, s{sM0R}, s{sAlt}")
    vtwo(1)
    e(f"s_waitcnt vmcnt(8)")
    wst()
    e(f"s_call_b64 s[{sRet}:{sRet+1}], L_prep")
    wst()
    e(f"s_mov_b32 s{sScale}, 1.0")
    e(f"v_subrev_u32 v{vNat}, s{sAlt}, v{vNat}")
    e(f"v_subrev_u32 v{vTr}, s{sAlt}, v{vTr}")
    e(f"s_waitcnt lgkmcnt(0)")
    e("s_branch L_st4")
    lab("L_st3")
    e(f"s_waitcnt vmcnt(4)")
    wst()
    e(f"s_call_b64 s[{sRet}:{sRet+1}], L_prep")
    wst()
    e(f"s_mov_b32 s{sPre}, 0")
    e(f"s_waitcnt vmcnt(4) lgkmcnt(0)")
    lab("L_st4")
    wst()
    e("s_barrier")

    def kread(tile, buf):
        o = tile * 2048
        return [f"ds_read_b128 {vr(vKf+8*buf,4)}, v{vKr} offset:{o}",
                f"ds_read_b128 {vr(vKf+8*buf+4,4)}, v{vKr} offset:{o+1024}"]
    def vread(tile, buf):
        o = tile * 2048
        return [f"ds_read_b64_tr_b16 {vr(vVf+8*buf+4*s+2*u,2)}, v{vVr} offset:{o+s*1024+u*256}" for s in range(2) for u in range(2)]
    def m1(T):
        return f"v_mfma_f32_32x32x16_bf16 {vr(vS+16*(T%4),16)}, {vr(vKf+8*((T//2)%2),4)}, {vr(vQ+8*(T%2),4)}, 0"
    def m2(T):
        return f"v_mfma_f32_32x32x16_bf16 {vr(vS+16*(T%4),16)}, {vr(vKf+8*((T//2)%2)+4,4)}, {vr(vQ+8*(T%2)+4,4)}, {vr(vS+16*(T%4),16)}"
    def sm(T, s):
        return f"v_smfmac_f32_32x32x32_bf16 {vr(vO+16*(T%2),16)}, {vr(vVf+8*((T//2)%4)+4*s,4)}, {vr(vS+16*(T%4)+8*s,8)}, v{vIdx}"
    def ex(T, j):
        r = vS + 16*(T%4) + j
        return f"v_exp_f32 v{r}, v{r}"

    c("Q fragments and the first K / V fragments")
    e(f"ds_read_b128 {vr(vQ,4)}, v{vT0}")
    e(kread(0, 0)[0])
    e(f"ds_read_b128 {vr(vQ+4,4)}, v{vT0} offset:1024")
    e(kread(0, 0)[1])
    e(f"ds_read_b128 {vr(vQ+8,4)}, v{vT1}")
    e(f"ds_read_b128 {vr(vQ+12,4)}, v{vT1} offset:1024")
    for s in kread(1, 1): e(s)
    for s in vread(0, 0): e(s)
    e(f"v_mov_b32 v{vP+14}, 0x3f803f80")
    e(f"v_mov_b32 v{vP+15}, 0x3f803f80")
    c("own V tile from now on: chunk 2 next")
    e(f"s_mul_i32 s{sVoffs}, s{sWave}, 1792")
    e(f"s_add_u32 s{sVoffs}, s{sVoffs}, {2*CH}")
    e(f"s_lshl_b32 s{sM0V}, s{sWave}, 11")
    e(f"s_add_u32 s{sM0V}, s{sM0V}, 0x8000")
    e(f"s_cmp_lg_u32 s{sAbsT}, 0")
    e("s_cbranch_scc1 L_special")
    lab("L_fill")
    e("s_waitcnt lgkmcnt(10)")
    e(m1(0))
    e("s_waitcnt lgkmcnt(8)")
    e(m2(0))
    e("s_waitcnt lgkmcnt(6)")
    e(m1(1)); e(m2(1))
    for s in vread(1, 1): e(s)
    e(f"s_cmp_lg_u32 s{sG}, 0")
    e("s_cbranch_scc1 L_fill2")
    c("group 0: normalise K1, publish chunk 1")
    e(f"s_setprio {opt.p_start}")
    e(f"s_waitcnt vmcnt(4)")
    e(f"s_call_b64 s[{sRet}:{sRet+1}], L_prep")
    e(f"v_add_u32 v{vNat}, s{sAlt}, v{vNat}")
    e(f"v_add_u32 v{vTr}, s{sAlt}, v{vTr}")
    e(f"s_waitcnt vmcnt(0)")
    e(f"ds_write_b32 v{vFw}, v{vCnt}")
    for t in vdma_l(): e(t)
    wst()
    e("s_branch L_B")
    lab("L_fill2")
    e(f"ds_write_b32 v{vFw}, v{vCnt}")
    for t in vdma_l(): e(t)
    wst()

    def build_half(name, pats):
        ops = []
        q = dict(n=list(nat_reads), t=list(tr_reads), g=list(grams), x=list(sels), s=list(norm), m=list(smalls), c=list(cvts), W=list(writes))
        cnt = dict(n=0, t=0, g=0, x=0, s=0, m=0, c=0, W=0, X=0)
        def add(t, lid=None, needs=()): ops.append((t, lid, list(needs)))
        for T in range(8):
            j = T // 2
            if opt.ws and T in opt.stampT:
                for s in wst_l(): add(s)
            if T % 2 == 0:
                rd_k = kread((j + 2) % 4, j % 2); rd_v = vread((j + 2) % 4, (j + 2) % 4)
                ki = vi = 0
            ei = 0
            for ch in pats[T]:
                if ch == 'e': add(ex(T, ei)); ei += 1
                elif ch == 'A':
                    add(sm(T - 1, 1), needs=[('v', ((T-1)//2), 2), ('v', ((T-1)//2), 3)])
                elif ch == 'B': add(m1(T + 2), needs=[('k', j + 1, 0)])
                elif ch == 'C': add(m2(T + 2), needs=[('k', j + 1, 1)])
                elif ch == 'D': add(sm(T, 0), needs=[('v', j, 0), ('v', j, 1)])
                elif ch == 'k': add(rd_k[ki], lid=('k', j + 2, ki)); ki += 1
                elif ch == 'v': add(rd_v[vi], lid=('v', j + 2, vi)); vi += 1
                elif ch == 'w': add("WAIT")
                elif ch == 'n': add(q['n'][cnt['n']], lid=('n', 0, cnt['n'])); cnt['n'] += 1
                elif ch == 't': add(q['t'][cnt['t']], lid=('t', 0, cnt['t'])); cnt['t'] += 1
                elif ch in '0123':
                    if opt.prio: add(f"s_setprio {opt.pmap[int(ch)]}")
                elif ch == 'g': add(q['g'][cnt['g']], needs=[('n', 0, cnt['g'] // 2)]); cnt['g'] += 1
                elif ch == 'x': assert cnt['g'] == 7; add(q['x'][cnt['x']]); cnt['x'] += 1
                elif ch == 's': assert cnt['x'] == 3; add(q['s'][cnt['s']]); cnt['s'] += 1
                elif ch == 'm': assert cnt['s'] == 6; add(q['m'][cnt['m']], needs=[('t', 0, cnt['m'])]); cnt['m'] += 1
                elif ch == 'c': assert cnt['m'] > cnt['c'] // 2; add(q['c'][cnt['c']]); cnt['c'] += 1
                elif ch == 'W':
                    assert cnt['c'] >= min(14, 4*cnt['W'] + 4)
                    add(q['W'][cnt['W']], lid=('W', 0, cnt['W'])); cnt['W'] += 1
                    if cnt['W'] == 4: pending_xor = True
                elif ch == 'X':
                    l = rawnext_l()
                    parts = [l[0:3], l[3:4], l[4:5], l[5:]]
                    for t in parts[cnt['X']]: add(t)
                    cnt['X'] += 1
                elif ch == 'Y': add("s_waitcnt vmcnt(2)")
                elif ch == 'V':
                    add(f"s_mov_b32 m0, s{sM0V}")
                    add(f"s_mov_b64 exec, s[{sExV}:{sExV+1}]")
                    add(f"buffer_load_dwordx4 v{vVoff}, s[{sV}:{sV+3}], s{sVoffs} offen lds")
                    add(f"s_mov_b64 exec, -1")
                elif ch == 'U':
                    add(f"s_add_u32 m0, s{sM0V}, 128")
                    add(f"s_mov_b64 exec, s[{sExV}:{sExV+1}]")
                    add(f"buffer_load_dwordx4 v{vVoff}, s[{sV}:{sV+3}], s{sVoffs} offen offset:896 lds")
                    add(f"s_mov_b64 exec, -1")
                elif ch == 'T':
                    add(f"s_cmp_eq_u32 s{sIter}, 7"); add("s_cbranch_scc1 L_tail")
                elif ch == 'y': add("s_waitcnt vmcnt(0)")
                elif ch == 'f': add(f"ds_read_b32 v{vFlag}, v{vFr}", lid=('f', 0, 0))
                elif ch == 'F':
                    add(f"v_cmp_lt_u32 vcc, v{vFlag}, v{vCnt}", needs=[('f', 0, 0)])
                    add(f"v_xor_b32 v{vKr}, s{sX}, v{vKr}")
                    add(f"v_xor_b32 v{vVr}, s{sX}, v{vVr}")
                    add(f"s_cbranch_vccnz L_spin{name}")
                    add(f"L_back{name}:")
                    add(f"v_add_u32 v{vCnt}, 1, v{vCnt}")
                    add(f"s_xor_b32 s{sX}, s{sX}, 0x8000")
                elif ch == 'i':
                    it = [f"s_add_u32 s{sIter}, s{sIter}, 1", f"s_cmp_ge_u32 s{sIter}, 5",
                          f"s_cselect_b32 s{sV+2}, 0, s{sV+2}", f"s_mov_b32 s{sK+2}, s{sV+2}"]
                    add(it[cnt.setdefault('i', 0)]); cnt['i'] += 1
                elif ch == 'a':
                    adv = [f"s_add_u32 s{sM0V}, s{sM0V}, 0x4000", f"s_and_b32 s{sM0V}, s{sM0V}, 0xffff",
                           f"s_add_u32 s{sVoffs}, s{sVoffs}, {CH}"]
                    add(adv[cnt.setdefault('a', 0)]); cnt['a'] += 1
                elif ch == 'P':
                    add(f"ds_write_b32 v{vFw}, v{vCnt}", lid=('P', 0, 0))
                    if name == 'A':
                        assert cnt['W'] == 4
                        add(f"v_xor_b32 v{vKw}, 0x8000, v{vKw}")
                else: raise ValueError(ch)
            assert ei == 16, (name, T, ei)
            if T % 2 == 1: assert ki == 2 and vi == 4
        if name == 'A':
            assert cnt == dict(n=4, t=7, g=7, x=3, s=6, m=7, c=14, W=4, X=0, a=3, i=4), cnt
        return ops

    halves = {'A': build_half('A', opt.patA), 'B': build_half('B', opt.patB)}
    def shift(ops):
        out = []
        for t, lid, needs in ops:
            if lid is not None:
                lid = (lid[0], lid[1] - 4, lid[2]) if lid[0] in 'kv' else (lid[0], -1, lid[2])
            out.append((t, lid, []))
        return out
    def resolve(name):
        ops = halves[name]
        res = {}
        for pred in 'AB':
            seq = shift(halves[pred]) + ops
            base = len(seq) - len(ops)
            pos = {lid: i for i, (t, lid, n) in enumerate(seq) if lid is not None}
            waits = [i for i in range(base, len(seq)) if seq[i][0] == "WAIT"]
            covered = -1
            covered = pos[('k', 0, 1)]
            for i in range(base, len(seq)):
                t, lid, needs = seq[i]
                if t == "WAIT":
                    nxt = min([w for w in waits if w > i] + [len(seq)])
                    need = [pos[x] for k in range(i, nxt) for x in seq[k][2] if x in pos]
                    tgt = max(need + [covered])
                    assert tgt < i, ("wait placed before its load", name, seq[tgt][0])
                    n = sum(1 for k in range(tgt + 1, i) if seq[k][1] is not None)
                    res[i - base] = min(res.get(i - base, 15), n)
                    covered = tgt
                for x in needs:
                    if x in pos: assert pos[x] <= covered, ("uncovered", name, t, x)
                    else: assert x[0] == 'v' and x[1] < -2 or x[1] <= -2, x
        return [(f"s_waitcnt lgkmcnt({res[i]})" if t == "WAIT" else t) for i, (t, lid, n) in enumerate(ops)]

    L.append(".p2align 3")
    lab("L_A")
    for t in resolve('A'):
        (L.append(t) if t.endswith(":") else e(t))
    lab("L_B")
    for t in resolve('B'):
        (L.append(t) if t.endswith(":") else e(t))
    e(f"s_cmp_lt_u32 s{sIter}, 6")
    e("s_cbranch_scc1 L_A")
    e("s_branch L_B")
    lab("L_tail")
    c("last two tiles; local block 0 goes to the partner wave, local block 1 is finished here")
    e(f"s_lshl_b32 s{sTmp}, s{sWave}, 12")
    e(f"s_add_u32 s{sTmp}, s{sTmp}, {LDS_K}")
    e(f"v_add_u32 v{vT0}, s{sTmp}, v{vL16}")
    e(f"v_xor_b32 v{vT1}, 0x4000, v{vT0}")
    no = 0
    for T in (6, 7):
        ei = 0
        for ch in opt.patT[T - 6]:
            if ch == 'e': e(ex(T, ei)); ei += 1
            elif ch == 'A': e(sm(T - 1, 1))
            elif ch == 'D': e(sm(T, 0))
            elif ch in '0123':
                if opt.prio: e(f"s_setprio {opt.pmap[int(ch)]}")
            elif ch == 'O':
                e(f"ds_write_b128 v{vT0}, {vr(vO+4*no,4)} offset:{1024*no}"); no += 1
        assert ei == 16
    assert no == 4
    e("s_nop 0")
    e(sm(7, 1))
    wst()
    e("s_waitcnt lgkmcnt(0)")
    e("s_barrier")
    vF = vO + 16
    for j in (3, 0, 1, 2):
        e(f"ds_read_b128 {vr(vD+4*j,4)}, v{vT1} offset:{1024*j}")
    e("s_nop 4")
    e("s_waitcnt lgkmcnt(3)")
    e(f"v_pk_add_f32 {vr(vF+12,2)}, {vr(vF+12,2)}, {vr(vD+12,2)}")
    e(f"v_pk_add_f32 {vr(vF+14,2)}, {vr(vF+14,2)}, {vr(vD+14,2)}")
    e(f"v_mov_b32 v{vT0}, v{vF+12}")
    e(f"v_mov_b32 v{vT1}, v{vF+12}")
    e("s_waitcnt lgkmcnt(2)")
    e(f"v_pk_add_f32 {vr(vF,2)}, {vr(vF,2)}, {vr(vD,2)}")
    e(f"v_permlane32_swap_b32 v{vT0}, v{vT1}")
    e(f"v_pk_add_f32 {vr(vF+2,2)}, {vr(vF+2,2)}, {vr(vD+2,2)}")
    e(f"v_rcp_f32 v{vB}, v{vT1}")
    e("s_waitcnt lgkmcnt(0)")
    for j in range(4, 12, 2):
        e(f"v_pk_add_f32 {vr(vF+j,2)}, {vr(vF+j,2)}, {vr(vD+j,2)}")
    for j in range(8):
        e(f"v_pk_mul_f32 {vr(vF+2*j,2)}, {vr(vF+2*j,2)}, {vr(vB,2)} op_sel_hi:[1,0]")
    for j in range(8):
        e(f"v_cvt_pk_bf16_f32 v{vP+j}, v{vF+2*j}, v{vF+2*j+1}")
    e(f"buffer_store_dwordx4 {vr(vP,4)}, v{vOoff}, s[{sO}:{sO+3}], s{sOoff} offen{opt.st_flags}")
    e(f"buffer_store_dwordx2 {vr(vP+4,2)}, v{vOoff}, s[{sO}:{sO+3}], s{sOoff} offen offset:16{opt.st_flags}")
    e("s_mov_b32 exec_hi, 0")
    e(f"buffer_store_dwordx2 {vr(vP+6,2)}, v{vOoff}, s[{sO}:{sO+3}], s{sOoff} offen offset:24{opt.st_flags}")
    if opt.ws:
        e("s_mov_b64 exec, -1")
        wst()
        e("s_waitcnt vmcnt(0)")
        wst()
        e("s_memrealtime s[78:79]")
        e("s_load_dwordx2 s[80:81], s[0:1], 48")
        e("s_waitcnt lgkmcnt(0)")
        e("s_mov_b32 s82, 0x1000000"); e("s_mov_b32 s83, 0x00020000")
        e(f"v_writelane_b32 v{vSt}, s70, 31")
        e(f"v_writelane_b32 v{vSt}, s76, 30")
        e(f"v_writelane_b32 v{vSt}, s78, 29")
        e(f"s_lshl_b32 s3, s2, 3"); e(f"s_add_u32 s3, s3, s{sWave}"); e("s_lshl_b32 s3, s3, 7")
        e(f"v_lshlrev_b32 v1, 2, v{vLane}")
        e("s_mov_b32 exec_hi, 0")
        e(f"buffer_store_dword v{vSt}, v1, s[80:83], s3 offen")
    if opt.padto:
        e("s_waitcnt vmcnt(0)")
        lab("L_pspin")
        e("s_memrealtime s[78:79]")
        e("s_waitcnt lgkmcnt(0)")
        e("s_sub_u32 s84, s78, s76")
        e(f"s_cmp_lt_u32 s84, {opt.padto}")
        e("s_cbranch_scc1 L_pspin")
    lab("L_end")
    e("s_endpgm")

    for name in 'AB':
        lab(f"L_spin{name}")
        c("some wave has not yet published the next chunk: wait for it")
        e(f"s_sleep {opt.sleep}")
        e(f"ds_read_b32 v{vFlag}, v{vFr}")
        e("s_waitcnt lgkmcnt(0)")
        e(f"v_cmp_lt_u32 vcc, v{vFlag}, v{vCnt}")
        e(f"s_cbranch_vccnz L_spin{name}")
        e(f"s_branch L_back{name}")

    lab("L_prep")
    for s in nat_reads + tr_reads: e(s)
    for m in range(7):
        if m % 2 == 0: e(f"s_waitcnt lgkmcnt({10 - m//2})")
        if m > 0: e("s_nop 0" if m % 2 == 0 else "s_nop 1")
        e(grams[m])
    e(f"s_cmp_eq_u32 s{sPre}, 0")
    e("s_cbranch_scc1 L_prep1")
    e("s_waitcnt lgkmcnt(0)")
    for t in rawnext_l(): e(t)
    lab("L_prep1")
    e("s_nop 2")
    for t in sels: e(t)
    e(norm[0]); e("s_nop 0"); e(norm[1]); e(norm[2]); e("s_nop 0")
    e(f"v_mul_f32 v{vR}, s{sScale}, v{vR}")
    for s in norm[3:]: e(s)
    e("s_waitcnt lgkmcnt(0)")
    e("s_nop 0")
    for s in smalls: e(s)
    for i in range(14):
        e(cvts[i])
        if i % 4 == 3: e(writes[i // 4])
    e(writes[3])
    e(f"v_xor_b32 v{vKw}, 0x8000, v{vKw}")
    e(f"s_setpc_b64 s[{sRet}:{sRet+1}]")

    lab("L_special")
    e(f"s_cmp_eq_u32 s{sMode}, 0")
    e("s_cbranch_scc1 L_maxpass")
    c("second pass: put -max into the pad slots of the Q fragments (lanes 32..63 of registers 6, 7)")
    e("s_waitcnt lgkmcnt(0)")
    e("s_mov_b32 exec_lo, 0")
    e(f"v_mov_b32 v{vQ+6}, v{vPad}")
    e(f"v_mov_b32 v{vQ+7}, v{vPad+1}")
    e(f"v_mov_b32 v{vQ+14}, v{vPad+2}")
    e(f"v_mov_b32 v{vQ+15}, v{vPad+3}")
    e("s_mov_b32 exec_lo, -1")
    e("s_nop 1")
    e("s_branch L_fill")
    lab("L_maxpass")
    mx = [vPad, vPad + 2]
    e(f"v_mov_b32 v{mx[0]}, 0xff800000")
    e(f"v_mov_b32 v{mx[1]}, 0xff800000")
    lab("L_mloop")
    c("chunk sIter is in LDS; group (sIter & 1) normalises chunk sIter + 1")
    e(f"s_add_u32 s{sTmp}, s{sIter}, s{sG}")
    e(f"s_bitcmp1_b32 s{sTmp}, 0")
    e("s_cbranch_scc1 L_mnoprep")
    e(f"s_cmp_eq_u32 s{sIter}, 7")
    e("s_cbranch_scc1 L_mnoprep")
    e(f"s_cmp_lt_u32 s{sIter}, 2")
    e("s_cbranch_scc1 L_mhave")
    for t in rawnext_l(): e(t)
    lab("L_mhave")
    e(f"s_waitcnt vmcnt(0) lgkmcnt(0)")
    e(f"s_call_b64 s[{sRet}:{sRet+1}], L_prep")
    e(f"s_cmp_lg_u32 s{sIter}, 0")
    e("s_cbranch_scc1 L_mnoprep")
    e(f"v_add_u32 v{vNat}, s{sAlt}, v{vNat}")
    e(f"v_add_u32 v{vTr}, s{sAlt}, v{vTr}")
    lab("L_mnoprep")
    for j in range(4):
        for s in kread(j, 0): e(s)
        e("s_waitcnt lgkmcnt(0)")
        e(m1(0)); e(m2(0)); e(m1(1)); e(m2(1))
        e("s_nop 15")
        for b in range(2):
            for i in range(0, 16, 2):
                e(f"v_max3_f32 v{mx[b]}, v{vS+16*b+i}, v{vS+16*b+i+1}, v{mx[b]}")
    e("s_barrier")
    e(f"v_xor_b32 v{vKr}, s{sX}, v{vKr}")
    e(f"s_xor_b32 s{sX}, s{sX}, 0x8000")
    e(f"s_add_u32 s{sIter}, s{sIter}, 1")
    e(f"s_cmp_lt_u32 s{sIter}, 8")
    e("s_cbranch_scc1 L_mloop")
    c("combine the two lane halves and the partner wave (whose local blocks are swapped)")
    for b in range(2):
        e(f"v_mov_b32 v{vT0}, v{mx[b]}")
        e("s_nop 1")
        e(f"v_permlane32_swap_b32 v{mx[b]}, v{vT0}")
        e("s_nop 1")
        e(f"v_max_f32 v{mx[b]}, v{mx[b]}, v{vT0}")
    e(f"s_lshl_b32 s{sTmp}, s{sWave}, 12")
    e(f"s_add_u32 s{sTmp}, s{sTmp}, {LDS_K}")
    e(f"v_add_u32 v{vT0}, s{sTmp}, v{vL16}")
    e(f"v_xor_b32 v{vT1}, 0x4000, v{vT0}")
    e("s_waitcnt vmcnt(0) lgkmcnt(0)")
    e(f"ds_write_b32 v{vT0}, v{mx[0]}")
    e(f"ds_write_b32 v{vT0}, v{mx[1]} offset:4")
    e("s_waitcnt lgkmcnt(0)")
    e("s_barrier")
    e(f"ds_read_b64 {vr(vD,2)}, v{vT1}")
    e("s_waitcnt lgkmcnt(0)")
    e("s_barrier")
    e(f"s_mov_b32 s{sTmp}, 0xffff0000")
    for b in range(2):
        m = mx[b]
        e(f"v_max_f32 v{m}, v{m}, v{vD+1-b}")
        c("split -max into three bf16 parts")
        e(f"v_sub_f32 v{m}, 0, v{m}")
        e(f"v_and_b32 v{vT0}, s{sTmp}, v{m}")
        e(f"v_sub_f32 v{m}, v{m}, v{vT0}")
        e(f"v_and_b32 v{vT1}, s{sTmp}, v{m}")
        e(f"v_sub_f32 v{m}, v{m}, v{vT1}")
        e(f"v_lshrrev_b32 v{m+1}, 16, v{m}")
        e(f"v_lshrrev_b32 v{vT0}, 16, v{vT0}")
        e(f"v_or_b32 v{m}, v{vT0}, v{vT1}")
    e(f"s_mov_b32 s{sMode}, 1")
    e("s_branch L_restart")

    txt = HEADER + f"; @launch grid=(256,1,1) block=(512,1,1) lds={LDS_TOTAL}\n"
    txt += """.amdgcn_target "amdgcn-amd-amdhsa--gfx950"
.text
.globl standalone__qk_norm__prompt_kernel
.p2align 8
.type standalone__qk_norm__prompt_kernel,@function
standalone__qk_norm__prompt_kernel:
"""
    txt += "\n".join(L) + "\n"
    txt += f""".section .rodata,"a"
.p2align 6
.amdhsa_kernel standalone__qk_norm__prompt_kernel
  .amdhsa_next_free_vgpr {NV}
  .amdhsa_next_free_sgpr 96
  .amdhsa_accum_offset {(NV+3)//4*4}
  .amdhsa_group_segment_fixed_size 0
  .amdhsa_kernarg_size 56
  .amdhsa_user_sgpr_count 2
  .amdhsa_user_sgpr_kernarg_segment_ptr 1
  .amdhsa_system_sgpr_workgroup_id_x 1
.end_amdhsa_kernel
"""
    return txt

if __name__ == "__main__":
    opt = Opt()
    out = sys.argv[1]
    for a in sys.argv[2:]:
        k, v = a.split("=", 1)
        assert hasattr(opt, k), k
        setattr(opt, k, eval(v))
    open(out, "w").write(gen(opt))
```

```python
import sys, re

HEADER = """; Kernarg layout for this problem (56 bytes, ptrs only, base s[0:1]):
"""

PAT_B = [
 "eeAw3keeeeBkeeeeCveeeeDvee",
 "eeAveeeeBveeeeCXXeeeeDXXee",
 "eeAwkeeeeBkeeeeCveeeeDvee",
 "eeA2veeeeBveeeeCfeeeeDee",
 "eeAwFkeeeeBkeeeeCveeeeDvee",
 "eeAveeeeByveeeeCVeeeeDUeeT",
 "eeAw1keeeeBakeeeeCaveeeeDaivee",
 "eeAiiveeeeBiveeeeC0eeeeDPee",
]
PAT_A = [
 "eeAw3keeeeBkeeeeCveeeeDvee",
 "eeAveeeeBveeeeCYnneeeeDnnee",
 "eeAwkteeegeBkteeegeCvteeegeDvtee",
 "egeA2vteeegeBvteeegeCfteeegeDee",
 "eeAwFkexexexeBkesesesesCvesseemeDvee",
 "emeAveecemeByvececemeCVececemeDUecec",
 "emeAw1kececemeBakWececeeCavWeceecceDaivee",
 "eeAiivWeeeeBivWeeeeC0eeeeDPee",
]
PAT_T = [
 "eeA1eeeeeeeeDeeeeee",
 "eeAeeee0eeeeDeeeOeOeOeO",
]

class Opt:
    ws = False
    patT = PAT_T
    st_flags = ''
    st_lin = True
    g1prio = 3
    padto = 0
    force_fallback = False
    patA = PAT_A
    patB = PAT_B
    prio = True
    pmap = '0123'
    p_start = 3
    sleep = 1
    stampT = (4,)

def gen(opt):
    L = []
    def e(s): L.append("    " + s)
    def lab(s): L.append(s + ":")
    def c(s): L.append("    ; " + s)

    HB = 114688
    CH = 14336
    LDS_V = 0
    LDS_K = 65536
    LDS_Q = LDS_K + 3*16384
    LDS_R = 131072
    LDS_F = LDS_R + 8*3584
    LDS_TOTAL = LDS_F + 256
    vLane, vL16, vVoff, vKw, vKr, vVr, vIdx, vT0 = 0, 1, 2, 3, 4, 5, 6, 7
    vNat, vTr, vMa, vMb, vOoff, vT1, vSS, vR = 8, 9, 10, 11, 12, 13, 14, 15
    vQ = 16
    vO = 32
    vS = 64
    vKf = 128
    vVf = 144
    vP = 176
    vTt = 192
    vB = 206
    vD = 208
    vPad = 236
    vSt, vWarm, vWd = 240, 241, 242
    vFw, vFr, vFlag, vCnt = 243, 244, 245, 246
    NV = 247
    sK, sV, sO, sR = 20, 24, 28, 48
    sWave, sHead, sQb, sG, sQg = 32, 33, 34, 35, 36
    sIter, sKnext, sVoffs, sM0V, sM0R = 37, 38, 39, 40, 41
    sT, sScale, sEps, sOoff = 42, 43, 44, 45
    sTmp, sTmp2 = 46, 47
    sExV = 52
    sRet = 54
    sMode, sAbsT = 56, 57
    sPre, sX = 58, 59
    sAlt = 60
    sMk = 64

    def vr(b, n): return f"v[{b}:{b+n-1}]"

    def wst_l():
        if not opt.ws: return []
        return ["s_memtime s[74:75]", "s_waitcnt lgkmcnt(0)", "s_sub_u32 s74, s74, s72", "s_mov_b32 m0, s70", "s_nop 0",
                f"v_writelane_b32 v{vSt}, s74, m0", "s_add_u32 s70, s70, 1"]
    def wst():
        for s in wst_l(): e(s)

    def rawdma_l(srd, soff, m0=None):
        r = [f"s_mov_b32 m0, s{sM0R if m0 is None else m0}", "s_nop 0"]
        for i in range(3):
            r.append(f"buffer_load_dwordx4 v{vL16}, s[{srd}:{srd+3}], s{soff} offen offset:{1024*i} lds")
        r.append("s_mov_b32 exec_hi, 0")
        r.append(f"buffer_load_dwordx4 v{vL16}, s[{srd}:{srd+3}], s{soff} offen offset:3072 lds")
        r.append("s_mov_b32 exec_hi, -1")
        return r
    def rawnext_l():
        return rawdma_l(sK, sKnext) + [f"s_add_u32 s{sKnext}, s{sKnext}, {2*CH}"]

    def vdma_l(m0=None, off=None, adv=True):
        m0 = sM0V if m0 is None else m0
        off = sVoffs if off is None else off
        r = [f"s_mov_b32 m0, s{m0}",
             f"s_mov_b64 exec, s[{sExV}:{sExV+1}]",
             f"buffer_load_dwordx4 v{vVoff}, s[{sV}:{sV+3}], s{off} offen lds",
             f"s_add_u32 m0, s{m0}, 128",
             f"s_add_u32 s{sM0V}, s{sM0V}, 0x4000" if adv else "s_nop 0",
             f"buffer_load_dwordx4 v{vVoff}, s[{sV}:{sV+3}], s{off} offen offset:896 lds",
             f"s_mov_b64 exec, -1"]
        if adv:
            r += [f"s_and_b32 s{sM0V}, s{sM0V}, 0xffff", f"s_add_u32 s{sVoffs}, s{sVoffs}, {CH}"]
        return r

    def vtwo(chunk):
        for half in range(2):
            e(f"s_add_u32 s{sTmp}, s{sM0V}, {chunk*16384 + half*8192}")
            e(f"s_add_u32 s{sTmp2}, s{sVoffs}, {chunk*CH + half*7168}")
            for t in vdma_l(m0=sTmp, off=sTmp2, adv=False): e(t)

    nat_reads = [f"ds_read2_b64 {vr(vP+4*i,4)}, v{vNat} offset0:{2*i} offset1:{2*i+1}" for i in range(3)] + \
                [f"ds_read_b64 {vr(vP+12,2)}, v{vNat} offset:48"]
    tr_reads = [f"ds_read_b64_tr_b16 {vr(vTt+2*m,2)}, v{vTr} offset:{8*m}" for m in range(7)]
    dots = [f"v_dot2_f32_bf16 v{vSS}, v{vP+i}, v{vP+i}, {'0' if i == 0 else 'v%d' % vSS}" for i in range(14)]
    grams = [f"v_mfma_f32_4x4x4_16b_bf16 {vr(vD,4)}, {vr(vP+2*m,2)}, {vr(vP+2*m,2)}, {'0' if m == 0 else vr(vD,4)}" for m in range(7)]
    sels = [f"v_cndmask_b32 v{vSS}, v{vD if i == 0 else vSS}, v{vD+1+i}, s[{sMk+2*i}:{sMk+2*i+1}]" for i in range(3)]
    norm = [f"v_sqrt_f32 v{vSS}, v{vSS}", f"v_add_f32 v{vSS}, s{sEps}, v{vSS}", f"v_rcp_f32 v{vR}, v{vSS}",
            f"v_cvt_pk_bf16_f32 v{vR}, v{vR}, v{vR}", f"v_and_b32 v{vB}, v{vR}, v{vMa}", f"v_and_b32 v{vB+1}, v{vR}, v{vMb}"]
    smalls = [f"v_mfma_f32_4x4x4_16b_bf16 {vr(vD+4*m,4)}, {vr(vTt+2*m,2)}, {vr(vB,2)}, 0" for m in range(7)]
    cvts = [f"v_cvt_pk_bf16_f32 v{vP+i}, v{vD+2*i}, v{vD+2*i+1}" for i in range(14)]
    writes = [f"ds_write_b128 v{vKw}, {vr(vP+4*i,4)} offset:{512*i}" for i in range(4)]

    e("s_load_dwordx4 s[4:7], s[0:1], 0")
    e("s_load_dwordx4 s[8:11], s[0:1], 16")
    e("s_load_dwordx2 s[12:13], s[0:1], 32")
    e("s_cmp_ge_u32 s2, 256")
    e("s_cbranch_scc1 L_end")
    if opt.ws:
        e("s_memtime s[72:73]"); e("s_memrealtime s[76:77]"); e("s_mov_b32 s70, 0")
    if opt.padto: e("s_memrealtime s[76:77]")
    e(f"v_lshrrev_b32 v{vT0}, 6, v0")
    e(f"v_and_b32 v{vLane}, 63, v0")
    e(f"v_readfirstlane_b32 s{sWave}, v{vT0}")
    c("head = (wg&7)*4 + (wg>>6), qblk = (wg>>3)&7")
    e("s_and_b32 s3, s2, 7")
    e("s_lshl_b32 s3, s3, 2")
    e(f"s_lshr_b32 s{sHead}, s2, 6")
    e(f"s_add_u32 s{sHead}, s{sHead}, s3")
    e(f"s_bfe_u32 s{sQb}, s2, 0x30003")
    e(f"s_mov_b32 s{sMode}, 0")
    e(f"v_lshlrev_b32 v{vL16}, 4, v{vLane}")
    c("vVoff = (lane>>3)*112 + (lane&7)*16 = lane*16 - (lane>>3)*16")
    e(f"v_lshrrev_b32 v{vT0}, 3, v{vLane}")
    e(f"v_sub_u32 v{vVoff}, v{vLane}, v{vT0}")
    e(f"v_lshlrev_b32 v{vVoff}, 4, v{vVoff}")
    lab("L_restart")
    e(f"s_lshr_b32 s{sG}, s{sWave}, 2")
    e(f"s_and_b32 s{sQg}, s{sWave}, 3")
    e(f"s_mul_i32 s3, s{sHead}, {HB}")
    e(f"s_mul_i32 s{sKnext}, s{sQg}, 3584")
    e(f"s_mul_i32 s{sTmp}, s{sQb}, {CH}")
    e(f"s_add_u32 s{sOoff}, s{sTmp}, s{sKnext}")
    e(f"s_mul_i32 s{sM0R}, s{sWave}, 3584")
    e(f"s_add_u32 s{sM0R}, s{sM0R}, {LDS_R}")
    for srd in (sR, sV, sK, sO):
        e(f"s_mov_b32 s{srd+2}, {HB}")
        e(f"s_mov_b32 s{srd+3}, 0x00020000")
    e(f"s_mov_b32 s{sExV}, 0x7f7f7f7f")
    e(f"s_mov_b32 s{sExV+1}, 0x7f7f7f7f")
    e(f"s_mul_i32 s{sVoffs}, s{sQg}, 1792")
    e(f"s_lshl_b32 s{sM0V}, s{sQg}, 11")
    e(f"s_cmp_lg_u32 s{sG}, 0")
    e("s_waitcnt lgkmcnt(0)")
    e("s_cbranch_scc1 L_st1")
    c("group 0: its Q rows")
    e(f"s_add_u32 s{sR}, s4, s3")
    e(f"s_addc_u32 s{sR+1}, s5, 0")
    for t in rawdma_l(sR, sOoff): e(t)
    for srd, p in ((sK, 6), (sV, 8)):
        e(f"s_add_u32 s{srd}, s{p}, s3")
        e(f"s_addc_u32 s{srd+1}, s{p+1}, 0")
    e("s_branch L_st2")
    lab("L_st1")
    c("group 1: K0 rows, V0 tiles qg and qg + 4")
    for srd, p in ((sK, 6), (sV, 8)):
        e(f"s_add_u32 s{srd}, s{p}, s3")
        e(f"s_addc_u32 s{srd+1}, s{p+1}, 0")
    for t in rawdma_l(sK, sKnext): e(t)
    vtwo(0)
    lab("L_st2")
    wst()
    c("t load")
    e(f"s_and_b32 s{sTmp2}, s{sHead}, 14")
    e(f"s_lshl_b32 s{sTmp2}, s{sTmp2}, 1")
    e(f"s_load_dword s{sT}, s[10:11], s{sTmp2}")
    e(f"s_add_u32 s{sO}, s12, s3")
    e(f"s_addc_u32 s{sO+1}, s13, 0")
    c("next raw chunk: group 0 -> K1, group 1 -> K2")
    e(f"s_add_u32 s{sTmp2}, s{sG}, 1")
    e(f"s_mul_i32 s{sTmp2}, s{sTmp2}, {CH}")
    e(f"s_add_u32 s{sKnext}, s{sKnext}, s{sTmp2}")
    e(f"s_mul_i32 s{sTmp2}, s{sG}, 1792")
    e(f"s_add_u32 s{sOoff}, s{sOoff}, s{sTmp2}")
    e(f"s_mov_b32 s{sEps}, 0x358637bd")
    for i in range(3):
        e(f"s_mov_b32 s{sMk+2*i}, {hex(0x11111111 << (i+1))}")
        e(f"s_mov_b32 s{sMk+2*i+1}, s{sMk+2*i}")
    c("staging addresses")
    e(f"v_mov_b32 v{vT1}, s{sM0R}")
    e(f"v_mad_u32_u24 v{vNat}, v{vLane}, 56, v{vT1}")
    e(f"v_and_b32 v{vT0}, 3, v{vLane}")
    e(f"v_bfe_u32 v{vSS}, v{vLane}, 2, 2")
    e(f"v_lshl_add_u32 v{vSS}, v{vT0}, 2, v{vSS}")
    e(f"v_and_or_b32 v{vSS}, v{vLane}, 48, v{vSS}")
    e(f"v_mad_u32_u24 v{vTr}, v{vSS}, 56, v{vT1}")
    c("diag masks: j=lane&3")
    e(f"v_lshlrev_b32 v{vSS}, 4, v{vT0}")
    e(f"v_mov_b32 v{vMa}, 0xffff")
    e(f"v_mov_b32 v{vMb}, 0")
    e(f"v_lshlrev_b64 {vr(vMa,2)}, v{vSS}, {vr(vMa,2)}")
    c("frag write address: (lane>>5)*2048 + (lane&31)*16 + qg*4096 + area")
    e(f"v_lshrrev_b32 v{vR}, 5, v{vLane}")
    e(f"v_mul_u32_u24 v{vKw}, 1536, v{vR}")
    e(f"v_add_u32 v{vKw}, v{vKw}, v{vL16}")
    e(f"s_lshl_b32 s{sTmp}, s{sQg}, 12")
    e(f"s_cmp_eq_u32 s{sG}, 0")
    e(f"s_cselect_b32 s{sTmp2}, {LDS_Q - LDS_K}, 0")
    e(f"s_add_u32 s{sTmp2}, s{sTmp2}, s{sTmp}")
    e(f"s_add_u32 s{sTmp2}, s{sTmp2}, {LDS_K}")
    e(f"v_add_u32 v{vKw}, s{sTmp2}, v{vKw}")
    c("ones pads in the V ring: lane -> slot lane>>4, pair lane&15")
    e(f"v_lshrrev_b32 v{vT1}, 4, v{vLane}")
    e(f"v_lshlrev_b32 v{vT1}, 14, v{vT1}")
    e(f"v_and_b32 v{vKr}, 15, v{vLane}")
    e(f"v_lshl_add_u32 v{vT1}, v{vKr}, 7, v{vT1}")
    e(f"s_lshl_b32 s{sTmp}, s{sWave}, 11")
    e(f"v_add_u32 v{vT1}, s{sTmp}, v{vT1}")
    e(f"v_mov_b32 v{vD}, 0x3f80")
    e(f"v_mov_b32 v{vD+1}, 0")
    e(f"v_mov_b32 v{vD+2}, 0x3f80")
    e(f"v_mov_b32 v{vD+3}, 0")
    e(f"ds_write_b128 v{vT1}, {vr(vD,4)} offset:112")
    c("progress flags: one word per wave")
    e(f"s_lshl_b32 s{sTmp}, s{sWave}, 2")
    e(f"s_add_u32 s{sTmp}, s{sTmp}, {LDS_F}")
    e(f"v_mov_b32 v{vFw}, s{sTmp}")
    e(f"ds_write_b32 v{vFw}, v{vD+1}")
    c("V transpose-read address: h'=lane>>5, g1=(lane>>4)&1, r=(lane>>2)&3, c=lane&3; ci=4*g1+c; pi=(ci>>1)+4*(ci&1)")
    e(f"v_bfe_u32 v{vSS}, v{vLane}, 4, 1")
    e(f"v_lshlrev_b32 v{vVr}, 9, v{vR}")
    e(f"v_bfe_u32 v{vT1}, v{vLane}, 3, 1")
    e(f"v_lshl_add_u32 v{vVr}, v{vT1}, 7, v{vVr}")
    e(f"v_bfe_u32 v{vT1}, v{vLane}, 2, 1")
    e(f"v_bfe_u32 v{vKr}, v{vLane}, 1, 1")
    e(f"v_lshl_add_u32 v{vKr}, v{vSS}, 1, v{vKr}")
    e(f"v_and_b32 v{vT0}, 1, v{vLane}")
    e(f"v_lshl_add_u32 v{vKr}, v{vT0}, 2, v{vKr}")
    e(f"v_cmp_eq_u32 vcc, 7, v{vKr}")
    e(f"v_mul_u32_u24 v{vT0}, 7, v{vT1}")
    e(f"v_add_u32 v{vKr}, v{vKr}, v{vT0}")
    e(f"v_add_u32 v{vT1}, 14, v{vT1}")
    e(f"v_cndmask_b32 v{vKr}, v{vKr}, v{vT1}, vcc")
    e(f"v_lshl_add_u32 v{vVr}, v{vKr}, 3, v{vVr}")
    e(f"s_lshl_b32 s{sTmp2}, s{sG}, 13")
    e(f"v_add_u32 v{vVr}, s{sTmp2}, v{vVr}")
    e(f"s_add_u32 s{sTmp2}, s{sTmp2}, {LDS_K}")
    e(f"v_add_u32 v{vKr}, s{sTmp2}, v{vL16}")
    c("output offset: (lane&31)*56 + h*32")
    e(f"v_and_b32 v{vOoff}, 31, v{vLane}")
    e(f"v_mul_u32_u24 v{vOoff}, 56, v{vOoff}")
    e(f"v_lshl_add_u32 v{vOoff}, v{vR}, 5, v{vOoff}")
    e(f"v_and_b32 v{vFr}, 7, v{vLane}")
    e(f"v_lshlrev_b32 v{vFr}, 2, v{vFr}")
    e(f"v_add_u32 v{vFr}, {LDS_F}, v{vFr}")
    e(f"v_mov_b32 v{vCnt}, 1")
    e(f"v_mov_b32 v{vIdx}, 0xdddddddd")
    for j in range(0, 32, 2): e(f"v_mov_b64 {vr(vO+j,2)}, 0")
    for j in range(8, 16, 2): e(f"v_mov_b64 {vr(vS+48+j,2)}, 0")
    for j in range(4, 8, 2): e(f"v_mov_b64 {vr(vVf+24+j,2)}, 0")
    c("t -> f32, c = t*log2e")
    e("s_waitcnt lgkmcnt(0)")
    e(f"s_bitcmp1_b32 s{sHead}, 0")
    e(f"s_cselect_b32 s{sTmp2}, 0, 16")
    e(f"s_lshl_b32 s{sT}, s{sT}, s{sTmp2}")
    e(f"s_and_b32 s{sT}, s{sT}, 0xffff0000")
    e(f"v_mov_b32 v{vT0}, 0x3fb8aa3b")
    e(f"v_mul_f32 v{vT0}, s{sT}, v{vT0}")
    e(f"s_and_b32 s{sAbsT}, s{sT}, 0x7fffffff")
    e(f"v_readfirstlane_b32 s{sScale}, v{vT0}")
    c("the shift |t|*log2e bounds every logit; it is used only while it cannot underflow a row (|t| <= 16)")
    e(f"s_cmp_gt_u32 s{sAbsT}, {'0x41800000' if not opt.force_fallback else '0'}")
    e(f"s_cselect_b32 s{sAbsT}, 1, 0")
    e(f"s_or_b32 s{sTmp2}, s{sScale}, 0x80000000")
    e(f"s_lshr_b32 s{sTmp2}, s{sTmp2}, 16")
    e(f"s_cmp_eq_u32 s{sAbsT}, 0")
    e(f"s_cselect_b32 s{sTmp2}, s{sTmp2}, 0")
    e(f"s_cmp_eq_u32 s{sG}, 0")
    e(f"s_cselect_b32 s{sTmp2}, s{sTmp2}, 0x3f803f80")
    e(f"s_cselect_b32 s{sTmp}, 0, 0x3f803f80")
    e(f"s_cselect_b32 s{sScale}, s{sScale}, 1.0")
    e(f"v_mov_b32 v{vP+14}, s{sTmp2}")
    e(f"v_mov_b32 v{vP+15}, s{sTmp}")
    e(f"s_mov_b32 s{sIter}, 0")
    e(f"s_mov_b32 s{sX}, 0x4000")
    wst()
    e(f"s_lshl_b32 s{sTmp}, s{sQg}, 12")
    e(f"s_lshl_b32 s{sTmp2}, s{sG}, 11")
    e(f"s_add_u32 s{sTmp}, s{sTmp}, s{sTmp2}")
    e(f"s_add_u32 s{sTmp}, s{sTmp}, {LDS_Q}")
    e(f"v_add_u32 v{vT1}, s{sTmp}, v{vL16}")
    e(f"v_xor_b32 v{vT0}, 0x800, v{vT1}")
    e(f"s_cmp_lg_u32 s{sG}, 0")
    e("s_cbranch_scc1 L_st3")
    c("group 0: K1 rows into the still unused K slot 2, V1")
    e(f"s_lshl_b32 s{sAlt}, s{sQg}, 12")
    e(f"s_add_u32 s{sAlt}, s{sAlt}, {LDS_K + 32768}")
    for t in rawdma_l(sK, sKnext, sAlt): e(t)
    e(f"s_add_u32 s{sKnext}, s{sKnext}, {2*CH}")
    e(f"s_sub_u32 s{sAlt}, s{sM0R}, s{sAlt}")
    vtwo(1)
    e(f"s_waitcnt vmcnt(8)")
    wst()
    e(f"s_call_b64 s[{sRet}:{sRet+1}], L_prep")
    wst()
    e(f"s_mov_b32 s{sScale}, 1.0")
    e(f"v_subrev_u32 v{vNat}, s{sAlt}, v{vNat}")
    e(f"v_subrev_u32 v{vTr}, s{sAlt}, v{vTr}")
    e(f"s_waitcnt lgkmcnt(0)")
    e("s_branch L_st4")
    lab("L_st3")
    e(f"s_setprio {opt.g1prio}")
    e(f"s_waitcnt vmcnt(4)")
    wst()
    e(f"s_call_b64 s[{sRet}:{sRet+1}], L_prep")
    wst()
    for t in rawnext_l(): e(t)
    e(f"s_waitcnt vmcnt(4) lgkmcnt(0)")
    lab("L_st4")
    wst()
    e("s_barrier")

    def kread(tile, buf):
        o = tile * 2048
        return [f"ds_read_b128 {vr(vKf+8*buf,4)}, v{vKr} offset:{o}",
                f"ds_read_b128 {vr(vKf+8*buf+4,4)}, v{vKr} offset:{o+1024}"]
    def vread(tile, buf):
        o = tile * 2048
        return [f"ds_read_b64_tr_b16 {vr(vVf+8*buf+4*s+2*u,2)}, v{vVr} offset:{o+s*1024+u*256}" for s in range(2) for u in range(2)]
    def m1(T):
        return f"v_mfma_f32_32x32x16_bf16 {vr(vS+16*(T%4),16)}, {vr(vKf+8*((T//2)%2),4)}, {vr(vQ+8*(T%2),4)}, 0"
    def m2(T):
        return f"v_mfma_f32_32x32x16_bf16 {vr(vS+16*(T%4),16)}, {vr(vKf+8*((T//2)%2)+4,4)}, {vr(vQ+8*(T%2)+4,4)}, {vr(vS+16*(T%4),16)}"
    def sm(T, s):
        return f"v_smfmac_f32_32x32x32_bf16 {vr(vO+16*(T%2),16)}, {vr(vVf+8*((T//2)%4)+4*s,4)}, {vr(vS+16*(T%4)+8*s,8)}, v{vIdx}"
    def ex(T, j):
        r = vS + 16*(T%4) + j
        return f"v_exp_f32 v{r}, v{r}"

    e(f"s_cmp_lg_u32 s{sG}, 0")
    e("s_cbranch_scc1 L_fill0")
    c("group 0: normalise K1 first")
    e(f"v_mov_b32 v{vP+14}, 0x3f803f80")
    e(f"v_mov_b32 v{vP+15}, 0x3f803f80")
    e(f"s_setprio {opt.p_start}")
    e(f"s_waitcnt vmcnt(4)")
    e(f"s_call_b64 s[{sRet}:{sRet+1}], L_prep")
    e(f"v_add_u32 v{vNat}, s{sAlt}, v{vNat}")
    e(f"v_add_u32 v{vTr}, s{sAlt}, v{vTr}")
    e(f"s_waitcnt vmcnt(0)")
    lab("L_fill0")
    c("Q fragments and the first K / V fragments")
    e(f"ds_read_b128 {vr(vQ,4)}, v{vT0}")
    e(kread(0, 0)[0])
    e(f"ds_read_b128 {vr(vQ+4,4)}, v{vT0} offset:1024")
    e(kread(0, 0)[1])
    e(f"ds_read_b128 {vr(vQ+8,4)}, v{vT1}")
    e(f"ds_read_b128 {vr(vQ+12,4)}, v{vT1} offset:1024")
    e(f"ds_write_b32 v{vFw}, v{vCnt}")
    for s in kread(1, 1): e(s)
    for s in vread(0, 0): e(s)
    c("own V tile from now on: chunk 2 next")
    e(f"s_mul_i32 s{sVoffs}, s{sWave}, 1792")
    e(f"s_add_u32 s{sVoffs}, s{sVoffs}, {2*CH}")
    e(f"s_lshl_b32 s{sM0V}, s{sWave}, 11")
    e(f"s_add_u32 s{sM0V}, s{sM0V}, 0x8000")
    e(f"s_cmp_lg_u32 s{sAbsT}, 0")
    e("s_cbranch_scc1 L_special")
    lab("L_fill")
    e("s_waitcnt lgkmcnt(11)")
    e(m1(0))
    e("s_waitcnt lgkmcnt(9)")
    e(m2(0))
    e("s_waitcnt lgkmcnt(7)")
    e(m1(1)); e(m2(1))
    for s in vread(1, 1): e(s)
    for t in vdma_l(): e(t)
    wst()
    e(f"s_cmp_eq_u32 s{sG}, 0")
    e("s_cbranch_scc1 L_B")

    def build_half(name, pats):
        ops = []
        q = dict(n=list(nat_reads), t=list(tr_reads), g=list(grams), x=list(sels), s=list(norm), m=list(smalls), c=list(cvts), W=list(writes))
        cnt = dict(n=0, t=0, g=0, x=0, s=0, m=0, c=0, W=0, X=0)
        def add(t, lid=None, needs=()): ops.append((t, lid, list(needs)))
        for T in range(8):
            j = T // 2
            if opt.ws and T in opt.stampT:
                for s in wst_l(): add(s)
            if T % 2 == 0:
                rd_k = kread((j + 2) % 4, j % 2); rd_v = vread((j + 2) % 4, (j + 2) % 4)
                ki = vi = 0
            ei = 0
            for ch in pats[T]:
                if ch == 'e': add(ex(T, ei)); ei += 1
                elif ch == 'A':
                    add(sm(T - 1, 1), needs=[('v', ((T-1)//2), 2), ('v', ((T-1)//2), 3)])
                elif ch == 'B': add(m1(T + 2), needs=[('k', j + 1, 0)])
                elif ch == 'C': add(m2(T + 2), needs=[('k', j + 1, 1)])
                elif ch == 'D': add(sm(T, 0), needs=[('v', j, 0), ('v', j, 1)])
                elif ch == 'k': add(rd_k[ki], lid=('k', j + 2, ki)); ki += 1
                elif ch == 'v': add(rd_v[vi], lid=('v', j + 2, vi)); vi += 1
                elif ch == 'w': add("WAIT")
                elif ch == 'n': add(q['n'][cnt['n']], lid=('n', 0, cnt['n'])); cnt['n'] += 1
                elif ch == 't': add(q['t'][cnt['t']], lid=('t', 0, cnt['t'])); cnt['t'] += 1
                elif ch in '0123':
                    if opt.prio: add(f"s_setprio {opt.pmap[int(ch)]}")
                elif ch == 'g': add(q['g'][cnt['g']], needs=[('n', 0, cnt['g'] // 2)]); cnt['g'] += 1
                elif ch == 'x': assert cnt['g'] == 7; add(q['x'][cnt['x']]); cnt['x'] += 1
                elif ch == 's': assert cnt['x'] == 3; add(q['s'][cnt['s']]); cnt['s'] += 1
                elif ch == 'm': assert cnt['s'] == 6; add(q['m'][cnt['m']], needs=[('t', 0, cnt['m'])]); cnt['m'] += 1
                elif ch == 'c': assert cnt['m'] > cnt['c'] // 2; add(q['c'][cnt['c']]); cnt['c'] += 1
                elif ch == 'W':
                    assert cnt['c'] >= min(14, 4*cnt['W'] + 4)
                    add(q['W'][cnt['W']], lid=('W', 0, cnt['W'])); cnt['W'] += 1
                    if cnt['W'] == 4: pending_xor = True
                elif ch == 'X':
                    l = rawnext_l()
                    parts = [l[0:3], l[3:4], l[4:5], l[5:]]
                    for t in parts[cnt['X']]: add(t)
                    cnt['X'] += 1
                elif ch == 'Y': add("s_waitcnt vmcnt(2)")
                elif ch == 'V':
                    add(f"s_mov_b32 m0, s{sM0V}")
                    add(f"s_mov_b64 exec, s[{sExV}:{sExV+1}]")
                    add(f"buffer_load_dwordx4 v{vVoff}, s[{sV}:{sV+3}], s{sVoffs} offen lds")
                    add(f"s_mov_b64 exec, -1")
                elif ch == 'U':
                    add(f"s_add_u32 m0, s{sM0V}, 128")
                    add(f"s_mov_b64 exec, s[{sExV}:{sExV+1}]")
                    add(f"buffer_load_dwordx4 v{vVoff}, s[{sV}:{sV+3}], s{sVoffs} offen offset:896 lds")
                    add(f"s_mov_b64 exec, -1")
                elif ch == 'T':
                    add(f"s_cmp_eq_u32 s{sIter}, 7"); add("s_cbranch_scc1 L_tail")
                elif ch == 'y': add("s_waitcnt vmcnt(0)")
                elif ch == 'f': add(f"ds_read_b32 v{vFlag}, v{vFr}", lid=('f', 0, 0))
                elif ch == 'F':
                    add(f"v_cmp_lt_u32 vcc, v{vFlag}, v{vCnt}", needs=[('f', 0, 0)])
                    add(f"v_xor_b32 v{vKr}, s{sX}, v{vKr}")
                    add(f"v_xor_b32 v{vVr}, s{sX}, v{vVr}")
                    add(f"s_cbranch_vccnz L_spin{name}")
                    add(f"L_back{name}:")
                    add(f"v_add_u32 v{vCnt}, 1, v{vCnt}")
                    add(f"s_xor_b32 s{sX}, s{sX}, 0x8000")
                elif ch == 'i':
                    it = [f"s_add_u32 s{sIter}, s{sIter}, 1", f"s_cmp_ge_u32 s{sIter}, 5",
                          f"s_cselect_b32 s{sV+2}, 0, s{sV+2}", f"s_mov_b32 s{sK+2}, s{sV+2}"]
                    add(it[cnt.setdefault('i', 0)]); cnt['i'] += 1
                elif ch == 'a':
                    adv = [f"s_add_u32 s{sM0V}, s{sM0V}, 0x4000", f"s_and_b32 s{sM0V}, s{sM0V}, 0xffff",
                           f"s_add_u32 s{sVoffs}, s{sVoffs}, {CH}"]
                    add(adv[cnt.setdefault('a', 0)]); cnt['a'] += 1
                elif ch == 'P':
                    add(f"ds_write_b32 v{vFw}, v{vCnt}", lid=('P', 0, 0))
                    if name == 'A':
                        assert cnt['W'] == 4
                        add(f"v_xor_b32 v{vKw}, 0x8000, v{vKw}")
                else: raise ValueError(ch)
            assert ei == 16, (name, T, ei)
            if T % 2 == 1: assert ki == 2 and vi == 4
        if name == 'A':
            assert cnt == dict(n=4, t=7, g=7, x=3, s=6, m=7, c=14, W=4, X=0, a=3, i=4), cnt
        return ops

    halves = {'A': build_half('A', opt.patA), 'B': build_half('B', opt.patB)}
    def shift(ops):
        out = []
        for t, lid, needs in ops:
            if lid is not None:
                lid = (lid[0], lid[1] - 4, lid[2]) if lid[0] in 'kv' else (lid[0], -1, lid[2])
            out.append((t, lid, []))
        return out
    def resolve(name):
        ops = halves[name]
        res = {}
        for pred in 'AB':
            seq = shift(halves[pred]) + ops
            base = len(seq) - len(ops)
            pos = {lid: i for i, (t, lid, n) in enumerate(seq) if lid is not None}
            waits = [i for i in range(base, len(seq)) if seq[i][0] == "WAIT"]
            covered = -1
            covered = pos[('k', 0, 1)]
            for i in range(base, len(seq)):
                t, lid, needs = seq[i]
                if t == "WAIT":
                    nxt = min([w for w in waits if w > i] + [len(seq)])
                    need = [pos[x] for k in range(i, nxt) for x in seq[k][2] if x in pos]
                    tgt = max(need + [covered])
                    assert tgt < i, ("wait placed before its load", name, seq[tgt][0])
                    n = sum(1 for k in range(tgt + 1, i) if seq[k][1] is not None)
                    res[i - base] = min(res.get(i - base, 15), n)
                    covered = tgt
                for x in needs:
                    if x in pos: assert pos[x] <= covered, ("uncovered", name, t, x)
                    else: assert x[0] == 'v' and x[1] < -2 or x[1] <= -2, x
        return [(f"s_waitcnt lgkmcnt({res[i]})" if t == "WAIT" else t) for i, (t, lid, n) in enumerate(ops)]

    L.append(".p2align 3")
    lab("L_A")
    for t in resolve('A'):
        (L.append(t) if t.endswith(":") else e(t))
    lab("L_B")
    for t in resolve('B'):
        (L.append(t) if t.endswith(":") else e(t))
    e(f"s_cmp_lt_u32 s{sIter}, 6")
    e("s_cbranch_scc1 L_A")
    e("s_branch L_B")
    lab("L_tail")
    c("last two tiles; local block 0 goes to the partner wave, local block 1 is finished here")
    e(f"s_lshl_b32 s{sTmp}, s{sWave}, 12")
    e(f"s_add_u32 s{sTmp}, s{sTmp}, {LDS_K}")
    e(f"v_add_u32 v{vT0}, s{sTmp}, v{vL16}")
    e(f"v_xor_b32 v{vT1}, 0x4000, v{vT0}")
    if opt.st_lin:
        e(f"v_add_u32 v{vOoff}, s{sM0R}, v{vOoff}")
        e(f"v_add_u32 v{vSS}, s{sM0R}, v{vL16}")
    no = 0
    for T in (6, 7):
        ei = 0
        for ch in opt.patT[T - 6]:
            if ch == 'e': e(ex(T, ei)); ei += 1
            elif ch == 'A': e(sm(T - 1, 1))
            elif ch == 'D': e(sm(T, 0))
            elif ch in '0123':
                if opt.prio: e(f"s_setprio {opt.pmap[int(ch)]}")
            elif ch == 'O':
                e(f"ds_write_b128 v{vT0}, {vr(vO+4*no,4)} offset:{1024*no}"); no += 1
        assert ei == 16
    assert no == 4
    e("s_nop 0")
    e(sm(7, 1))
    wst()
    e("s_waitcnt lgkmcnt(0)")
    e("s_barrier")
    vF = vO + 16
    for j in (3, 0, 1, 2):
        e(f"ds_read_b128 {vr(vD+4*j,4)}, v{vT1} offset:{1024*j}")
    e("s_nop 4")
    e("s_waitcnt lgkmcnt(3)")
    e(f"v_pk_add_f32 {vr(vF+12,2)}, {vr(vF+12,2)}, {vr(vD+12,2)}")
    e(f"v_pk_add_f32 {vr(vF+14,2)}, {vr(vF+14,2)}, {vr(vD+14,2)}")
    e(f"v_mov_b32 v{vT0}, v{vF+12}")
    e(f"v_mov_b32 v{vT1}, v{vF+12}")
    e("s_waitcnt lgkmcnt(2)")
    e(f"v_pk_add_f32 {vr(vF,2)}, {vr(vF,2)}, {vr(vD,2)}")
    e(f"v_permlane32_swap_b32 v{vT0}, v{vT1}")
    e(f"v_pk_add_f32 {vr(vF+2,2)}, {vr(vF+2,2)}, {vr(vD+2,2)}")
    e(f"v_rcp_f32 v{vB}, v{vT1}")
    e("s_waitcnt lgkmcnt(0)")
    for j in range(4, 12, 2):
        e(f"v_pk_add_f32 {vr(vF+j,2)}, {vr(vF+j,2)}, {vr(vD+j,2)}")
    for j in range(8):
        e(f"v_pk_mul_f32 {vr(vF+2*j,2)}, {vr(vF+2*j,2)}, {vr(vB,2)} op_sel_hi:[1,0]")
    if not opt.st_lin:
        for j in range(8):
            e(f"v_cvt_pk_bf16_f32 v{vP+j}, v{vF+2*j}, v{vF+2*j+1}")
        e(f"buffer_store_dwordx4 {vr(vP,4)}, v{vOoff}, s[{sO}:{sO+3}], s{sOoff} offen{opt.st_flags}")
        e(f"buffer_store_dwordx2 {vr(vP+4,2)}, v{vOoff}, s[{sO}:{sO+3}], s{sOoff} offen offset:16{opt.st_flags}")
        e("s_mov_b32 exec_hi, 0")
        e(f"buffer_store_dwordx2 {vr(vP+6,2)}, v{vOoff}, s[{sO}:{sO+3}], s{sOoff} offen offset:24{opt.st_flags}")
    else:
        c("rows -> own staging buffer -> whole lines")
        for j in range(4):
            e(f"v_cvt_pk_bf16_f32 v{vP+2*j}, v{vF+4*j}, v{vF+4*j+1}")
            e(f"v_cvt_pk_bf16_f32 v{vP+2*j+1}, v{vF+4*j+2}, v{vF+4*j+3}")
            if j == 3: e("s_mov_b32 exec_hi, 0")
            e(f"ds_write_b64 v{vOoff}, {vr(vP+2*j,2)} offset:{8*j}")
        e("s_mov_b32 exec_hi, -1")
        e(f"ds_read_b128 {vr(vD,4)}, v{vSS}")
        e(f"ds_read_b128 {vr(vD+4,4)}, v{vSS} offset:1024")
        e("s_waitcnt lgkmcnt(1)")
        e(f"buffer_store_dwordx4 {vr(vD,4)}, v{vL16}, s[{sO}:{sO+3}], s{sOoff} offen{opt.st_flags}")
        e("s_mov_b32 exec_hi, 0xffff")
        e("s_waitcnt lgkmcnt(0)")
        e(f"buffer_store_dwordx4 {vr(vD+4,4)}, v{vL16}, s[{sO}:{sO+3}], s{sOoff} offen offset:1024{opt.st_flags}")
    if opt.ws:
        e("s_mov_b64 exec, -1")
        wst()
        e("s_waitcnt vmcnt(0)")
        wst()
        e("s_memrealtime s[78:79]")
        e("s_load_dwordx2 s[80:81], s[0:1], 48")
        e("s_waitcnt lgkmcnt(0)")
        e("s_mov_b32 s82, 0x1000000"); e("s_mov_b32 s83, 0x00020000")
        e(f"v_writelane_b32 v{vSt}, s70, 31")
        e(f"v_writelane_b32 v{vSt}, s76, 30")
        e(f"v_writelane_b32 v{vSt}, s78, 29")
        e(f"s_lshl_b32 s3, s2, 3"); e(f"s_add_u32 s3, s3, s{sWave}"); e("s_lshl_b32 s3, s3, 7")
        e(f"v_lshlrev_b32 v1, 2, v{vLane}")
        e("s_mov_b32 exec_hi, 0")
        e(f"buffer_store_dword v{vSt}, v1, s[80:83], s3 offen")
    if opt.padto:
        e("s_waitcnt vmcnt(0)")
        lab("L_pspin")
        e("s_memrealtime s[78:79]")
        e("s_waitcnt lgkmcnt(0)")
        e("s_sub_u32 s84, s78, s76")
        e(f"s_cmp_lt_u32 s84, {opt.padto}")
        e("s_cbranch_scc1 L_pspin")
    lab("L_end")
    e("s_endpgm")

    for name in 'AB':
        lab(f"L_spin{name}")
        c("some wave has not yet published the next chunk: wait for it")
        e(f"s_sleep {opt.sleep}")
        e(f"ds_read_b32 v{vFlag}, v{vFr}")
        e("s_waitcnt lgkmcnt(0)")
        e(f"v_cmp_lt_u32 vcc, v{vFlag}, v{vCnt}")
        e(f"s_cbranch_vccnz L_spin{name}")
        e(f"s_branch L_back{name}")

    lab("L_prep")
    for m in range(7): e(f"ds_read_b64 {vr(vP+2*m,2)}, v{vNat} offset:{8*m}")
    for s in tr_reads: e(s)
    for m in range(7):
        e(f"s_waitcnt lgkmcnt({13 - m})")
        if m > 0: e("s_nop 0")
        e(grams[m])
    e("s_nop 4")
    for t in sels: e(t)
    e(norm[0]); e("s_nop 0"); e(norm[1]); e(norm[2]); e("s_nop 0")
    e(f"v_mul_f32 v{vR}, s{sScale}, v{vR}")
    for s in norm[3:]: e(s)
    e("s_waitcnt lgkmcnt(0)")
    e("s_nop 0")
    for s in smalls: e(s)
    for i in range(14):
        e(cvts[i])
        if i % 4 == 3: e(writes[i // 4])
    e(writes[3])
    e(f"v_xor_b32 v{vKw}, 0x8000, v{vKw}")
    e(f"s_setpc_b64 s[{sRet}:{sRet+1}]")

    lab("L_special")
    e(f"s_cmp_eq_u32 s{sMode}, 0")
    e("s_cbranch_scc1 L_maxpass")
    c("second pass: put -max into the pad slots of the Q fragments (lanes 32..63 of registers 6, 7)")
    e("s_waitcnt lgkmcnt(0)")
    e("s_mov_b32 exec_lo, 0")
    e(f"v_mov_b32 v{vQ+6}, v{vPad}")
    e(f"v_mov_b32 v{vQ+7}, v{vPad+1}")
    e(f"v_mov_b32 v{vQ+14}, v{vPad+2}")
    e(f"v_mov_b32 v{vQ+15}, v{vPad+3}")
    e("s_mov_b32 exec_lo, -1")
    e("s_nop 1")
    e("s_branch L_fill")
    lab("L_maxpass")
    mx = [vPad, vPad + 2]
    e(f"v_mov_b32 v{mx[0]}, 0xff800000")
    e(f"v_mov_b32 v{mx[1]}, 0xff800000")
    lab("L_mloop")
    c("chunk sIter is in LDS; group (sIter & 1) normalises chunk sIter + 1 (chunk 1 is done, K2 is staged)")
    e(f"s_add_u32 s{sTmp}, s{sIter}, s{sG}")
    e(f"s_bitcmp1_b32 s{sTmp}, 0")
    e("s_cbranch_scc1 L_mnoprep")
    e(f"s_cmp_eq_u32 s{sIter}, 7")
    e("s_cbranch_scc1 L_mnoprep")
    e(f"s_cmp_eq_u32 s{sIter}, 0")
    e("s_cbranch_scc1 L_mnoprep")
    e(f"s_cmp_eq_u32 s{sIter}, 1")
    e("s_cbranch_scc1 L_mhave")
    for t in rawnext_l(): e(t)
    lab("L_mhave")
    e(f"s_waitcnt vmcnt(0) lgkmcnt(0)")
    e(f"s_call_b64 s[{sRet}:{sRet+1}], L_prep")
    lab("L_mnoprep")
    for j in range(4):
        for s in kread(j, 0): e(s)
        e("s_waitcnt lgkmcnt(0)")
        e(m1(0)); e(m2(0)); e(m1(1)); e(m2(1))
        e("s_nop 15")
        for b in range(2):
            for i in range(0, 16, 2):
                e(f"v_max3_f32 v{mx[b]}, v{vS+16*b+i}, v{vS+16*b+i+1}, v{mx[b]}")
    e("s_barrier")
    e(f"v_xor_b32 v{vKr}, s{sX}, v{vKr}")
    e(f"s_xor_b32 s{sX}, s{sX}, 0x8000")
    e(f"s_add_u32 s{sIter}, s{sIter}, 1")
    e(f"s_cmp_lt_u32 s{sIter}, 8")
    e("s_cbranch_scc1 L_mloop")
    c("combine the two lane halves and the partner wave (whose local blocks are swapped)")
    for b in range(2):
        e(f"v_mov_b32 v{vT0}, v{mx[b]}")
        e("s_nop 1")
        e(f"v_permlane32_swap_b32 v{mx[b]}, v{vT0}")
        e("s_nop 1")
        e(f"v_max_f32 v{mx[b]}, v{mx[b]}, v{vT0}")
    e(f"s_lshl_b32 s{sTmp}, s{sWave}, 12")
    e(f"s_add_u32 s{sTmp}, s{sTmp}, {LDS_K}")
    e(f"v_add_u32 v{vT0}, s{sTmp}, v{vL16}")
    e(f"v_xor_b32 v{vT1}, 0x4000, v{vT0}")
    e("s_waitcnt vmcnt(0) lgkmcnt(0)")
    e(f"ds_write_b32 v{vT0}, v{mx[0]}")
    e(f"ds_write_b32 v{vT0}, v{mx[1]} offset:4")
    e("s_waitcnt lgkmcnt(0)")
    e("s_barrier")
    e(f"ds_read_b64 {vr(vD,2)}, v{vT1}")
    e("s_waitcnt lgkmcnt(0)")
    e("s_barrier")
    e(f"s_mov_b32 s{sTmp}, 0xffff0000")
    for b in range(2):
        m = mx[b]
        e(f"v_max_f32 v{m}, v{m}, v{vD+1-b}")
        c("split -max into three bf16 parts")
        e(f"v_sub_f32 v{m}, 0, v{m}")
        e(f"v_and_b32 v{vT0}, s{sTmp}, v{m}")
        e(f"v_sub_f32 v{m}, v{m}, v{vT0}")
        e(f"v_and_b32 v{vT1}, s{sTmp}, v{m}")
        e(f"v_sub_f32 v{m}, v{m}, v{vT1}")
        e(f"v_lshrrev_b32 v{m+1}, 16, v{m}")
        e(f"v_lshrrev_b32 v{vT0}, 16, v{vT0}")
        e(f"v_or_b32 v{m}, v{vT0}, v{vT1}")
    e(f"s_mov_b32 s{sMode}, 1")
    e("s_branch L_restart")

    txt = HEADER + f"; @launch grid=(256,1,1) block=(512,1,1) lds={LDS_TOTAL}\n"
    txt += """.amdgcn_target "amdgcn-amd-amdhsa--gfx950"
.text
.globl standalone__qk_norm__prompt_kernel
.p2align 8
.type standalone__qk_norm__prompt_kernel,@function
standalone__qk_norm__prompt_kernel:
"""
    txt += "\n".join(L) + "\n"
    txt += f""".section .rodata,"a"
.p2align 6
.amdhsa_kernel standalone__qk_norm__prompt_kernel
  .amdhsa_next_free_vgpr {NV}
  .amdhsa_next_free_sgpr 96
  .amdhsa_accum_offset {(NV+3)//4*4}
  .amdhsa_group_segment_fixed_size 0
  .amdhsa_kernarg_size 56
  .amdhsa_user_sgpr_count 2
  .amdhsa_user_sgpr_kernarg_segment_ptr 1
  .amdhsa_system_sgpr_workgroup_id_x 1
.end_amdhsa_kernel
"""
    return txt

if __name__ == "__main__":
    opt = Opt()
    out = sys.argv[1]
    for a in sys.argv[2:]:
        k, v = a.split("=", 1)
        assert hasattr(opt, k), k
        setattr(opt, k, eval(v))
    open(out, "w").write(gen(opt))
```

```python
import sys, re

HEADER = """; Kernarg layout for this problem (56 bytes, ptrs only, base s[0:1]):
"""

PAT_B = [
 "eeA3wkeeeeBkeeeeCveeeeDvee",
 "eeAveeeeBveeeeCXXeeeeDXXee",
 "eeA2wkeeeeBkeeeeCveeeeDvee",
 "eeA1veeeeBveeeeC0feeeeDqeeT",
 "eeA3wFkeeeeBkeeeeCveeeeDvee",
 "eeAveeeeByveeeeCVeeeeDUee",
 "eeA2wkeeeeBakeeeeCaveeeeDaivee",
 "eeA1iiveeeeBiveeeeC0eeeeDPee",
]
PAT_A = [
 "eeA3wkeeeeBkeeeeCveeeeDvee",
 "eeAveeeeBveeeeCYnneeeeDnnee",
 "eeA2wkteeegeBkteeegeCvteeegeDvtee",
 "egeA1vteeegeBvteeegeC0fteeegeDee",
 "eeA3wFkexexexeBkesesesesCvesseemeDvee",
 "emeAveecemeByvececemeCVececemeDUecec",
 "emeA2wkececemeBakWececeeCavWeceecceDaivee",
 "eeA1iivWeeeeBivWeeeeC0eeeeDPee",
]
PAT_T = [
 (4, 3, 6, "eeA3weeBeeeCeeeeeDnyeeee"),
 (6, 4, 7, "eeA2eeeeBeeeeCeeD1eeee"),
 (5, 6, 0, "eeAeeee0eeeeDeeeOeOeOeO"),
 (7, 5, 0, "eeAwbRRRReeeeeeeewaeeDeeee"),
]

class Opt:
    ws = False
    patT = PAT_T
    st_flags = ' sc1'
    st_lin = True
    g1prio = 3
    lazy = False
    padat = -1
    kpos = 0
    vpos = 0
    drop = ()
    padto = 0
    force_fallback = False
    patA = PAT_A
    patB = PAT_B
    prio = True
    pmap = '0123'
    p_start = 3
    sleep = 1
    stampT = (4,)

def gen(opt):
    L = []
    def e(s): L.append("    " + s)
    def lab(s): L.append(s + ":")
    def c(s): L.append("    ; " + s)

    HB = 114688
    CH = 14336
    LDS_V = 0
    LDS_K = 65536
    LDS_Q = LDS_K + 3*16384
    LDS_R = 131072
    LDS_F = LDS_R + 8*3584
    LDS_TOTAL = LDS_F + 256
    vLane, vL16, vVoff, vKw, vKr, vVr, vIdx, vT0 = 0, 1, 2, 3, 4, 5, 6, 7
    vNat, vTr, vMa, vMb, vOoff, vT1, vSS, vR = 8, 9, 10, 11, 12, 13, 14, 15
    vQ = 16
    vO = 32
    vS = 64
    vKf = 128
    vVf = 144
    vP = 176
    vTt = 192
    vB = 206
    vD = 208
    vPad = 236
    vSt, vWarm, vWd = 240, 241, 242
    vFw, vFr, vFlag, vCnt = 243, 244, 245, 246
    NV = 247
    sK, sV, sO, sR = 20, 24, 28, 48
    sWave, sHead, sQb, sG, sQg = 32, 33, 34, 35, 36
    sIter, sKnext, sVoffs, sM0V, sM0R = 37, 38, 39, 40, 41
    sT, sScale, sEps, sOoff = 42, 43, 44, 45
    sTmp, sTmp2 = 46, 47
    sExV = 52
    sRet = 54
    sMode, sAbsT = 56, 57
    sPre, sX = 58, 59
    sAlt = 60
    sMk = 64

    def vr(b, n): return f"v[{b}:{b+n-1}]"

    def wst_l():
        if not opt.ws: return []
        return ["s_memtime s[74:75]", "s_waitcnt lgkmcnt(0)", "s_sub_u32 s74, s74, s72", "s_mov_b32 m0, s70", "s_nop 0",
                f"v_writelane_b32 v{vSt}, s74, m0", "s_add_u32 s70, s70, 1"]
    def wst():
        if opt.lazy: return
        for s in wst_l(): e(s)
    def lst(k):
        if opt.padto and opt.padat == k: e("s_memrealtime s[76:77]")
        if opt.lazy: e(f"s_memtime s[{80+2*k}:{81+2*k}]")

    def rawdma_l(srd, soff, m0=None):
        r = [f"s_mov_b32 m0, s{sM0R if m0 is None else m0}", "s_nop 0"]
        for i in range(3):
            r.append(f"buffer_load_dwordx4 v{vL16}, s[{srd}:{srd+3}], s{soff} offen offset:{1024*i} lds")
        r.append("s_mov_b32 exec_hi, 0")
        r.append(f"buffer_load_dwordx4 v{vL16}, s[{srd}:{srd+3}], s{soff} offen offset:3072 lds")
        r.append("s_mov_b32 exec_hi, -1")
        return r
    def rawnext_l():
        return rawdma_l(sK, sKnext) + [f"s_add_u32 s{sKnext}, s{sKnext}, {2*CH}"]

    def vdma_l(m0=None, off=None, adv=True):
        m0 = sM0V if m0 is None else m0
        off = sVoffs if off is None else off
        r = [f"s_mov_b32 m0, s{m0}",
             f"s_mov_b64 exec, s[{sExV}:{sExV+1}]",
             f"buffer_load_dwordx4 v{vVoff}, s[{sV}:{sV+3}], s{off} offen lds",
             f"s_add_u32 m0, s{m0}, 128",
             f"s_add_u32 s{sM0V}, s{sM0V}, 0x4000" if adv else "s_nop 0",
             f"buffer_load_dwordx4 v{vVoff}, s[{sV}:{sV+3}], s{off} offen offset:896 lds",
             f"s_mov_b64 exec, -1"]
        if adv:
            r += [f"s_and_b32 s{sM0V}, s{sM0V}, 0xffff", f"s_add_u32 s{sVoffs}, s{sVoffs}, {CH}"]
        return r

    def vtwo(chunk):
        for half in range(2):
            e(f"s_add_u32 s{sTmp}, s{sM0V}, {chunk*16384 + half*8192}")
            e(f"s_add_u32 s{sTmp2}, s{sVoffs}, {chunk*CH + half*7168}")
            for t in vdma_l(m0=sTmp, off=sTmp2, adv=False): e(t)

    def k1v1(pos):
        assert opt.kpos <= opt.vpos
        if opt.kpos == pos:
            c("group 0: K1 rows into the still unused K slot 2")
            e(f"s_lshl_b32 s{sAlt}, s{sQg}, 12")
            e(f"s_add_u32 s{sAlt}, s{sAlt}, {LDS_K + 32768}")
            for t in rawdma_l(sK, sKnext, sAlt): e(t)
            e(f"s_add_u32 s{sKnext}, s{sKnext}, {2*CH}")
            e(f"s_sub_u32 s{sAlt}, s{sM0R}, s{sAlt}")
        if opt.vpos == pos:
            vtwo(1)

    nat_reads = [f"ds_read2_b64 {vr(vP+4*i,4)}, v{vNat} offset0:{2*i} offset1:{2*i+1}" for i in range(3)] + \
                [f"ds_read_b64 {vr(vP+12,2)}, v{vNat} offset:48"]
    tr_reads = [f"ds_read_b64_tr_b16 {vr(vTt+2*m,2)}, v{vTr} offset:{8*m}" for m in range(7)]
    dots = [f"v_dot2_f32_bf16 v{vSS}, v{vP+i}, v{vP+i}, {'0' if i == 0 else 'v%d' % vSS}" for i in range(14)]
    grams = [f"v_mfma_f32_4x4x4_16b_bf16 {vr(vD,4)}, {vr(vP+2*m,2)}, {vr(vP+2*m,2)}, {'0' if m == 0 else vr(vD,4)}" for m in range(7)]
    sels = [f"v_cndmask_b32 v{vSS}, v{vD if i == 0 else vSS}, v{vD+1+i}, s[{sMk+2*i}:{sMk+2*i+1}]" for i in range(3)]
    norm = [f"v_sqrt_f32 v{vSS}, v{vSS}", f"v_add_f32 v{vSS}, s{sEps}, v{vSS}", f"v_rcp_f32 v{vR}, v{vSS}",
            f"v_cvt_pk_bf16_f32 v{vR}, v{vR}, v{vR}", f"v_and_b32 v{vB}, v{vR}, v{vMa}", f"v_and_b32 v{vB+1}, v{vR}, v{vMb}"]
    smalls = [f"v_mfma_f32_4x4x4_16b_bf16 {vr(vD+4*m,4)}, {vr(vTt+2*m,2)}, {vr(vB,2)}, 0" for m in range(7)]
    cvts = [f"v_cvt_pk_bf16_f32 v{vP+i}, v{vD+2*i}, v{vD+2*i+1}" for i in range(14)]
    writes = [f"ds_write_b128 v{vKw}, {vr(vP+4*i,4)} offset:{512*i}" for i in range(4)]

    e("s_load_dwordx4 s[4:7], s[0:1], 0")
    e("s_load_dwordx4 s[8:11], s[0:1], 16")
    e("s_load_dwordx2 s[12:13], s[0:1], 32")
    e("s_cmp_ge_u32 s2, 256")
    e("s_cbranch_scc1 L_end")
    if opt.ws:
        e("s_memtime s[72:73]"); e("s_memrealtime s[76:77]"); e("s_mov_b32 s70, 0")
    if opt.padto: e("s_memrealtime s[76:77]")
    e(f"v_lshrrev_b32 v{vT0}, 6, v0")
    e(f"v_and_b32 v{vLane}, 63, v0")
    e(f"v_readfirstlane_b32 s{sWave}, v{vT0}")
    c("head = (wg&7)*4 + (wg>>6), qblk = (wg>>3)&7")
    e("s_and_b32 s3, s2, 7")
    e("s_lshl_b32 s3, s3, 2")
    e(f"s_lshr_b32 s{sHead}, s2, 6")
    e(f"s_add_u32 s{sHead}, s{sHead}, s3")
    e(f"s_bfe_u32 s{sQb}, s2, 0x30003")
    e(f"s_mov_b32 s{sMode}, 0")
    e(f"v_lshlrev_b32 v{vL16}, 4, v{vLane}")
    c("vVoff = (lane>>3)*112 + (lane&7)*16 = lane*16 - (lane>>3)*16")
    e(f"v_lshrrev_b32 v{vT0}, 3, v{vLane}")
    e(f"v_sub_u32 v{vVoff}, v{vLane}, v{vT0}")
    e(f"v_lshlrev_b32 v{vVoff}, 4, v{vVoff}")
    lab("L_restart")
    e(f"s_lshr_b32 s{sG}, s{sWave}, 2")
    e(f"s_and_b32 s{sQg}, s{sWave}, 3")
    e(f"s_mul_i32 s3, s{sHead}, {HB}")
    e(f"s_mul_i32 s{sKnext}, s{sQg}, 3584")
    e(f"s_mul_i32 s{sTmp}, s{sQb}, {CH}")
    e(f"s_add_u32 s{sOoff}, s{sTmp}, s{sKnext}")
    e(f"s_mul_i32 s{sM0R}, s{sWave}, 3584")
    e(f"s_add_u32 s{sM0R}, s{sM0R}, {LDS_R}")
    for srd in (sR, sV, sK, sO):
        e(f"s_mov_b32 s{srd+2}, {HB}")
        e(f"s_mov_b32 s{srd+3}, 0x00020000")
    e(f"s_mov_b32 s{sExV}, 0x7f7f7f7f")
    e(f"s_mov_b32 s{sExV+1}, 0x7f7f7f7f")
    e(f"s_mul_i32 s{sVoffs}, s{sQg}, 1792")
    e(f"s_lshl_b32 s{sM0V}, s{sQg}, 11")
    e(f"s_and_b32 s{sTmp2}, s{sHead}, 14")
    e(f"s_lshl_b32 s{sTmp2}, s{sTmp2}, 1")
    e(f"s_cmp_lg_u32 s{sG}, 0")
    e("s_waitcnt lgkmcnt(0)")
    e(f"s_load_dword s{sT}, s[10:11], s{sTmp2}")
    e("s_cbranch_scc1 L_st1")
    c("group 0: its Q rows")
    e(f"s_add_u32 s{sR}, s4, s3")
    e(f"s_addc_u32 s{sR+1}, s5, 0")
    for t in rawdma_l(sR, sOoff): e(t)
    for srd, p in ((sK, 6), (sV, 8)):
        e(f"s_add_u32 s{srd}, s{p}, s3")
        e(f"s_addc_u32 s{srd+1}, s{p+1}, 0")
    e("s_branch L_st2")
    lab("L_st1")
    c("group 1: K0 rows, V0 tiles qg and qg + 4")
    for srd, p in ((sK, 6), (sV, 8)):
        e(f"s_add_u32 s{srd}, s{p}, s3")
        e(f"s_addc_u32 s{srd+1}, s{p+1}, 0")
    for t in rawdma_l(sK, sKnext): e(t)
    vtwo(0)
    lab("L_st2")
    wst()
    e(f"s_add_u32 s{sO}, s12, s3")
    e(f"s_addc_u32 s{sO+1}, s13, 0")
    c("next raw chunk: group 0 -> K1, group 1 -> K2")
    e(f"s_add_u32 s{sTmp2}, s{sG}, 1")
    e(f"s_mul_i32 s{sTmp2}, s{sTmp2}, {CH}")
    e(f"s_add_u32 s{sKnext}, s{sKnext}, s{sTmp2}")
    e(f"s_mul_i32 s{sTmp2}, s{sG}, 1792")
    e(f"s_add_u32 s{sOoff}, s{sOoff}, s{sTmp2}")
    e(f"s_mov_b32 s{sEps}, 0x358637bd")
    for i in range(3):
        e(f"s_mov_b32 s{sMk+2*i}, {hex(0x11111111 << (i+1))}")
        e(f"s_mov_b32 s{sMk+2*i+1}, s{sMk+2*i}")
    c("staging addresses")
    e(f"v_mov_b32 v{vT1}, s{sM0R}")
    e(f"v_mad_u32_u24 v{vNat}, v{vLane}, 56, v{vT1}")
    e(f"v_and_b32 v{vT0}, 3, v{vLane}")
    e(f"v_bfe_u32 v{vSS}, v{vLane}, 2, 2")
    e(f"v_lshl_add_u32 v{vSS}, v{vT0}, 2, v{vSS}")
    e(f"v_and_or_b32 v{vSS}, v{vLane}, 48, v{vSS}")
    e(f"v_mad_u32_u24 v{vTr}, v{vSS}, 56, v{vT1}")
    c("diag masks: j=lane&3")
    e(f"v_lshlrev_b32 v{vSS}, 4, v{vT0}")
    e(f"v_mov_b32 v{vMa}, 0xffff")
    e(f"v_mov_b32 v{vMb}, 0")
    e(f"v_lshlrev_b64 {vr(vMa,2)}, v{vSS}, {vr(vMa,2)}")
    c("frag write address: (lane>>5)*2048 + (lane&31)*16 + qg*4096 + area")
    e(f"v_lshrrev_b32 v{vR}, 5, v{vLane}")
    e(f"v_mul_u32_u24 v{vKw}, 1536, v{vR}")
    e(f"v_add_u32 v{vKw}, v{vKw}, v{vL16}")
    e(f"s_lshl_b32 s{sTmp}, s{sQg}, 12")
    e(f"s_cmp_eq_u32 s{sG}, 0")
    e(f"s_cselect_b32 s{sTmp2}, {LDS_Q - LDS_K}, 0")
    e(f"s_add_u32 s{sTmp2}, s{sTmp2}, s{sTmp}")
    e(f"s_add_u32 s{sTmp2}, s{sTmp2}, {LDS_K}")
    e(f"v_add_u32 v{vKw}, s{sTmp2}, v{vKw}")
    c("ones pads in the V ring: lane -> slot lane>>4, pair lane&15")
    e(f"v_lshrrev_b32 v{vT1}, 4, v{vLane}")
    e(f"v_lshlrev_b32 v{vT1}, 14, v{vT1}")
    e(f"v_and_b32 v{vKr}, 15, v{vLane}")
    e(f"v_lshl_add_u32 v{vT1}, v{vKr}, 7, v{vT1}")
    e(f"s_lshl_b32 s{sTmp}, s{sWave}, 11")
    e(f"v_add_u32 v{vT1}, s{sTmp}, v{vT1}")
    e(f"v_mov_b32 v{vD}, 0x3f80")
    e(f"v_mov_b32 v{vD+1}, 0")
    e(f"v_mov_b32 v{vD+2}, 0x3f80")
    e(f"v_mov_b32 v{vD+3}, 0")
    e(f"ds_write_b128 v{vT1}, {vr(vD,4)} offset:112")
    c("progress flags: one word per wave")
    e(f"s_lshl_b32 s{sTmp}, s{sWave}, 2")
    e(f"s_add_u32 s{sTmp}, s{sTmp}, {LDS_F}")
    e(f"v_mov_b32 v{vFw}, s{sTmp}")
    e(f"ds_write_b32 v{vFw}, v{vD+1}")
    c("V transpose-read address: h'=lane>>5, g1=(lane>>4)&1, r=(lane>>2)&3, c=lane&3; ci=4*g1+c; pi=(ci>>1)+4*(ci&1)")
    e(f"v_bfe_u32 v{vSS}, v{vLane}, 4, 1")
    e(f"v_lshlrev_b32 v{vVr}, 9, v{vR}")
    e(f"v_bfe_u32 v{vT1}, v{vLane}, 3, 1")
    e(f"v_lshl_add_u32 v{vVr}, v{vT1}, 7, v{vVr}")
    e(f"v_bfe_u32 v{vT1}, v{vLane}, 2, 1")
    e(f"v_bfe_u32 v{vKr}, v{vLane}, 1, 1")
    e(f"v_lshl_add_u32 v{vKr}, v{vSS}, 1, v{vKr}")
    e(f"v_and_b32 v{vT0}, 1, v{vLane}")
    e(f"v_lshl_add_u32 v{vKr}, v{vT0}, 2, v{vKr}")
    e(f"v_cmp_eq_u32 vcc, 7, v{vKr}")
    e(f"v_mul_u32_u24 v{vT0}, 7, v{vT1}")
    e(f"v_add_u32 v{vKr}, v{vKr}, v{vT0}")
    e(f"v_add_u32 v{vT1}, 14, v{vT1}")
    e(f"v_cndmask_b32 v{vKr}, v{vKr}, v{vT1}, vcc")
    e(f"v_lshl_add_u32 v{vVr}, v{vKr}, 3, v{vVr}")
    e(f"s_lshl_b32 s{sTmp2}, s{sG}, 13")
    e(f"v_add_u32 v{vVr}, s{sTmp2}, v{vVr}")
    e(f"s_add_u32 s{sTmp2}, s{sTmp2}, {LDS_K}")
    e(f"v_add_u32 v{vKr}, s{sTmp2}, v{vL16}")
    c("output offset: (lane&31)*56 + h*32")
    e(f"v_and_b32 v{vOoff}, 31, v{vLane}")
    e(f"v_mul_u32_u24 v{vOoff}, 56, v{vOoff}")
    e(f"v_lshl_add_u32 v{vOoff}, v{vR}, 5, v{vOoff}")
    e(f"v_and_b32 v{vFr}, 7, v{vLane}")
    e(f"v_lshlrev_b32 v{vFr}, 2, v{vFr}")
    e(f"v_add_u32 v{vFr}, {LDS_F}, v{vFr}")
    e(f"v_mov_b32 v{vCnt}, 1")
    e(f"v_mov_b32 v{vIdx}, 0xdddddddd")
    for j in range(0, 32, 2): e(f"v_mov_b64 {vr(vO+j,2)}, 0")
    for j in range(8, 16, 2): e(f"v_mov_b64 {vr(vS+48+j,2)}, 0")
    for j in range(4, 8, 2): e(f"v_mov_b64 {vr(vVf+24+j,2)}, 0")
    e(f"s_cmp_lg_u32 s{sG}, 0")
    e("s_cbranch_scc1 L_st2b")
    k1v1(0)
    lab("L_st2b")
    c("t -> f32, c = t*log2e")
    e("s_waitcnt lgkmcnt(0)")
    e(f"s_bitcmp1_b32 s{sHead}, 0")
    e(f"s_cselect_b32 s{sTmp2}, 0, 16")
    e(f"s_lshl_b32 s{sT}, s{sT}, s{sTmp2}")
    e(f"s_and_b32 s{sT}, s{sT}, 0xffff0000")
    e(f"v_mov_b32 v{vT0}, 0x3fb8aa3b")
    e(f"v_mul_f32 v{vT0}, s{sT}, v{vT0}")
    e(f"s_and_b32 s{sAbsT}, s{sT}, 0x7fffffff")
    e(f"v_readfirstlane_b32 s{sScale}, v{vT0}")
    c("the shift |t|*log2e bounds every logit; it is used only while it cannot underflow a row (|t| <= 16)")
    e(f"s_cmp_gt_u32 s{sAbsT}, {'0x41800000' if not opt.force_fallback else '0'}")
    e(f"s_cselect_b32 s{sAbsT}, 1, 0")
    e(f"s_or_b32 s{sTmp2}, s{sScale}, 0x80000000")
    e(f"s_lshr_b32 s{sTmp2}, s{sTmp2}, 16")
    e(f"s_cmp_eq_u32 s{sAbsT}, 0")
    e(f"s_cselect_b32 s{sTmp2}, s{sTmp2}, 0")
    e(f"s_cmp_eq_u32 s{sG}, 0")
    e(f"s_cselect_b32 s{sTmp2}, s{sTmp2}, 0x3f803f80")
    e(f"s_cselect_b32 s{sTmp}, 0, 0x3f803f80")
    e(f"s_cselect_b32 s{sScale}, s{sScale}, 1.0")
    e(f"v_mov_b32 v{vP+14}, s{sTmp2}")
    e(f"v_mov_b32 v{vP+15}, s{sTmp}")
    e(f"s_mov_b32 s{sIter}, 0")
    e(f"s_mov_b32 s{sX}, 0x4000")
    wst()
    e(f"s_lshl_b32 s{sTmp}, s{sQg}, 12")
    e(f"s_lshl_b32 s{sTmp2}, s{sG}, 11")
    e(f"s_add_u32 s{sTmp}, s{sTmp}, s{sTmp2}")
    e(f"s_add_u32 s{sTmp}, s{sTmp}, {LDS_Q}")
    e(f"v_add_u32 v{vT1}, s{sTmp}, v{vL16}")
    e(f"v_xor_b32 v{vT0}, 0x800, v{vT1}")
    e(f"s_cmp_lg_u32 s{sG}, 0")
    e("s_cbranch_scc1 L_st3")
    e(f"s_waitcnt vmcnt({4*(opt.kpos == 0) + 4*(opt.vpos == 0)})")
    wst(); lst(0)
    k1v1(1)
    e(f"s_call_b64 s[{sRet}:{sRet+1}], L_prep")
    k1v1(2)
    wst()
    e(f"s_mov_b32 s{sScale}, 1.0")
    e(f"v_subrev_u32 v{vNat}, s{sAlt}, v{vNat}")
    e(f"v_subrev_u32 v{vTr}, s{sAlt}, v{vTr}")
    e("s_branch L_st4")
    lab("L_st3")
    e(f"s_setprio {opt.g1prio}")
    e(f"s_waitcnt vmcnt(4)")
    wst(); lst(0)
    e(f"s_call_b64 s[{sRet}:{sRet+1}], L_prep")
    wst()
    for t in rawnext_l(): e(t)
    e(f"s_waitcnt vmcnt(4)")
    lab("L_st4")
    c("own V tile from now on: chunk 2 next")
    e(f"s_mul_i32 s{sVoffs}, s{sWave}, 1792")
    e(f"s_add_u32 s{sVoffs}, s{sVoffs}, {2*CH}")
    e(f"s_lshl_b32 s{sM0V}, s{sWave}, 11")
    e(f"s_add_u32 s{sM0V}, s{sM0V}, 0x8000")
    e("s_waitcnt lgkmcnt(0)")
    wst(); lst(1)
    e("s_barrier")
    lst(2)

    def kread(tile, buf):
        o = tile * 2048
        return [f"ds_read_b128 {vr(vKf+8*buf,4)}, v{vKr} offset:{o}",
                f"ds_read_b128 {vr(vKf+8*buf+4,4)}, v{vKr} offset:{o+1024}"]
    def vread(tile, buf):
        o = tile * 2048
        return [f"ds_read_b64_tr_b16 {vr(vVf+8*buf+4*s+2*u,2)}, v{vVr} offset:{o+s*1024+u*256}" for s in range(2) for u in range(2)]
    def m1(T):
        return f"v_mfma_f32_32x32x16_bf16 {vr(vS+16*(T%4),16)}, {vr(vKf+8*((T//2)%2),4)}, {vr(vQ+8*(T%2),4)}, 0"
    def m2(T):
        return f"v_mfma_f32_32x32x16_bf16 {vr(vS+16*(T%4),16)}, {vr(vKf+8*((T//2)%2)+4,4)}, {vr(vQ+8*(T%2)+4,4)}, {vr(vS+16*(T%4),16)}"
    def sm(T, s):
        return f"v_smfmac_f32_32x32x32_bf16 {vr(vO+16*(T%2),16)}, {vr(vVf+8*((T//2)%4)+4*s,4)}, {vr(vS+16*(T%4)+8*s,8)}, v{vIdx}"
    def ex(T, j):
        r = vS + 16*(T%4) + j
        return f"v_exp_f32 v{r}, v{r}"

    e(f"s_cmp_lg_u32 s{sG}, 0")
    e("s_cbranch_scc1 L_fill0")
    c("group 0: normalise K1 first")
    e(f"v_mov_b32 v{vP+14}, 0x3f803f80")
    e(f"v_mov_b32 v{vP+15}, 0x3f803f80")
    e(f"s_setprio {opt.p_start}")
    e(f"s_waitcnt vmcnt(4)")
    e(f"s_call_b64 s[{sRet}:{sRet+1}], L_prep")
    e(f"v_add_u32 v{vNat}, s{sAlt}, v{vNat}")
    e(f"v_add_u32 v{vTr}, s{sAlt}, v{vTr}")
    e(f"s_waitcnt vmcnt(0)")
    lab("L_fill0")
    lst(3)
    c("Q fragments and the first K / V fragments")
    e(f"ds_read_b128 {vr(vQ,4)}, v{vT0}")
    e(kread(0, 0)[0])
    e(f"ds_read_b128 {vr(vQ+4,4)}, v{vT0} offset:1024")
    e(kread(0, 0)[1])
    e(f"ds_read_b128 {vr(vQ+8,4)}, v{vT1}")
    e(f"ds_read_b128 {vr(vQ+12,4)}, v{vT1} offset:1024")
    e(f"s_cmp_lg_u32 s{sAbsT}, 0")
    e("s_cbranch_scc1 L_special")
    lab("L_fill")
    lst(4)
    e("s_waitcnt lgkmcnt(4)")
    e(m1(0))
    lst(5)
    v0 = vread(0, 0); k1 = kread(1, 1); v1 = vread(1, 1)
    e(v0[0])
    e("s_waitcnt lgkmcnt(3)")
    e(m2(0))
    e(v0[1]); e(v0[2])
    e("s_waitcnt lgkmcnt(3)")
    e(m1(1))
    e(v0[3]); e(k1[0])
    e(m2(1))
    lst(6)
    e(k1[1])
    e(f"ds_write_b32 v{vFw}, v{vCnt}")
    for t in v1: e(t)
    lst(7)
    for t in vdma_l(): e(t)
    wst(); lst(8)
    e(f"s_cmp_eq_u32 s{sG}, 0")
    e("s_cbranch_scc1 L_B")

    def build_half(name, pats):
        ops = []
        q = dict(n=list(nat_reads), t=list(tr_reads), g=list(grams), x=list(sels), s=list(norm), m=list(smalls), c=list(cvts), W=list(writes))
        cnt = dict(n=0, t=0, g=0, x=0, s=0, m=0, c=0, W=0, X=0)
        def add(t, lid=None, needs=()): ops.append((t, lid, list(needs)))
        for T in range(8):
            j = T // 2
            if opt.ws and T in opt.stampT:
                for s in wst_l(): add(s)
            if T % 2 == 0:
                rd_k = kread((j + 2) % 4, j % 2); rd_v = vread((j + 2) % 4, (j + 2) % 4)
                ki = vi = 0
            ei = 0
            for ch in pats[T]:
                if ch == 'e': add(ex(T, ei)); ei += 1
                elif ch == 'A':
                    add(sm(T - 1, 1), needs=[('v', ((T-1)//2), 2), ('v', ((T-1)//2), 3)])
                elif ch == 'B': add(m1(T + 2), needs=[('k', j + 1, 0)])
                elif ch == 'C': add(m2(T + 2), needs=[('k', j + 1, 1)])
                elif ch == 'D': add(sm(T, 0), needs=[('v', j, 0), ('v', j, 1)])
                elif ch == 'k': add(rd_k[ki], lid=('k', j + 2, ki)); ki += 1
                elif ch == 'v': add(rd_v[vi], lid=('v', j + 2, vi)); vi += 1
                elif ch == 'w': add("WAIT")
                elif ch == 'n': add(q['n'][cnt['n']], lid=('n', 0, cnt['n'])); cnt['n'] += 1
                elif ch == 't': add(q['t'][cnt['t']], lid=('t', 0, cnt['t'])); cnt['t'] += 1
                elif ch in '0123':
                    if opt.prio: add(f"s_setprio {opt.pmap[int(ch)]}")
                elif ch == 'g': add(q['g'][cnt['g']], needs=[('n', 0, cnt['g'] // 2)]); cnt['g'] += 1
                elif ch == 'x': assert cnt['g'] == 7; add(q['x'][cnt['x']]); cnt['x'] += 1
                elif ch == 's': assert cnt['x'] == 3; add(q['s'][cnt['s']]); cnt['s'] += 1
                elif ch == 'm': assert cnt['s'] == 6; add(q['m'][cnt['m']], needs=[('t', 0, cnt['m'])]); cnt['m'] += 1
                elif ch == 'c': assert cnt['m'] > cnt['c'] // 2; add(q['c'][cnt['c']]); cnt['c'] += 1
                elif ch == 'W':
                    assert cnt['c'] >= min(14, 4*cnt['W'] + 4)
                    add(q['W'][cnt['W']], lid=('W', 0, cnt['W'])); cnt['W'] += 1
                    if cnt['W'] == 4: pending_xor = True
                elif ch == 'X':
                    l = rawnext_l()
                    parts = [l[0:3], l[3:4], l[4:5], l[5:]]
                    for t in parts[cnt['X']]: add(t)
                    cnt['X'] += 1
                elif ch == 'Y': add("s_waitcnt vmcnt(2)")
                elif ch == 'V':
                    add(f"s_mov_b32 m0, s{sM0V}")
                    add(f"s_mov_b64 exec, s[{sExV}:{sExV+1}]")
                    add(f"buffer_load_dwordx4 v{vVoff}, s[{sV}:{sV+3}], s{sVoffs} offen lds")
                    add(f"s_mov_b64 exec, -1")
                elif ch == 'U':
                    add(f"s_add_u32 m0, s{sM0V}, 128")
                    add(f"s_mov_b64 exec, s[{sExV}:{sExV+1}]")
                    add(f"buffer_load_dwordx4 v{vVoff}, s[{sV}:{sV+3}], s{sVoffs} offen offset:896 lds")
                    add(f"s_mov_b64 exec, -1")
                elif ch == 'q': add(f"s_cmp_eq_u32 s{sIter}, 7")
                elif ch == 'T': add("s_cbranch_scc1 L_tail")
                elif ch == 'y': add("s_waitcnt vmcnt(0)")
                elif ch == 'f': add(f"ds_read_b32 v{vFlag}, v{vFr}", lid=('f', 0, 0))
                elif ch == 'F':
                    add(f"v_cmp_lt_u32 vcc, v{vFlag}, v{vCnt}", needs=[('f', 0, 0)])
                    add(f"v_xor_b32 v{vKr}, s{sX}, v{vKr}")
                    add(f"v_xor_b32 v{vVr}, s{sX}, v{vVr}")
                    add(f"s_cbranch_vccnz L_spin{name}")
                    add(f"L_back{name}:")
                    add(f"v_add_u32 v{vCnt}, 1, v{vCnt}")
                    add(f"s_xor_b32 s{sX}, s{sX}, 0x8000")
                elif ch == 'i':
                    it = [f"s_add_u32 s{sIter}, s{sIter}, 1", f"s_cmp_ge_u32 s{sIter}, 5",
                          f"s_cselect_b32 s{sV+2}, 0, s{sV+2}", f"s_mov_b32 s{sK+2}, s{sV+2}"]
                    add(it[cnt.setdefault('i', 0)]); cnt['i'] += 1
                elif ch == 'a':
                    adv = [f"s_add_u32 s{sM0V}, s{sM0V}, 0x4000", f"s_and_b32 s{sM0V}, s{sM0V}, 0xffff",
                           f"s_add_u32 s{sVoffs}, s{sVoffs}, {CH}"]
                    add(adv[cnt.setdefault('a', 0)]); cnt['a'] += 1
                elif ch == 'P':
                    add(f"ds_write_b32 v{vFw}, v{vCnt}", lid=('P', 0, 0))
                    if name == 'A':
                        assert cnt['W'] == 4
                        add(f"v_xor_b32 v{vKw}, 0x8000, v{vKw}")
                else: raise ValueError(ch)
            assert ei == 16, (name, T, ei)
            if T % 2 == 1: assert ki == 2 and vi == 4
        if name == 'A':
            assert cnt == dict(n=4, t=7, g=7, x=3, s=6, m=7, c=14, W=4, X=0, a=3, i=4), cnt
        return ops

    halves = {'A': build_half('A', opt.patA), 'B': build_half('B', opt.patB)}
    def shift(ops):
        out = []
        for t, lid, needs in ops:
            if lid is not None:
                lid = (lid[0], lid[1] - 4, lid[2]) if lid[0] in 'kv' else (lid[0], -1, lid[2])
            out.append((t, lid, []))
        return out
    def resolve(name):
        ops = halves[name]
        res = {}
        for pred in 'AB':
            seq = shift(halves[pred]) + ops
            base = len(seq) - len(ops)
            pos = {lid: i for i, (t, lid, n) in enumerate(seq) if lid is not None}
            waits = [i for i in range(base, len(seq)) if seq[i][0] == "WAIT"]
            covered = -1
            covered = pos[('k', 0, 1)]
            for i in range(base, len(seq)):
                t, lid, needs = seq[i]
                if t == "WAIT":
                    nxt = min([w for w in waits if w > i] + [len(seq)])
                    need = [pos[x] for k in range(i, nxt) for x in seq[k][2] if x in pos]
                    tgt = max(need + [covered])
                    assert tgt < i, ("wait placed before its load", name, seq[tgt][0])
                    n = sum(1 for k in range(tgt + 1, i) if seq[k][1] is not None)
                    res[i - base] = min(res.get(i - base, 15), n)
                    covered = tgt
                for x in needs:
                    if x in pos: assert pos[x] <= covered, ("uncovered", name, t, x)
                    else: assert x[0] == 'v' and x[1] < -2 or x[1] <= -2, x
        out = [(f"s_waitcnt lgkmcnt({res[i]})" if t == "WAIT" else t) for i, (t, lid, n) in enumerate(ops)]
        return [t for t in out if not any(re.search(d, t) for d in opt.drop)]

    L.append(".p2align 3")
    lab("L_A")
    for t in resolve('A'):
        (L.append(t) if t.endswith(":") else e(t))
    lab("L_B")
    for t in resolve('B'):
        (L.append(t) if t.endswith(":") else e(t))
    e(f"s_cmp_lt_u32 s{sIter}, 6")
    e("s_cbranch_scc1 L_A")
    e("s_branch L_B")
    lab("L_tail")
    c("last two tiles; local block 0 goes to the partner wave, local block 1 is finished here")
    e(f"s_lshl_b32 s{sTmp}, s{sWave}, 12")
    e(f"s_add_u32 s{sTmp}, s{sTmp}, {LDS_K}")
    e(f"v_add_u32 v{vT0}, s{sTmp}, v{vL16}")
    e(f"v_xor_b32 v{vT1}, 0x4000, v{vT0}")
    if opt.st_lin:
        e(f"v_add_u32 v{vOoff}, s{sM0R}, v{vOoff}")
        e(f"v_add_u32 v{vSS}, s{sM0R}, v{vL16}")
    no = nr = 0
    vF = vO + 16
    for T, Tp, Tn, pat in opt.patT:
        ei = 0
        for ch in pat:
            if ch == 'e': e(ex(T, ei)); ei += 1
            elif ch == 'A': e(sm(Tp, 1))
            elif ch == 'B': e(m1(Tn))
            elif ch == 'C': e(m2(Tn))
            elif ch == 'D': assert ei >= 10; e(sm(T, 0))
            elif ch == 'w': e("s_waitcnt lgkmcnt(0)")
            elif ch == 'y': e("s_waitcnt vmcnt(0)")
            elif ch == 'n': e("s_nop 0")
            elif ch == 'b': e("s_barrier")
            elif ch in '0123':
                if opt.prio: e(f"s_setprio {opt.pmap[int(ch)]}")
            elif ch == 'O':
                e(f"ds_write_b128 v{vT0}, {vr(vO+4*no,4)} offset:{1024*no}"); no += 1
            elif ch == 'R':
                e(f"ds_read_b128 {vr(vD+4*nr,4)}, v{vT1} offset:{1024*nr}"); nr += 1
            elif ch == 'a':
                for j in range(0, 16, 2):
                    e(f"v_pk_add_f32 {vr(vF+j,2)}, {vr(vF+j,2)}, {vr(vD+j,2)}")
            else: raise ValueError(ch)
        assert ei == 16
    assert no == 4 and nr == 4
    e("s_nop 1")
    e(sm(7, 1))
    wst()
    e("s_nop 11")
    e(f"v_mov_b32 v{vT0}, v{vF+12}")
    e(f"v_mov_b32 v{vT1}, v{vF+12}")
    e("s_nop 1")
    e(f"v_permlane32_swap_b32 v{vT0}, v{vT1}")
    e(f"v_rcp_f32 v{vB}, v{vT1}")
    e("s_nop 0")
    if True:
        c("rows -> own staging buffer -> whole lines")
        for j in range(4):
            e(f"v_pk_mul_f32 {vr(vF+4*j,2)}, {vr(vF+4*j,2)}, {vr(vB,2)} op_sel_hi:[1,0]")
            e(f"v_pk_mul_f32 {vr(vF+4*j+2,2)}, {vr(vF+4*j+2,2)}, {vr(vB,2)} op_sel_hi:[1,0]")
            e(f"v_cvt_pk_bf16_f32 v{vP+2*j}, v{vF+4*j}, v{vF+4*j+1}")
            e(f"v_cvt_pk_bf16_f32 v{vP+2*j+1}, v{vF+4*j+2}, v{vF+4*j+3}")
            if j == 3: e("s_mov_b32 exec_hi, 0")
            e(f"ds_write_b64 v{vOoff}, {vr(vP+2*j,2)} offset:{8*j}")
        e("s_mov_b32 exec_hi, -1")
        e(f"ds_read_b128 {vr(vD,4)}, v{vSS}")
        e(f"ds_read_b128 {vr(vD+4,4)}, v{vSS} offset:1024")
        e("s_waitcnt lgkmcnt(1)")
        e(f"buffer_store_dwordx4 {vr(vD,4)}, v{vL16}, s[{sO}:{sO+3}], s{sOoff} offen{opt.st_flags}")
        e("s_mov_b32 exec_hi, 0xffff")
        e("s_waitcnt lgkmcnt(0)")
        e(f"buffer_store_dwordx4 {vr(vD+4,4)}, v{vL16}, s[{sO}:{sO+3}], s{sOoff} offen offset:1024{opt.st_flags}")
    if opt.ws:
        e("s_mov_b64 exec, -1")
        if opt.lazy:
            lst(9)
            e("s_waitcnt lgkmcnt(0)")
            for k in range(10):
                e(f"s_sub_u32 s74, s{80+2*k}, s72")
                e(f"v_writelane_b32 v{vSt}, s74, {k}")
            e("s_mov_b32 s70, 10")
        wst()
        e("s_waitcnt vmcnt(0)")
        wst()
        e("s_memrealtime s[78:79]")
        e("s_load_dwordx2 s[80:81], s[0:1], 48")
        e("s_waitcnt lgkmcnt(0)")
        e("s_mov_b32 s82, 0x1000000"); e("s_mov_b32 s83, 0x00020000")
        e(f"v_writelane_b32 v{vSt}, s70, 31")
        e(f"v_writelane_b32 v{vSt}, s76, 30")
        e(f"v_writelane_b32 v{vSt}, s78, 29")
        e(f"s_lshl_b32 s3, s2, 3"); e(f"s_add_u32 s3, s3, s{sWave}"); e("s_lshl_b32 s3, s3, 7")
        e(f"v_lshlrev_b32 v1, 2, v{vLane}")
        e("s_mov_b32 exec_hi, 0")
        e(f"buffer_store_dword v{vSt}, v1, s[80:83], s3 offen")
    if opt.padto:
        e("s_waitcnt vmcnt(0)")
        lab("L_pspin")
        e("s_memrealtime s[78:79]")
        e("s_waitcnt lgkmcnt(0)")
        e("s_sub_u32 s84, s78, s76")
        e(f"s_cmp_lt_u32 s84, {opt.padto}")
        e("s_cbranch_scc1 L_pspin")
    lab("L_end")
    e("s_endpgm")

    for name in 'AB':
        lab(f"L_spin{name}")
        c("some wave has not yet published the next chunk: wait for it")
        e(f"s_sleep {opt.sleep}")
        e(f"ds_read_b32 v{vFlag}, v{vFr}")
        e("s_waitcnt lgkmcnt(0)")
        e(f"v_cmp_lt_u32 vcc, v{vFlag}, v{vCnt}")
        e(f"s_cbranch_vccnz L_spin{name}")
        e(f"s_branch L_back{name}")

    lab("L_prep")
    for m in range(7): e(f"ds_read_b64 {vr(vP+2*m,2)}, v{vNat} offset:{8*m}")
    for s in tr_reads: e(s)
    for m in range(7):
        e(f"s_waitcnt lgkmcnt({13 - m})")
        if m > 0: e("s_nop 0")
        e(grams[m])
    e("s_nop 4")
    for t in sels: e(t)
    e(norm[0]); e("s_nop 0"); e(norm[1]); e(norm[2]); e("s_nop 0")
    e(f"v_mul_f32 v{vR}, s{sScale}, v{vR}")
    for s in norm[3:]: e(s)
    e("s_waitcnt lgkmcnt(0)")
    e("s_nop 0")
    for s in smalls: e(s)
    for i in range(14):
        e(cvts[i])
        if i % 4 == 3: e(writes[i // 4])
    e(writes[3])
    e(f"v_xor_b32 v{vKw}, 0x8000, v{vKw}")
    e(f"s_setpc_b64 s[{sRet}:{sRet+1}]")

    lab("L_special")
    e(f"s_cmp_eq_u32 s{sMode}, 0")
    e("s_cbranch_scc1 L_maxpass")
    c("second pass: put -max into the pad slots of the Q fragments (lanes 32..63 of registers 6, 7)")
    e("s_waitcnt lgkmcnt(0)")
    e("s_mov_b32 exec_lo, 0")
    e(f"v_mov_b32 v{vQ+6}, v{vPad}")
    e(f"v_mov_b32 v{vQ+7}, v{vPad+1}")
    e(f"v_mov_b32 v{vQ+14}, v{vPad+2}")
    e(f"v_mov_b32 v{vQ+15}, v{vPad+3}")
    e("s_mov_b32 exec_lo, -1")
    e("s_nop 1")
    e("s_branch L_fill")
    lab("L_maxpass")
    mx = [vPad, vPad + 2]
    e(f"v_mov_b32 v{mx[0]}, 0xff800000")
    e(f"v_mov_b32 v{mx[1]}, 0xff800000")
    lab("L_mloop")
    c("chunk sIter is in LDS; group (sIter & 1) normalises chunk sIter + 1 (chunk 1 is done, K2 is staged)")
    e(f"s_add_u32 s{sTmp}, s{sIter}, s{sG}")
    e(f"s_bitcmp1_b32 s{sTmp}, 0")
    e("s_cbranch_scc1 L_mnoprep")
    e(f"s_cmp_eq_u32 s{sIter}, 7")
    e("s_cbranch_scc1 L_mnoprep")
    e(f"s_cmp_eq_u32 s{sIter}, 0")
    e("s_cbranch_scc1 L_mnoprep")
    e(f"s_cmp_eq_u32 s{sIter}, 1")
    e("s_cbranch_scc1 L_mhave")
    for t in rawnext_l(): e(t)
    lab("L_mhave")
    e(f"s_waitcnt vmcnt(0) lgkmcnt(0)")
    e(f"s_call_b64 s[{sRet}:{sRet+1}], L_prep")
    lab("L_mnoprep")
    for j in range(4):
        for s in kread(j, 0): e(s)
        e("s_waitcnt lgkmcnt(0)")
        e(m1(0)); e(m2(0)); e(m1(1)); e(m2(1))
        e("s_nop 15")
        for b in range(2):
            for i in range(0, 16, 2):
                e(f"v_max3_f32 v{mx[b]}, v{vS+16*b+i}, v{vS+16*b+i+1}, v{mx[b]}")
    e("s_barrier")
    e(f"v_xor_b32 v{vKr}, s{sX}, v{vKr}")
    e(f"s_xor_b32 s{sX}, s{sX}, 0x8000")
    e(f"s_add_u32 s{sIter}, s{sIter}, 1")
    e(f"s_cmp_lt_u32 s{sIter}, 8")
    e("s_cbranch_scc1 L_mloop")
    c("combine the two lane halves and the partner wave (whose local blocks are swapped)")
    for b in range(2):
        e(f"v_mov_b32 v{vT0}, v{mx[b]}")
        e("s_nop 1")
        e(f"v_permlane32_swap_b32 v{mx[b]}, v{vT0}")
        e("s_nop 1")
        e(f"v_max_f32 v{mx[b]}, v{mx[b]}, v{vT0}")
    e(f"s_lshl_b32 s{sTmp}, s{sWave}, 12")
    e(f"s_add_u32 s{sTmp}, s{sTmp}, {LDS_K}")
    e(f"v_add_u32 v{vT0}, s{sTmp}, v{vL16}")
    e(f"v_xor_b32 v{vT1}, 0x4000, v{vT0}")
    e("s_waitcnt vmcnt(0) lgkmcnt(0)")
    e(f"ds_write_b32 v{vT0}, v{mx[0]}")
    e(f"ds_write_b32 v{vT0}, v{mx[1]} offset:4")
    e("s_waitcnt lgkmcnt(0)")
    e("s_barrier")
    e(f"ds_read_b64 {vr(vD,2)}, v{vT1}")
    e("s_waitcnt lgkmcnt(0)")
    e("s_barrier")
    e(f"s_mov_b32 s{sTmp}, 0xffff0000")
    for b in range(2):
        m = mx[b]
        e(f"v_max_f32 v{m}, v{m}, v{vD+1-b}")
        c("split -max into three bf16 parts")
        e(f"v_sub_f32 v{m}, 0, v{m}")
        e(f"v_and_b32 v{vT0}, s{sTmp}, v{m}")
        e(f"v_sub_f32 v{m}, v{m}, v{vT0}")
        e(f"v_and_b32 v{vT1}, s{sTmp}, v{m}")
        e(f"v_sub_f32 v{m}, v{m}, v{vT1}")
        e(f"v_lshrrev_b32 v{m+1}, 16, v{m}")
        e(f"v_lshrrev_b32 v{vT0}, 16, v{vT0}")
        e(f"v_or_b32 v{m}, v{vT0}, v{vT1}")
    e(f"s_mov_b32 s{sMode}, 1")
    e("s_branch L_restart")

    txt = HEADER + f"; @launch grid=(256,1,1) block=(512,1,1) lds={LDS_TOTAL}\n"
    txt += """.amdgcn_target "amdgcn-amd-amdhsa--gfx950"
.text
.globl standalone__qk_norm__prompt_kernel
.p2align 8
.type standalone__qk_norm__prompt_kernel,@function
standalone__qk_norm__prompt_kernel:
"""
    txt += "\n".join(L) + "\n"
    txt += f""".section .rodata,"a"
.p2align 6
.amdhsa_kernel standalone__qk_norm__prompt_kernel
  .amdhsa_next_free_vgpr {NV}
  .amdhsa_next_free_sgpr {102 if (opt.ws or opt.padto) else 72}
  .amdhsa_accum_offset {(NV+3)//4*4}
  .amdhsa_group_segment_fixed_size 0
  .amdhsa_kernarg_size 56
  .amdhsa_user_sgpr_count 2
  .amdhsa_user_sgpr_kernarg_segment_ptr 1
  .amdhsa_system_sgpr_workgroup_id_x 1
.end_amdhsa_kernel
"""
    return txt

if __name__ == "__main__":
    opt = Opt()
    out = sys.argv[1]
    for a in sys.argv[2:]:
        k, v = a.split("=", 1)
        assert hasattr(opt, k), k
        setattr(opt, k, eval(v))
    open(out, "w").write(gen(opt))
```

```python
import sys, re

HEADER = """; Kernarg layout for this problem (56 bytes, ptrs only, base s[0:1]):
"""

PAT_B = [
 "eeA3wkeeeeBkeeeeCveeeeDvee",
 "eeAveeeeBveeeeCXXeeeeDXXee",
 "eeA2wkeeeeBkeeeeCveeeeDpvee",
 "eeA1veeeeBveeeeC0feeeeDqeeT",
 "eeA3wFkeeeeBkeeeeCveeeeDvee",
 "eeAveeeeByveeeeCVeeeeDUee",
 "eeA2wkeeeeBakeeeeCaveeeeDaivee",
 "eeA1iiveeeeBiveeeeC0eeeeDPee",
]
PAT_A = [
 "eeA3wkeeeeBkeeeeCveeeeDvee",
 "eeAveeeeBveeeeCYpnneeeeDnnee",
 "eeA2wkteeegeBkteeegeCvteeegeDvtee",
 "egeA1vteeegeBvteeegeC0fteeegeDee",
 "eeA3wFkexexexeBkesesesesCvesseemeDvee",
 "emeAveecemeByvececemeCVececemeDUecec",
 "emeA2wkececemeBakWececeeCavWeceecceDaivee",
 "eeA1iivWeeeeBivWeeeeC0eeeeDPee",
]
PAT_T = [
 (4, 3, 6, "eeA3weeBeeeCeeeeeDnyeeee"),
 (6, 4, 7, "eeA2eeeeBeeeeCeeD1eeee"),
 (5, 6, 0, "eeAeeee0eeeeDeeeOeOeOeO"),
 (7, 5, 0, "eeAwbRRRReeeeeeeewaeeDeeee"),
]

class Opt:
    ws = False
    patT = PAT_T
    st_flags = ' sc1'
    st_lin = True
    g1prio = 3
    lazy = False
    cpf = 0
    padat = -1
    qdelay = 0
    v1pos = 1
    v0pos = 1
    drop = ()
    padto = 0
    force_fallback = False
    patA = PAT_A
    patB = PAT_B
    prio = True
    pmap = '0123'
    p_start = 2
    sleep = 1
    stampT = (4,)

def gen(opt):
    L = []
    def e(s): L.append("    " + s)
    def lab(s): L.append(s + ":")
    def c(s): L.append("    ; " + s)

    HB = 114688
    CH = 14336
    LDS_V = 0
    LDS_K = 65536
    LDS_Q = LDS_K + 3*16384
    LDS_R = 131072
    LDS_F = LDS_R + 8*3584
    LDS_TOTAL = LDS_F + 256
    vLane, vL16, vVoff, vKw, vKr, vVr, vIdx, vT0 = 0, 1, 2, 3, 4, 5, 6, 7
    vNat, vTr, vMa, vMb, vOoff, vT1, vSS, vR = 8, 9, 10, 11, 12, 13, 14, 15
    vQ = 16
    vO = 32
    vS = 64
    vKf = 128
    vVf = 144
    vP = 176
    vTt = 192
    vB = 206
    vD = 208
    vPad = 236
    vSt, vTv, vNq = 240, 241, 242
    vTq = 247
    vFw, vFr, vFlag, vCnt = 243, 244, 245, 246
    NV = 248
    sK, sV, sO, sR = 20, 24, 28, 48
    sWave, sHead, sQb, sG, sQg = 32, 33, 34, 35, 36
    sIter, sKnext, sVoffs, sM0V, sM0R = 37, 38, 39, 40, 41
    sT, sScale, sEps, sOoff = 42, 43, 44, 45
    sTmp, sTmp2 = 46, 47
    sExV = 52
    sRet = 54
    sMode, sAbsT = 56, 57
    sPre, sX = 58, 59
    sAlt = 60
    sMk = 64

    def vr(b, n): return f"v[{b}:{b+n-1}]"

    def wst_l():
        if not opt.ws: return []
        return ["s_memtime s[74:75]", "s_waitcnt lgkmcnt(0)", "s_sub_u32 s74, s74, s72", "s_mov_b32 m0, s70", "s_nop 0",
                f"v_writelane_b32 v{vSt}, s74, m0", "s_add_u32 s70, s70, 1"]
    def wst():
        if opt.lazy: return
        for s in wst_l(): e(s)
    def lst(k):
        if opt.padto and opt.padat == k: e("s_memrealtime s[76:77]")
        if opt.lazy: e(f"s_memtime s[{80+2*k}:{81+2*k}]")

    def rawdma_l(srd, soff, m0=None):
        r = [f"s_mov_b32 m0, s{sM0R if m0 is None else m0}", "s_nop 0"]
        for i in range(3):
            r.append(f"buffer_load_dwordx4 v{vL16}, s[{srd}:{srd+3}], s{soff} offen offset:{1024*i} lds")
        r.append("s_mov_b32 exec_hi, 0")
        r.append(f"buffer_load_dwordx4 v{vL16}, s[{srd}:{srd+3}], s{soff} offen offset:3072 lds")
        r.append("s_mov_b32 exec_hi, -1")
        return r
    def rawnext_l():
        return rawdma_l(sK, sKnext) + [f"s_add_u32 s{sKnext}, s{sKnext}, {2*CH}"]

    def vdma_l(m0=None, off=None, adv=True):
        m0 = sM0V if m0 is None else m0
        off = sVoffs if off is None else off
        r = [f"s_mov_b32 m0, s{m0}",
             f"s_mov_b64 exec, s[{sExV}:{sExV+1}]",
             f"buffer_load_dwordx4 v{vVoff}, s[{sV}:{sV+3}], s{off} offen lds",
             f"s_add_u32 m0, s{m0}, 128",
             f"s_add_u32 s{sM0V}, s{sM0V}, 0x4000" if adv else "s_nop 0",
             f"buffer_load_dwordx4 v{vVoff}, s[{sV}:{sV+3}], s{off} offen offset:896 lds",
             f"s_mov_b64 exec, -1"]
        if adv:
            r += [f"s_and_b32 s{sM0V}, s{sM0V}, 0xffff", f"s_add_u32 s{sVoffs}, s{sVoffs}, {CH}"]
        return r

    nat_reads = [f"ds_read2_b64 {vr(vP+4*i,4)}, v{vNat} offset0:{2*i} offset1:{2*i+1}" for i in range(3)] + \
                [f"ds_read_b64 {vr(vP+12,2)}, v{vNat} offset:48"]
    tr_reads = [f"ds_read_b64_tr_b16 {vr(vTt+2*m,2)}, v{vTr} offset:{8*m}" for m in range(7)]
    dots = [f"v_dot2_f32_bf16 v{vSS}, v{vP+i}, v{vP+i}, {'0' if i == 0 else 'v%d' % vSS}" for i in range(14)]
    grams = [f"v_mfma_f32_4x4x4_16b_bf16 {vr(vD,4)}, {vr(vP+2*m,2)}, {vr(vP+2*m,2)}, {'0' if m == 0 else vr(vD,4)}" for m in range(7)]
    sels = [f"v_cndmask_b32 v{vSS}, v{vD if i == 0 else vSS}, v{vD+1+i}, s[{sMk+2*i}:{sMk+2*i+1}]" for i in range(3)]
    norm = [f"v_sqrt_f32 v{vSS}, v{vSS}", f"v_add_f32 v{vSS}, s{sEps}, v{vSS}", f"v_rcp_f32 v{vR}, v{vSS}",
            f"v_cvt_pk_bf16_f32 v{vR}, v{vR}, v{vR}", f"v_and_b32 v{vB}, v{vR}, v{vMa}", f"v_and_b32 v{vB+1}, v{vR}, v{vMb}"]
    smalls = [f"v_mfma_f32_4x4x4_16b_bf16 {vr(vD+4*m,4)}, {vr(vTt+2*m,2)}, {vr(vB,2)}, 0" for m in range(7)]
    cvts = [f"v_cvt_pk_bf16_f32 v{vP+i}, v{vD+2*i}, v{vD+2*i+1}" for i in range(14)]
    writes = [f"ds_write_b128 v{vKw}, {vr(vP+4*i,4)} offset:{512*i}" for i in range(4)]

    e("s_load_dwordx4 s[4:7], s[0:1], 0")
    e("s_load_dwordx4 s[8:11], s[0:1], 16")
    e("s_load_dwordx2 s[12:13], s[0:1], 32")
    e("s_cmp_ge_u32 s2, 256")
    e("s_cbranch_scc1 L_end")
    if opt.ws:
        e("s_memtime s[72:73]"); e("s_memrealtime s[76:77]"); e("s_mov_b32 s70, 0")
    if opt.padto: e("s_memrealtime s[76:77]")
    e(f"v_lshrrev_b32 v{vT0}, 6, v0")
    e(f"v_and_b32 v{vLane}, 63, v0")
    e(f"v_readfirstlane_b32 s{sWave}, v{vT0}")
    if opt.cpf:
        c("pull the kernel's own code into L2 while the first data is on its way")
        e("s_getpc_b64 s[14:15]")
        lab("L_pc")
        e(f"v_min_u32 v{vT1}, (L_special - L_pc) / 128, v{vLane}")
        e(f"v_lshlrev_b32 v{vT1}, 7, v{vT1}")
        e(f"global_load_dword v{vS}, v{vT1}, s[14:15]")
    c("head = (wg&7)*4 + (wg>>6), qblk = (wg>>3)&7")
    e("s_and_b32 s3, s2, 7")
    e("s_lshl_b32 s3, s3, 2")
    e(f"s_lshr_b32 s{sHead}, s2, 6")
    e(f"s_add_u32 s{sHead}, s{sHead}, s3")
    e(f"s_bfe_u32 s{sQb}, s2, 0x30003")
    e(f"s_mov_b32 s{sMode}, 0")
    e(f"v_lshlrev_b32 v{vL16}, 4, v{vLane}")
    c("vVoff = (lane>>3)*112 + (lane&7)*16 = lane*16 - (lane>>3)*16")
    e(f"v_lshrrev_b32 v{vT0}, 3, v{vLane}")
    e(f"v_sub_u32 v{vVoff}, v{vLane}, v{vT0}")
    e(f"v_lshlrev_b32 v{vVoff}, 4, v{vVoff}")
    lab("L_restart")
    e(f"s_lshr_b32 s{sG}, s{sWave}, 2")
    e(f"s_and_b32 s{sQg}, s{sWave}, 3")
    e(f"s_mul_i32 s3, s{sHead}, {HB}")
    c("first K rows: group 0 -> chunk 1, group 1 -> chunk 0")
    e(f"s_xor_b32 s{sTmp}, s{sWave}, 4")
    e(f"s_mul_i32 s{sKnext}, s{sTmp}, 3584")
    e(f"s_mul_i32 s{sM0R}, s{sWave}, 3584")
    e(f"s_add_u32 s{sM0R}, s{sM0R}, {LDS_R}")
    c("Q / output rows of this wave: qblk*256 + qg*64 + G*32")
    e(f"s_lshl_b32 s{sTmp}, s{sQb}, 3")
    e(f"s_lshl_b32 s{sTmp2}, s{sQg}, 1")
    e(f"s_add_u32 s{sTmp}, s{sTmp}, s{sTmp2}")
    e(f"s_add_u32 s{sTmp}, s{sTmp}, s{sG}")
    e(f"s_mul_i32 s{sOoff}, s{sTmp}, 1792")
    e(f"s_lshl_b32 s{sAlt}, s{sQg}, 12")
    e(f"s_add_u32 s{sAlt}, s{sAlt}, {LDS_Q}")
    e(f"s_mul_i32 s{sTmp}, s{sG}, 1792")
    e(f"s_add_u32 s{sTmp}, s{sTmp}, s{sAlt}")
    for srd in (sR, sV, sK, sO):
        e(f"s_mov_b32 s{srd+2}, {HB}")
        e(f"s_mov_b32 s{srd+3}, 0x00020000")
    e(f"s_mov_b32 s{sExV}, 0x7f7f7f7f")
    e(f"s_mov_b32 s{sExV+1}, 0x7f7f7f7f")
    e(f"s_mul_i32 s{sVoffs}, s{sWave}, 1792")
    e(f"s_lshl_b32 s{sM0V}, s{sWave}, 11")
    e(f"s_and_b32 s{sTmp2}, s{sHead}, 15")
    e(f"s_lshl_b32 s{sTmp2}, s{sTmp2}, 1")
    e(f"v_mov_b32 v{vTv}, s{sTmp2}")
    e("s_waitcnt lgkmcnt(0)")
    e(f"s_add_u32 s{sK}, s6, s3")
    e(f"s_addc_u32 s{sK+1}, s7, 0")
    for t in rawnext_l(): e(t)
    for srd, p in ((sR, 4), (sV, 8), (sO, 12)):
        e(f"s_add_u32 s{srd}, s{p}, s3")
        e(f"s_addc_u32 s{srd+1}, s{p+1}, 0")
    e(f"s_mov_b32 s{sPre}, s{sTmp}")
    def qload():
        c("this wave's half of the q-group's rows, then t")
        e(f"s_mov_b32 m0, s{sPre}")
        e("s_nop 0")
        e(f"buffer_load_dwordx4 v{vL16}, s[{sR}:{sR+3}], s{sOoff} offen lds")
        e("s_mov_b32 exec_hi, 0xffff")
        e(f"buffer_load_dwordx4 v{vL16}, s[{sR}:{sR+3}], s{sOoff} offen offset:1024 lds")
        e("s_mov_b32 exec_hi, -1")
        e(f"global_load_ushort v{vTv}, v{vTv}, s[10:11]")
        if opt.v0pos == 0:
            for t in vdma_l(): e(t)
    if opt.qdelay == 0: qload()
    wst()
    e(f"s_mov_b32 s{sEps}, 0x358637bd")
    for i in range(3):
        e(f"s_mov_b32 s{sMk+2*i}, {hex(0x11111111 << (i+1))}")
        e(f"s_mov_b32 s{sMk+2*i+1}, s{sMk+2*i}")
    c("staging addresses")
    e(f"v_mov_b32 v{vT1}, s{sM0R}")
    e(f"v_mad_u32_u24 v{vNat}, v{vLane}, 56, v{vT1}")
    e(f"v_and_b32 v{vT0}, 3, v{vLane}")
    e(f"v_bfe_u32 v{vSS}, v{vLane}, 2, 2")
    e(f"v_lshl_add_u32 v{vSS}, v{vT0}, 2, v{vSS}")
    e(f"v_and_or_b32 v{vSS}, v{vLane}, 48, v{vSS}")
    e(f"v_mad_u32_u24 v{vTr}, v{vSS}, 56, v{vT1}")
    c("Q staging addresses: local block 1 is this wave's own block G")
    e(f"s_lshl_b32 s{sTmp}, s{sG}, 5")
    e(f"s_xor_b32 s{sTmp}, s{sTmp}, 32")
    e(f"v_mov_b32 v{vT1}, s{sAlt}")
    e(f"v_xor_b32 v{vSS}, s{sTmp}, v{vSS}")
    e(f"v_mad_u32_u24 v{vTq}, v{vSS}, 56, v{vT1}")
    e(f"v_xor_b32 v{vSS}, s{sTmp}, v{vLane}")
    e(f"v_mad_u32_u24 v{vNq}, v{vSS}, 56, v{vT1}")
    c("diag masks: j=lane&3")
    e(f"v_lshlrev_b32 v{vSS}, 4, v{vT0}")
    e(f"v_mov_b32 v{vMa}, 0xffff")
    e(f"v_mov_b32 v{vMb}, 0")
    e(f"v_lshlrev_b64 {vr(vMa,2)}, v{vSS}, {vr(vMa,2)}")
    c("frag write address: (lane>>5)*2048 + (lane&31)*16 + qg*4096 + area")
    e(f"v_lshrrev_b32 v{vR}, 5, v{vLane}")
    e(f"v_mul_u32_u24 v{vKw}, 1536, v{vR}")
    e(f"v_add_u32 v{vKw}, v{vKw}, v{vL16}")
    e(f"s_xor_b32 s{sTmp2}, s{sWave}, 4")
    e(f"s_lshl_b32 s{sTmp2}, s{sTmp2}, 12")
    e(f"s_add_u32 s{sTmp2}, s{sTmp2}, {LDS_K}")
    e(f"v_add_u32 v{vKw}, s{sTmp2}, v{vKw}")
    e(f"v_mov_b32 v{vP+14}, 0x3f803f80")
    e(f"v_mov_b32 v{vP+15}, 0x3f803f80")
    if opt.qdelay == 1: qload()
    c("ones pads in the V ring: lane -> slot lane>>4, pair lane&15")
    e(f"v_lshrrev_b32 v{vT1}, 4, v{vLane}")
    e(f"v_lshlrev_b32 v{vT1}, 14, v{vT1}")
    e(f"v_and_b32 v{vKr}, 15, v{vLane}")
    e(f"v_lshl_add_u32 v{vT1}, v{vKr}, 7, v{vT1}")
    e(f"s_lshl_b32 s{sTmp}, s{sWave}, 11")
    e(f"v_add_u32 v{vT1}, s{sTmp}, v{vT1}")
    e(f"v_mov_b32 v{vD}, 0x3f80")
    e(f"v_mov_b32 v{vD+1}, 0")
    e(f"v_mov_b32 v{vD+2}, 0x3f80")
    e(f"v_mov_b32 v{vD+3}, 0")
    e(f"ds_write_b128 v{vT1}, {vr(vD,4)} offset:112")
    c("progress flags: one word per wave")
    e(f"s_lshl_b32 s{sTmp}, s{sWave}, 2")
    e(f"s_add_u32 s{sTmp}, s{sTmp}, {LDS_F}")
    e(f"v_mov_b32 v{vFw}, s{sTmp}")
    e(f"ds_write_b32 v{vFw}, v{vD+1}")
    c("V transpose-read address: h'=lane>>5, g1=(lane>>4)&1, r=(lane>>2)&3, c=lane&3; ci=4*g1+c; pi=(ci>>1)+4*(ci&1)")
    e(f"v_bfe_u32 v{vSS}, v{vLane}, 4, 1")
    e(f"v_lshlrev_b32 v{vVr}, 9, v{vR}")
    e(f"v_bfe_u32 v{vT1}, v{vLane}, 3, 1")
    e(f"v_lshl_add_u32 v{vVr}, v{vT1}, 7, v{vVr}")
    e(f"v_bfe_u32 v{vT1}, v{vLane}, 2, 1")
    e(f"v_bfe_u32 v{vKr}, v{vLane}, 1, 1")
    e(f"v_lshl_add_u32 v{vKr}, v{vSS}, 1, v{vKr}")
    e(f"v_and_b32 v{vT0}, 1, v{vLane}")
    e(f"v_lshl_add_u32 v{vKr}, v{vT0}, 2, v{vKr}")
    e(f"v_cmp_eq_u32 vcc, 7, v{vKr}")
    e(f"v_mul_u32_u24 v{vT0}, 7, v{vT1}")
    e(f"v_add_u32 v{vKr}, v{vKr}, v{vT0}")
    e(f"v_add_u32 v{vT1}, 14, v{vT1}")
    e(f"v_cndmask_b32 v{vKr}, v{vKr}, v{vT1}, vcc")
    e(f"v_lshl_add_u32 v{vVr}, v{vKr}, 3, v{vVr}")
    e(f"s_lshl_b32 s{sTmp2}, s{sG}, 13")
    e(f"v_add_u32 v{vVr}, s{sTmp2}, v{vVr}")
    e(f"s_add_u32 s{sTmp2}, s{sTmp2}, {LDS_K}")
    e(f"v_add_u32 v{vKr}, s{sTmp2}, v{vL16}")
    c("output offset: (lane&31)*56 + h*32")
    e(f"v_and_b32 v{vOoff}, 31, v{vLane}")
    e(f"v_mul_u32_u24 v{vOoff}, 56, v{vOoff}")
    e(f"v_lshl_add_u32 v{vOoff}, v{vR}, 5, v{vOoff}")
    e(f"v_and_b32 v{vFr}, 7, v{vLane}")
    e(f"v_lshlrev_b32 v{vFr}, 2, v{vFr}")
    e(f"v_add_u32 v{vFr}, {LDS_F}, v{vFr}")
    e(f"v_mov_b32 v{vCnt}, 1")
    e(f"v_mov_b32 v{vIdx}, 0xdddddddd")
    for j in range(0, 32, 2): e(f"v_mov_b64 {vr(vO+j,2)}, 0")
    for j in range(8, 16, 2): e(f"v_mov_b64 {vr(vS+48+j,2)}, 0")
    for j in range(4, 8, 2): e(f"v_mov_b64 {vr(vVf+24+j,2)}, 0")
    e(f"s_mov_b32 s{sIter}, 0")
    e(f"s_mov_b32 s{sX}, 0x4000")
    if opt.v0pos == 1:
        for t in vdma_l(): e(t)
    if opt.v1pos == 0:
        for t in vdma_l(): e(t)
    wst()
    e(f"s_waitcnt vmcnt({5 + 2*(opt.v1pos == 0)})")
    wst(); lst(3)
    e(f"s_call_b64 s[{sRet}:{sRet+1}], L_prep")
    wst(); lst(4)
    if opt.v1pos == 1:
        for t in vdma_l(): e(t)
    e(f"s_cmp_eq_u32 s{sG}, 0")
    e("s_cbranch_scc1 L_st3")
    for t in rawnext_l(): e(t)
    lab("L_st3")
    e("s_waitcnt lgkmcnt(0)")
    e("s_barrier")
    lst(5)

    def kread(tile, buf):
        o = tile * 2048
        return [f"ds_read_b128 {vr(vKf+8*buf,4)}, v{vKr} offset:{o}",
                f"ds_read_b128 {vr(vKf+8*buf+4,4)}, v{vKr} offset:{o+1024}"]
    def vread(tile, buf):
        o = tile * 2048
        return [f"ds_read_b64_tr_b16 {vr(vVf+8*buf+4*s+2*u,2)}, v{vVr} offset:{o+s*1024+u*256}" for s in range(2) for u in range(2)]
    def m1(T):
        return f"v_mfma_f32_32x32x16_bf16 {vr(vS+16*(T%4),16)}, {vr(vKf+8*((T//2)%2),4)}, {vr(vQ+4*(T%2),4)}, 0"
    def m2(T):
        return f"v_mfma_f32_32x32x16_bf16 {vr(vS+16*(T%4),16)}, {vr(vKf+8*((T//2)%2)+4,4)}, {vr(vQ+8+4*(T%2),4)}, {vr(vS+16*(T%4),16)}"
    def sm(T, s):
        return f"v_smfmac_f32_32x32x32_bf16 {vr(vO+16*(T%2),16)}, {vr(vVf+8*((T//2)%4)+4*s,4)}, {vr(vS+16*(T%4)+8*s,8)}, v{vIdx}"
    def ex(T, j):
        r = vS + 16*(T%4) + j
        return f"v_exp_f32 v{r}, v{r}"

    for t in kread(0, 0) + kread(1, 1): e(t)
    c("t has landed once only V0, V1 (and K2) are outstanding")
    e(f"s_cmp_eq_u32 s{sG}, 0")
    e("s_cbranch_scc1 L_st4")
    e("s_waitcnt vmcnt(8)")
    e("s_branch L_st5")
    lab("L_st4")
    e("s_waitcnt vmcnt(4)")
    lab("L_st5")
    lst(0)
    c("c = t*log2e")
    e(f"v_lshlrev_b32 v{vTv}, 16, v{vTv}")
    e(f"v_mul_f32 v{vT0}, 0x3fb8aa3b, v{vTv}")
    e(f"v_readfirstlane_b32 s{sAbsT}, v{vTv}")
    e(f"v_readfirstlane_b32 s{sScale}, v{vT0}")
    e(f"v_mov_b32 v{vQ+15}, 0")
    c("the shift |t|*log2e bounds every logit; it is used only while it cannot underflow a row (|t| <= 16)")
    e(f"s_and_b32 s{sAbsT}, s{sAbsT}, 0x7fffffff")
    e(f"s_or_b32 s{sTmp2}, s{sScale}, 0x80000000")
    e(f"s_lshr_b32 s{sTmp2}, s{sTmp2}, 16")
    e(f"s_cmp_gt_u32 s{sAbsT}, {'0x41800000' if not opt.force_fallback else '0'}")
    e(f"s_cselect_b32 s{sTmp2}, 0, s{sTmp2}")
    e(f"s_cselect_b32 s{sAbsT}, 1, 0")
    e(f"v_mov_b32 v{vQ+14}, s{sTmp2}")
    e(f"s_cmp_eq_u32 s{sG}, 0")
    e("s_cbranch_scc1 L_st6")
    e(f"s_setprio {opt.g1prio}")
    e("s_waitcnt vmcnt(6)")
    e("s_branch L_st7")
    lab("L_st6")
    e(f"s_setprio {opt.p_start}")
    e("s_waitcnt vmcnt(2)")
    lab("L_st7")
    wst(); lst(1)
    e("s_barrier")
    lst(2)
    c("normalise and scale the 64 Q rows straight into B fragments")
    for m in range(7): e(f"ds_read_b64 {vr(vP+2*m,2)}, v{vNq} offset:{8*m}")
    for m in range(7): e(f"ds_read_b64_tr_b16 {vr(vTt+2*m,2)}, v{vTq} offset:{8*m}")
    for m in range(7):
        e(f"s_waitcnt lgkmcnt({13 - m})")
        if m > 0: e("s_nop 0")
        e(grams[m])
    v0 = vread(0, 0); v1 = vread(1, 1)
    for t in v0: e(t)
    e("s_nop 0")
    for t in sels: e(t)
    e(norm[0]); e("s_nop 0"); e(norm[1]); e(norm[2]); e("s_nop 0")
    e(f"v_mul_f32 v{vR}, s{sScale}, v{vR}")
    for t in norm[3:]: e(t)
    e("s_waitcnt lgkmcnt(4)")
    e("s_nop 0")
    for t in smalls: e(t)
    for i in range(8):
        e(f"v_cvt_pk_bf16_f32 v{vQ+i}, v{vD+2*i}, v{vD+2*i+1}")
    for i in range(8, 14):
        e(f"v_cvt_pk_bf16_f32 v{vQ+i}, v{vD+2*i}, v{vD+2*i+1}")
        if i - 8 < 4 and False: pass
    for i in range(4):
        e(f"v_permlane32_swap_b32 v{vQ+i}, v{vQ+4+i}")
    for i in range(4):
        e(f"v_permlane32_swap_b32 v{vQ+8+i}, v{vQ+12+i}")
    e(f"s_cmp_lg_u32 s{sAbsT}, 0")
    e("s_cbranch_scc1 L_special")
    lab("L_fill")
    lst(6)
    e(m1(0))
    e(v1[0])
    e(m2(0))
    e(v1[1])
    e(m1(1))
    e(v1[2])
    e(m2(1))
    e(v1[3])
    lst(7)
    for t in vdma_l(): e(t)
    e("s_waitcnt lgkmcnt(4)")
    wst(); lst(8)
    e(f"s_cmp_eq_u32 s{sG}, 0")
    e("s_cbranch_scc1 L_B")

    def build_half(name, pats):
        ops = []
        q = dict(n=list(nat_reads), t=list(tr_reads), g=list(grams), x=list(sels), s=list(norm), m=list(smalls), c=list(cvts), W=list(writes))
        cnt = dict(n=0, t=0, g=0, x=0, s=0, m=0, c=0, W=0, X=0)
        def add(t, lid=None, needs=()): ops.append((t, lid, list(needs)))
        for T in range(8):
            j = T // 2
            if opt.ws and T in opt.stampT:
                for s in wst_l(): add(s)
            if T % 2 == 0:
                rd_k = kread((j + 2) % 4, j % 2); rd_v = vread((j + 2) % 4, (j + 2) % 4)
                ki = vi = 0
            ei = 0
            for ch in pats[T]:
                if ch == 'e': add(ex(T, ei)); ei += 1
                elif ch == 'A':
                    add(sm(T - 1, 1), needs=[('v', ((T-1)//2), 2), ('v', ((T-1)//2), 3)])
                elif ch == 'B': add(m1(T + 2), needs=[('k', j + 1, 0)])
                elif ch == 'C': add(m2(T + 2), needs=[('k', j + 1, 1)])
                elif ch == 'D': add(sm(T, 0), needs=[('v', j, 0), ('v', j, 1)])
                elif ch == 'k': add(rd_k[ki], lid=('k', j + 2, ki)); ki += 1
                elif ch == 'v': add(rd_v[vi], lid=('v', j + 2, vi)); vi += 1
                elif ch == 'w': add("WAIT")
                elif ch == 'n': add(q['n'][cnt['n']], lid=('n', 0, cnt['n'])); cnt['n'] += 1
                elif ch == 't': add(q['t'][cnt['t']], lid=('t', 0, cnt['t'])); cnt['t'] += 1
                elif ch in '0123':
                    if opt.prio: add(f"s_setprio {opt.pmap[int(ch)]}")
                elif ch == 'g': add(q['g'][cnt['g']], needs=[('n', 0, cnt['g'] // 2)]); cnt['g'] += 1
                elif ch == 'x': assert cnt['g'] == 7; add(q['x'][cnt['x']]); cnt['x'] += 1
                elif ch == 's': assert cnt['x'] == 3; add(q['s'][cnt['s']]); cnt['s'] += 1
                elif ch == 'm': assert cnt['s'] == 6; add(q['m'][cnt['m']], needs=[('t', 0, cnt['m'])]); cnt['m'] += 1
                elif ch == 'c': assert cnt['m'] > cnt['c'] // 2; add(q['c'][cnt['c']]); cnt['c'] += 1
                elif ch == 'W':
                    assert cnt['c'] >= min(14, 4*cnt['W'] + 4)
                    add(q['W'][cnt['W']], lid=('W', 0, cnt['W'])); cnt['W'] += 1
                    if cnt['W'] == 4: pending_xor = True
                elif ch == 'X':
                    l = rawnext_l()
                    parts = [l[0:3], l[3:4], l[4:5], l[5:]]
                    for t in parts[cnt['X']]: add(t)
                    cnt['X'] += 1
                elif ch == 'Y': add("s_waitcnt vmcnt(2)")
                elif ch == 'V':
                    add(f"s_mov_b32 m0, s{sM0V}")
                    add(f"s_mov_b64 exec, s[{sExV}:{sExV+1}]")
                    add(f"buffer_load_dwordx4 v{vVoff}, s[{sV}:{sV+3}], s{sVoffs} offen lds")
                    add(f"s_mov_b64 exec, -1")
                elif ch == 'U':
                    add(f"s_add_u32 m0, s{sM0V}, 128")
                    add(f"s_mov_b64 exec, s[{sExV}:{sExV+1}]")
                    add(f"buffer_load_dwordx4 v{vVoff}, s[{sV}:{sV+3}], s{sVoffs} offen offset:896 lds")
                    add(f"s_mov_b64 exec, -1")
                elif ch == 'p':
                    if name == 'B': add("s_waitcnt vmcnt(6)")
                    add(f"ds_write_b32 v{vFw}, v{vCnt}", lid=('p', 0, 0))
                elif ch == 'q': add(f"s_cmp_eq_u32 s{sIter}, 7")
                elif ch == 'T': add("s_cbranch_scc1 L_tail")
                elif ch == 'y': add("s_waitcnt vmcnt(0)")
                elif ch == 'f': add(f"ds_read_b32 v{vFlag}, v{vFr}", lid=('f', 0, 0))
                elif ch == 'F':
                    add(f"v_cmp_lt_u32 vcc, v{vFlag}, v{vCnt}", needs=[('f', 0, 0)])
                    add(f"v_xor_b32 v{vKr}, s{sX}, v{vKr}")
                    add(f"v_xor_b32 v{vVr}, s{sX}, v{vVr}")
                    add(f"s_cbranch_vccnz L_spin{name}")
                    add(f"L_back{name}:")
                    add(f"v_add_u32 v{vCnt}, 1, v{vCnt}")
                    add(f"s_xor_b32 s{sX}, s{sX}, 0x8000")
                elif ch == 'i':
                    it = [f"s_add_u32 s{sIter}, s{sIter}, 1", f"s_cmp_ge_u32 s{sIter}, 5",
                          f"s_cselect_b32 s{sV+2}, 0, s{sV+2}", f"s_mov_b32 s{sK+2}, s{sV+2}"]
                    add(it[cnt.setdefault('i', 0)]); cnt['i'] += 1
                elif ch == 'a':
                    adv = [f"s_add_u32 s{sM0V}, s{sM0V}, 0x4000", f"s_and_b32 s{sM0V}, s{sM0V}, 0xffff",
                           f"s_add_u32 s{sVoffs}, s{sVoffs}, {CH}"]
                    add(adv[cnt.setdefault('a', 0)]); cnt['a'] += 1
                elif ch == 'P':
                    add(f"ds_write_b32 v{vFw}, v{vCnt}", lid=('P', 0, 0))
                    if name == 'A':
                        assert cnt['W'] == 4
                        add(f"v_xor_b32 v{vKw}, 0x8000, v{vKw}")
                else: raise ValueError(ch)
            assert ei == 16, (name, T, ei)
            if T % 2 == 1: assert ki == 2 and vi == 4
        if name == 'A':
            assert cnt == dict(n=4, t=7, g=7, x=3, s=6, m=7, c=14, W=4, X=0, a=3, i=4), cnt
        return ops

    halves = {'A': build_half('A', opt.patA), 'B': build_half('B', opt.patB)}
    def shift(ops):
        out = []
        for t, lid, needs in ops:
            if lid is not None:
                lid = (lid[0], lid[1] - 4, lid[2]) if lid[0] in 'kv' else (lid[0], -1, lid[2])
            out.append((t, lid, []))
        return out
    def resolve(name):
        ops = halves[name]
        res = {}
        for pred in 'AB':
            seq = shift(halves[pred]) + ops
            base = len(seq) - len(ops)
            pos = {lid: i for i, (t, lid, n) in enumerate(seq) if lid is not None}
            waits = [i for i in range(base, len(seq)) if seq[i][0] == "WAIT"]
            covered = -1
            covered = pos[('k', 0, 1)]
            for i in range(base, len(seq)):
                t, lid, needs = seq[i]
                if t == "WAIT":
                    nxt = min([w for w in waits if w > i] + [len(seq)])
                    need = [pos[x] for k in range(i, nxt) for x in seq[k][2] if x in pos]
                    tgt = max(need + [covered])
                    assert tgt < i, ("wait placed before its load", name, seq[tgt][0])
                    n = sum(1 for k in range(tgt + 1, i) if seq[k][1] is not None)
                    res[i - base] = min(res.get(i - base, 15), n)
                    covered = tgt
                for x in needs:
                    if x in pos: assert pos[x] <= covered, ("uncovered", name, t, x)
                    else: assert x[0] == 'v' and x[1] < -2 or x[1] <= -2, x
        out = [(f"s_waitcnt lgkmcnt({res[i]})" if t == "WAIT" else t) for i, (t, lid, n) in enumerate(ops)]
        return [t for t in out if not any(re.search(d, t) for d in opt.drop)]

    L.append(".p2align 3")
    lab("L_A")
    for t in resolve('A'):
        (L.append(t) if t.endswith(":") else e(t))
    lab("L_B")
    for t in resolve('B'):
        (L.append(t) if t.endswith(":") else e(t))
    e(f"s_cmp_lt_u32 s{sIter}, 6")
    e("s_cbranch_scc1 L_A")
    e("s_branch L_B")
    lab("L_tail")
    c("last two tiles; local block 0 goes to the partner wave, local block 1 is finished here")
    e(f"s_lshl_b32 s{sTmp}, s{sWave}, 12")
    e(f"s_add_u32 s{sTmp}, s{sTmp}, {LDS_K}")
    e(f"v_add_u32 v{vT0}, s{sTmp}, v{vL16}")
    e(f"v_xor_b32 v{vT1}, 0x4000, v{vT0}")
    if opt.st_lin:
        e(f"v_add_u32 v{vOoff}, s{sM0R}, v{vOoff}")
        e(f"v_add_u32 v{vSS}, s{sM0R}, v{vL16}")
    no = nr = 0
    vF = vO + 16
    for T, Tp, Tn, pat in opt.patT:
        ei = 0
        for ch in pat:
            if ch == 'e': e(ex(T, ei)); ei += 1
            elif ch == 'A': e(sm(Tp, 1))
            elif ch == 'B': e(m1(Tn))
            elif ch == 'C': e(m2(Tn))
            elif ch == 'D': assert ei >= 10; e(sm(T, 0))
            elif ch == 'w': e("s_waitcnt lgkmcnt(0)")
            elif ch == 'y': e("s_waitcnt vmcnt(0)")
            elif ch == 'n': e("s_nop 0")
            elif ch == 'b': e("s_barrier")
            elif ch in '0123':
                if opt.prio: e(f"s_setprio {opt.pmap[int(ch)]}")
            elif ch == 'O':
                e(f"ds_write_b128 v{vT0}, {vr(vO+4*no,4)} offset:{1024*no}"); no += 1
            elif ch == 'R':
                e(f"ds_read_b128 {vr(vD+4*nr,4)}, v{vT1} offset:{1024*nr}"); nr += 1
            elif ch == 'a':
                for j in range(0, 16, 2):
                    e(f"v_pk_add_f32 {vr(vF+j,2)}, {vr(vF+j,2)}, {vr(vD+j,2)}")
            else: raise ValueError(ch)
        assert ei == 16
    assert no == 4 and nr == 4
    e("s_nop 1")
    e(sm(7, 1))
    wst()
    e("s_nop 11")
    e(f"v_mov_b32 v{vT0}, v{vF+12}")
    e(f"v_mov_b32 v{vT1}, v{vF+12}")
    e("s_nop 1")
    e(f"v_permlane32_swap_b32 v{vT0}, v{vT1}")
    e(f"v_rcp_f32 v{vB}, v{vT1}")
    e("s_nop 0")
    if True:
        c("rows -> own staging buffer -> whole lines")
        for j in range(4):
            e(f"v_pk_mul_f32 {vr(vF+4*j,2)}, {vr(vF+4*j,2)}, {vr(vB,2)} op_sel_hi:[1,0]")
            e(f"v_pk_mul_f32 {vr(vF+4*j+2,2)}, {vr(vF+4*j+2,2)}, {vr(vB,2)} op_sel_hi:[1,0]")
            e(f"v_cvt_pk_bf16_f32 v{vP+2*j}, v{vF+4*j}, v{vF+4*j+1}")
            e(f"v_cvt_pk_bf16_f32 v{vP+2*j+1}, v{vF+4*j+2}, v{vF+4*j+3}")
            if j == 3: e("s_mov_b32 exec_hi, 0")
            e(f"ds_write_b64 v{vOoff}, {vr(vP+2*j,2)} offset:{8*j}")
        e("s_mov_b32 exec_hi, -1")
        e(f"ds_read_b128 {vr(vD,4)}, v{vSS}")
        e(f"ds_read_b128 {vr(vD+4,4)}, v{vSS} offset:1024")
        e("s_waitcnt lgkmcnt(1)")
        e(f"buffer_store_dwordx4 {vr(vD,4)}, v{vL16}, s[{sO}:{sO+3}], s{sOoff} offen{opt.st_flags}")
        e("s_mov_b32 exec_hi, 0xffff")
        e("s_waitcnt lgkmcnt(0)")
        e(f"buffer_store_dwordx4 {vr(vD+4,4)}, v{vL16}, s[{sO}:{sO+3}], s{sOoff} offen offset:1024{opt.st_flags}")
    if opt.ws:
        e("s_mov_b64 exec, -1")
        if opt.lazy:
            lst(9)
            e("s_waitcnt lgkmcnt(0)")
            for k in range(10):
                e(f"s_sub_u32 s74, s{80+2*k}, s72")
                e(f"v_writelane_b32 v{vSt}, s74, {k}")
            e("s_mov_b32 s70, 10")
        wst()
        e("s_waitcnt vmcnt(0)")
        wst()
        e("s_memrealtime s[78:79]")
        e("s_load_dwordx2 s[80:81], s[0:1], 48")
        e("s_waitcnt lgkmcnt(0)")
        e("s_mov_b32 s82, 0x1000000"); e("s_mov_b32 s83, 0x00020000")
        e(f"v_writelane_b32 v{vSt}, s70, 31")
        e(f"v_writelane_b32 v{vSt}, s76, 30")
        e(f"v_writelane_b32 v{vSt}, s78, 29")
        e(f"s_lshl_b32 s3, s2, 3"); e(f"s_add_u32 s3, s3, s{sWave}"); e("s_lshl_b32 s3, s3, 7")
        e(f"v_lshlrev_b32 v1, 2, v{vLane}")
        e("s_mov_b32 exec_hi, 0")
        e(f"buffer_store_dword v{vSt}, v1, s[80:83], s3 offen")
    if opt.padto:
        e("s_waitcnt vmcnt(0)")
        lab("L_pspin")
        e("s_memrealtime s[78:79]")
        e("s_waitcnt lgkmcnt(0)")
        e("s_sub_u32 s84, s78, s76")
        e(f"s_cmp_lt_u32 s84, {opt.padto}")
        e("s_cbranch_scc1 L_pspin")
    lab("L_end")
    e("s_endpgm")

    for name in 'AB':
        lab(f"L_spin{name}")
        c("some wave has not yet published the next chunk: wait for it")
        e(f"s_sleep {opt.sleep}")
        e(f"ds_read_b32 v{vFlag}, v{vFr}")
        e("s_waitcnt lgkmcnt(0)")
        e(f"v_cmp_lt_u32 vcc, v{vFlag}, v{vCnt}")
        e(f"s_cbranch_vccnz L_spin{name}")
        e(f"s_branch L_back{name}")

    lab("L_prep")
    for m in range(7): e(f"ds_read_b64 {vr(vP+2*m,2)}, v{vNat} offset:{8*m}")
    for s in tr_reads: e(s)
    for m in range(7):
        e(f"s_waitcnt lgkmcnt({13 - m})")
        if m > 0: e("s_nop 0")
        e(grams[m])
    e("s_nop 4")
    for t in sels: e(t)
    e(norm[0]); e("s_nop 0"); e(norm[1]); e(norm[2]); e("s_nop 0")
    for s in norm[3:]: e(s)
    e("s_waitcnt lgkmcnt(0)")
    e("s_nop 0")
    for s in smalls: e(s)
    for i in range(14):
        e(cvts[i])
        if i % 4 == 3: e(writes[i // 4])
    e(writes[3])
    e(f"v_xor_b32 v{vKw}, 0x8000, v{vKw}")
    e(f"s_setpc_b64 s[{sRet}:{sRet+1}]")

    lab("L_special")
    e(f"s_cmp_eq_u32 s{sMode}, 0")
    e("s_cbranch_scc1 L_maxpass")
    c("second pass: put -max into the pad slots of the Q fragments (lanes 32..63)")
    e("s_mov_b32 exec_lo, 0")
    e(f"v_mov_b32 v{vQ+10}, v{vPad}")
    e(f"v_mov_b32 v{vQ+11}, v{vPad+1}")
    e(f"v_mov_b32 v{vQ+14}, v{vPad+2}")
    e(f"v_mov_b32 v{vQ+15}, v{vPad+3}")
    e("s_mov_b32 exec_lo, -1")
    e("s_nop 1")
    e("s_branch L_fill")
    lab("L_maxpass")
    mx = [vPad, vPad + 2]
    e(f"v_mov_b32 v{mx[0]}, 0xff800000")
    e(f"v_mov_b32 v{mx[1]}, 0xff800000")
    lab("L_mloop")
    c("chunk sIter is in LDS; group (sIter & 1) normalises chunk sIter + 1 (chunk 1 is done, K2 is staged)")
    e(f"s_add_u32 s{sTmp}, s{sIter}, s{sG}")
    e(f"s_bitcmp1_b32 s{sTmp}, 0")
    e("s_cbranch_scc1 L_mnoprep")
    e(f"s_cmp_eq_u32 s{sIter}, 7")
    e("s_cbranch_scc1 L_mnoprep")
    e(f"s_cmp_eq_u32 s{sIter}, 0")
    e("s_cbranch_scc1 L_mnoprep")
    e(f"s_cmp_eq_u32 s{sIter}, 1")
    e("s_cbranch_scc1 L_mhave")
    for t in rawnext_l(): e(t)
    lab("L_mhave")
    e(f"s_waitcnt vmcnt(0) lgkmcnt(0)")
    e(f"s_call_b64 s[{sRet}:{sRet+1}], L_prep")
    lab("L_mnoprep")
    for j in range(4):
        for s in kread(j, 0): e(s)
        e("s_waitcnt lgkmcnt(0)")
        e(m1(0)); e(m2(0)); e(m1(1)); e(m2(1))
        e("s_nop 15")
        for b in range(2):
            for i in range(0, 16, 2):
                e(f"v_max3_f32 v{mx[b]}, v{vS+16*b+i}, v{vS+16*b+i+1}, v{mx[b]}")
    e("s_barrier")
    e(f"v_xor_b32 v{vKr}, s{sX}, v{vKr}")
    e(f"s_xor_b32 s{sX}, s{sX}, 0x8000")
    e(f"s_add_u32 s{sIter}, s{sIter}, 1")
    e(f"s_cmp_lt_u32 s{sIter}, 8")
    e("s_cbranch_scc1 L_mloop")
    c("combine the two lane halves and the partner wave (whose local blocks are swapped)")
    for b in range(2):
        e(f"v_mov_b32 v{vT0}, v{mx[b]}")
        e("s_nop 1")
        e(f"v_permlane32_swap_b32 v{mx[b]}, v{vT0}")
        e("s_nop 1")
        e(f"v_max_f32 v{mx[b]}, v{mx[b]}, v{vT0}")
    e(f"s_lshl_b32 s{sTmp}, s{sWave}, 12")
    e(f"s_add_u32 s{sTmp}, s{sTmp}, {LDS_K}")
    e(f"v_add_u32 v{vT0}, s{sTmp}, v{vL16}")
    e(f"v_xor_b32 v{vT1}, 0x4000, v{vT0}")
    e("s_waitcnt vmcnt(0) lgkmcnt(0)")
    e(f"ds_write_b32 v{vT0}, v{mx[0]}")
    e(f"ds_write_b32 v{vT0}, v{mx[1]} offset:4")
    e("s_waitcnt lgkmcnt(0)")
    e("s_barrier")
    e(f"ds_read_b64 {vr(vD,2)}, v{vT1}")
    e("s_waitcnt lgkmcnt(0)")
    e("s_barrier")
    e(f"s_mov_b32 s{sTmp}, 0xffff0000")
    for b in range(2):
        m = mx[b]
        e(f"v_max_f32 v{m}, v{m}, v{vD+1-b}")
        c("split -max into three bf16 parts")
        e(f"v_sub_f32 v{m}, 0, v{m}")
        e(f"v_and_b32 v{vT0}, s{sTmp}, v{m}")
        e(f"v_sub_f32 v{m}, v{m}, v{vT0}")
        e(f"v_and_b32 v{vT1}, s{sTmp}, v{m}")
        e(f"v_sub_f32 v{m}, v{m}, v{vT1}")
        e(f"v_lshrrev_b32 v{m+1}, 16, v{m}")
        e(f"v_lshrrev_b32 v{vT0}, 16, v{vT0}")
        e(f"v_or_b32 v{m}, v{vT0}, v{vT1}")
    e(f"s_mov_b32 s{sMode}, 1")
    e("s_branch L_restart")

    txt = HEADER + f"; @launch grid=(256,1,1) block=(512,1,1) lds={LDS_TOTAL}\n"
    txt += """.amdgcn_target "amdgcn-amd-amdhsa--gfx950"
.text
.globl standalone__qk_norm__prompt_kernel
.p2align 8
.type standalone__qk_norm__prompt_kernel,@function
standalone__qk_norm__prompt_kernel:
"""
    txt += "\n".join(L) + "\n"
    txt += f""".section .rodata,"a"
.p2align 6
.amdhsa_kernel standalone__qk_norm__prompt_kernel
  .amdhsa_next_free_vgpr {NV}
  .amdhsa_next_free_sgpr {102 if (opt.ws or opt.padto) else 72}
  .amdhsa_accum_offset {(NV+3)//4*4}
  .amdhsa_group_segment_fixed_size 0
  .amdhsa_kernarg_size 56
  .amdhsa_user_sgpr_count 2
  .amdhsa_user_sgpr_kernarg_segment_ptr 1
  .amdhsa_system_sgpr_workgroup_id_x 1
.end_amdhsa_kernel
"""
    return txt

if __name__ == "__main__":
    opt = Opt()
    out = sys.argv[1]
    for a in sys.argv[2:]:
        k, v = a.split("=", 1)
        assert hasattr(opt, k), k
        setattr(opt, k, eval(v))
    open(out, "w").write(gen(opt))
```

```python
import sys, re

HEADER = """; Kernarg layout for this problem (56 bytes, ptrs only, base s[0:1]):
"""

PAT_B = [
 "eeA3wkeeeeBkeeeeCveeeeDvee",
 "eeAveeeeBveeeeCXXeeeeDXXee",
 "eeA2wkeeeeBkeeeeCveeeeDpvee",
 "eeA1veeeeBveeeeC0feeeeDqeeT",
 "eeA3wFkeeeeBkeeeeCveeeeDvee",
 "eeAveeeeByveeeeCVeeeeDUee",
 "eeA2wkeeeeBakeeeeCaveeeeDaivee",
 "eeA1iiveeeeBiveeeeC0eeeeDPee",
]
PAT_A = [
 "eeA3wkeeeeBkeeeeCveeeeDvee",
 "eeAveeeeBveeeeCYpnneeeeDnnee",
 "eeA2wkteeegeBkteeegeCvteeegeDvtee",
 "egeA1vteeegeBvteeegeC0fteeegeDee",
 "eeA3wFkexexexeBkesesesesCvesseemeDvee",
 "emeAveecemeByvececemeCVececemeDUecec",
 "emeA2wkececemeBakWececeeCavWeceecceDaivee",
 "eeA1iivWeeeeBivWeeeeC0eeeeDPee",
]
PAT_T = [
 (4, 3, 6, "eeA3weeBeeeCeeeeeDnyeeee"),
 (6, 4, 7, "eeA2eeeeBeeeeCeeD1eeee"),
 (5, 6, 0, "eeAeeee0eeeeDeeeOeOeOeO"),
 (7, 5, 0, "eeAwbRRRReeeeeeeewaeeDeeee"),
]

class Opt:
    ws = False
    patT = PAT_T
    st_flags = ' sc1'
    st_lin = True
    g1prio = 3
    lazy = False
    cpf = 1
    padat = -1
    qdelay = 1
    dry = False
    g1early = 0
    xpos = 0
    pmid = 3
    drop = ()
    padto = 0
    force_fallback = False
    patA = PAT_A
    patB = PAT_B
    prio = True
    pmap = '0123'
    p_start = 2
    sleep = 1
    stampT = (4,)

def gen(opt):
    L = []
    def e(s): L.append("    " + s)
    def lab(s): L.append(s + ":")
    def c(s): L.append("    ; " + s)

    HB = 114688
    CH = 14336
    LDS_V = 0
    LDS_K = 65536
    LDS_Q = LDS_K + 3*16384
    LDS_R = 131072
    LDS_F = LDS_R + 8*3584
    LDS_TOTAL = LDS_F + 256
    vLane, vL16, vVoff, vKw, vKr, vVr, vIdx, vT0 = 0, 1, 2, 3, 4, 5, 6, 7
    vNat, vTr, vMa, vMb, vOoff, vT1, vSS, vR = 8, 9, 10, 11, 12, 13, 14, 15
    vQ = 16
    vO = 32
    vS = 64
    vKf = 128
    vVf = 144
    vP = 176
    vTt = 192
    vB = 206
    vD = 208
    vPad = 236
    vSt, vTv, vNq = 240, 241, 242
    vTq = 247
    vFw, vFr, vFlag, vCnt = 243, 244, 245, 246
    NV = 248
    sK, sV, sO, sR = 20, 24, 28, 48
    sWave, sHead, sQb, sG, sQg = 32, 33, 34, 35, 36
    sIter, sKnext, sVoffs, sM0V, sM0R = 37, 38, 39, 40, 41
    sT, sScale, sEps, sOoff = 42, 43, 44, 45
    sTmp, sTmp2 = 46, 47
    sExV = 52
    sRet = 54
    sMode, sAbsT = 56, 57
    sPre, sX = 58, 59
    sAlt = 60
    sMk = 64

    def vr(b, n): return f"v[{b}:{b+n-1}]"

    def wst_l():
        if not opt.ws: return []
        return ["s_memtime s[74:75]", "s_waitcnt lgkmcnt(0)", "s_sub_u32 s74, s74, s72", "s_mov_b32 m0, s70", "s_nop 0",
                f"v_writelane_b32 v{vSt}, s74, m0", "s_add_u32 s70, s70, 1"]
    def wst():
        if opt.lazy: return
        for s in wst_l(): e(s)
    def lst(k):
        if opt.padto and opt.padat == k: e("s_memrealtime s[76:77]")
        if opt.lazy: e(f"s_memtime s[{80+2*k}:{81+2*k}]")

    def rawdma_l(srd, soff, m0=None):
        r = [f"s_mov_b32 m0, s{sM0R if m0 is None else m0}", "s_nop 0"]
        for i in range(3):
            r.append(f"buffer_load_dwordx4 v{vL16}, s[{srd}:{srd+3}], s{soff} offen offset:{1024*i} lds")
        r.append("s_mov_b32 exec_hi, 0")
        r.append(f"buffer_load_dwordx4 v{vL16}, s[{srd}:{srd+3}], s{soff} offen offset:3072 lds")
        r.append("s_mov_b32 exec_hi, -1")
        return r
    def rawnext_l():
        return rawdma_l(sK, sKnext) + [f"s_add_u32 s{sKnext}, s{sKnext}, {2*CH}"]

    def vdma_l(m0=None, off=None, adv=True):
        m0 = sM0V if m0 is None else m0
        off = sVoffs if off is None else off
        r = [f"s_mov_b32 m0, s{m0}",
             f"s_mov_b64 exec, s[{sExV}:{sExV+1}]",
             f"buffer_load_dwordx4 v{vVoff}, s[{sV}:{sV+3}], s{off} offen lds",
             f"s_add_u32 m0, s{m0}, 128",
             f"s_add_u32 s{sM0V}, s{sM0V}, 0x4000" if adv else "s_nop 0",
             f"buffer_load_dwordx4 v{vVoff}, s[{sV}:{sV+3}], s{off} offen offset:896 lds",
             f"s_mov_b64 exec, -1"]
        if adv:
            r += [f"s_and_b32 s{sM0V}, s{sM0V}, 0xffff", f"s_add_u32 s{sVoffs}, s{sVoffs}, {CH}"]
        return r

    nat_reads = [f"ds_read2_b64 {vr(vP+4*i,4)}, v{vNat} offset0:{2*i} offset1:{2*i+1}" for i in range(3)] + \
                [f"ds_read_b64 {vr(vP+12,2)}, v{vNat} offset:48"]
    tr_reads = [f"ds_read_b64_tr_b16 {vr(vTt+2*m,2)}, v{vTr} offset:{8*m}" for m in range(7)]
    dots = [f"v_dot2_f32_bf16 v{vSS}, v{vP+i}, v{vP+i}, {'0' if i == 0 else 'v%d' % vSS}" for i in range(14)]
    grams = [f"v_mfma_f32_4x4x4_16b_bf16 {vr(vD,4)}, {vr(vP+2*m,2)}, {vr(vP+2*m,2)}, {'0' if m == 0 else vr(vD,4)}" for m in range(7)]
    sels = [f"v_cndmask_b32 v{vSS}, v{vD if i == 0 else vSS}, v{vD+1+i}, s[{sMk+2*i}:{sMk+2*i+1}]" for i in range(3)]
    norm = [f"v_sqrt_f32 v{vSS}, v{vSS}", f"v_add_f32 v{vSS}, s{sEps}, v{vSS}", f"v_rcp_f32 v{vR}, v{vSS}",
            f"v_cvt_pk_bf16_f32 v{vR}, v{vR}, v{vR}", f"v_and_b32 v{vB}, v{vR}, v{vMa}", f"v_and_b32 v{vB+1}, v{vR}, v{vMb}"]
    smalls = [f"v_mfma_f32_4x4x4_16b_bf16 {vr(vD+4*m,4)}, {vr(vTt+2*m,2)}, {vr(vB,2)}, 0" for m in range(7)]
    cvts = [f"v_cvt_pk_bf16_f32 v{vP+i}, v{vD+2*i}, v{vD+2*i+1}" for i in range(14)]
    writes = [f"ds_write_b128 v{vKw}, {vr(vP+4*i,4)} offset:{512*i}" for i in range(4)]

    e("s_load_dwordx4 s[4:7], s[0:1], 0")
    e("s_load_dwordx4 s[8:11], s[0:1], 16")
    e("s_load_dwordx2 s[12:13], s[0:1], 32")
    e("s_cmp_ge_u32 s2, 256")
    e("s_cbranch_scc1 L_end")
    if opt.ws:
        e("s_memtime s[72:73]"); e("s_memrealtime s[76:77]"); e("s_mov_b32 s70, 0")
    if opt.padto: e("s_memrealtime s[76:77]")
    e(f"v_lshrrev_b32 v{vT0}, 6, v0")
    e(f"v_and_b32 v{vLane}, 63, v0")
    e(f"v_readfirstlane_b32 s{sWave}, v{vT0}")
    if opt.cpf:
        c("pull the kernel's own code into L2 while the first data is on its way: one line per wave")
        e("s_getpc_b64 s[14:15]")
        lab("L_pc")
        e(f"s_and_b32 s3, s2, 56")
        e(f"v_add_u32 v{vT1}, s3, v{vT0}")
        e(f"v_min_u32 v{vT1}, (L_special - L_pc) / 128, v{vT1}")
        e(f"v_lshlrev_b32 v{vT1}, 7, v{vT1}")
        e(f"global_load_dword v{vPad}, v{vT1}, s[14:15]")
    c("head = (wg&7)*4 + (wg>>6), qblk = (wg>>3)&7")
    e("s_and_b32 s3, s2, 7")
    e(f"s_lshr_b32 s{sHead}, s2, 6")
    e(f"s_lshl2_add_u32 s{sHead}, s3, s{sHead}")
    e(f"s_mov_b32 s{sMode}, 0")
    e(f"v_lshlrev_b32 v{vL16}, 4, v{vLane}")
    lab("L_restart")
    e(f"s_movk_i32 s{sTmp2}, 3584")
    e(f"s_mov_b32 s{sK+2}, {HB}")
    e(f"s_mov_b32 s{sK+3}, 0x00020000")
    e(f"s_mul_i32 s3, s{sHead}, s{sK+2}")
    c("first K rows: group 0 -> chunk 1, group 1 -> chunk 0")
    e(f"s_xor_b32 s{sX}, s{sWave}, 4")
    e(f"s_mul_i32 s{sKnext}, s{sX}, s{sTmp2}")
    e(f"s_mul_i32 s{sM0R}, s{sWave}, s{sTmp2}")
    e(f"s_lshr_b32 s{sVoffs}, s{sM0R}, 1")
    e(f"s_add_u32 s{sM0R}, s{sM0R}, {LDS_R}")
    e(f"s_and_b32 s{sTmp2}, s{sHead}, 15")
    e(f"s_lshl_b32 s{sTmp2}, s{sTmp2}, 1")
    e(f"v_mov_b32 v{vTv}, s{sTmp2}")
    e(f"s_lshr_b32 s{sG}, s{sWave}, 2")
    e(f"s_and_b32 s{sQg}, s{sWave}, 3")
    if opt.g1early:
        e(f"s_cmp_eq_u32 s{sG}, 0")
        e("s_cbranch_scc1 L_g0")
        e(f"s_setprio {opt.g1early}")
        lab("L_g0")
    e(f"s_mov_b32 m0, s{sM0R}")
    e("s_waitcnt lgkmcnt(0)")
    e(f"s_add_u32 s{sK}, s6, s3")
    e(f"s_addc_u32 s{sK+1}, s7, 0")
    for t in rawnext_l()[2:]: e(t)
    e(f"global_load_ushort v{vTv}, v{vTv}, s[10:11]")
    for srd, p in ((sR, 4), (sV, 8), (sO, 12)):
        e(f"s_add_u32 s{srd}, s{p}, s3")
        e(f"s_addc_u32 s{srd+1}, s{p+1}, 0")
        e(f"s_mov_b32 s{srd+2}, s{sK+2}")
        e(f"s_mov_b32 s{srd+3}, 0x00020000")
    c("Q / output rows of this wave: qblk*256 + qg*64 + G*32")
    e(f"s_and_b32 s{sTmp}, s2, 56")
    e(f"s_lshl1_add_u32 s{sTmp}, s{sQg}, s{sTmp}")
    e(f"s_add_u32 s{sTmp}, s{sTmp}, s{sG}")
    e(f"s_mulk_i32 s{sTmp}, 1792")
    e(f"s_mov_b32 s{sOoff}, s{sTmp}")
    e(f"s_lshl_b32 s{sAlt}, s{sQg}, 12")
    e(f"s_add_u32 s{sAlt}, s{sAlt}, {LDS_Q}")
    e(f"s_mul_i32 s{sPre}, s{sG}, 1792")
    e(f"s_add_u32 s{sPre}, s{sPre}, s{sAlt}")
    e(f"s_mov_b32 s{sExV}, 0x7f7f7f7f")
    e(f"s_mov_b32 s{sExV+1}, s{sExV}")
    e(f"s_lshl_b32 s{sM0V}, s{sWave}, 11")
    c("vVoff = (lane>>3)*112 + (lane&7)*16 = lane*16 - (lane>>3)*16")
    e(f"v_lshrrev_b32 v{vT0}, 3, v{vLane}")
    e(f"v_and_b32 v{vT1}, 15, v{vLane}")
    e(f"v_sub_u32 v{vVoff}, v{vLane}, v{vT0}")
    e(f"v_lshrrev_b32 v{vSS}, 4, v{vLane}")
    e(f"v_lshlrev_b32 v{vVoff}, 4, v{vVoff}")
    c("ones pads in the V ring: lane -> slot lane>>4, pair lane&15")
    e(f"v_lshl_add_u32 v{vT1}, v{vSS}, 7, v{vT1}")
    e(f"v_mov_b32 v{vD}, 0x3f80")
    e(f"v_mov_b32 v{vD+1}, 0")
    e(f"v_lshl_add_u32 v{vT1}, v{vT1}, 7, s{sM0V}")
    def qload():
        c("this wave's half of the q-group's rows, its V0 tile")
        e(f"s_mov_b32 m0, s{sPre}")
        e("s_nop 0")
        e(f"buffer_load_dwordx4 v{vL16}, s[{sR}:{sR+3}], s{sOoff} offen lds")
        e("s_mov_b32 exec_hi, 0xffff")
        e(f"buffer_load_dwordx4 v{vL16}, s[{sR}:{sR+3}], s{sOoff} offen offset:1024 lds")
        for t in vdma_l(): e(t)
    if opt.qdelay == 0: qload()
    e(f"ds_write_b64 v{vT1}, {vr(vD,2)} offset:112")
    c("progress flags: one word per wave")
    e(f"s_lshl_b32 s{sTmp}, s{sWave}, 2")
    e(f"s_add_u32 s{sTmp}, s{sTmp}, {LDS_F}")
    e(f"v_mov_b32 v{vFw}, s{sTmp}")
    e(f"v_and_b32 v{vT0}, 3, v{vLane}")
    e(f"v_bfe_u32 v{vSS}, v{vLane}, 2, 2")
    e(f"ds_write_b32 v{vFw}, v{vD+1}")
    c("staging addresses")
    e(f"v_lshl_add_u32 v{vSS}, v{vT0}, 2, v{vSS}")
    e(f"v_mul_u32_u24 v{vNq}, 56, v{vLane}")
    e(f"v_and_or_b32 v{vSS}, v{vLane}, 48, v{vSS}")
    e(f"v_lshlrev_b32 v{vT0}, 4, v{vT0}")
    e(f"v_mul_u32_u24 v{vTq}, 56, v{vSS}")
    e(f"v_mov_b32 v{vMa}, 0xffff")
    e(f"v_mov_b32 v{vMb}, 0")
    e(f"v_add_u32 v{vNat}, s{sM0R}, v{vNq}")
    e(f"v_add_u32 v{vTr}, s{sM0R}, v{vTq}")
    e(f"v_lshlrev_b64 {vr(vMa,2)}, v{vT0}, {vr(vMa,2)}")
    c("frag write address: (lane>>5)*2048 + (lane&31)*16 + (wave^4)*4096 + K ring")
    e(f"v_lshrrev_b32 v{vR}, 5, v{vLane}")
    e(f"s_lshl_b32 s{sX}, s{sX}, 12")
    e(f"s_add_u32 s{sX}, s{sX}, {LDS_K}")
    e(f"v_mul_u32_u24 v{vKw}, 1536, v{vR}")
    e(f"v_mov_b32 v{vP+14}, 0x3f803f80")
    e(f"v_add3_u32 v{vKw}, v{vKw}, v{vL16}, s{sX}")
    e(f"v_mov_b32 v{vP+15}, v{vP+14}")
    if opt.qdelay == 1: qload()
    wst()
    e(f"s_mov_b32 s{sEps}, 0x358637bd")
    e(f"s_mov_b32 s{sMk}, 0x22222222")
    e(f"s_mov_b32 s{sMk+1}, s{sMk}")
    e(f"s_lshl_b64 s[{sMk+2}:{sMk+3}], s[{sMk}:{sMk+1}], 1")
    e(f"s_lshl_b64 s[{sMk+4}:{sMk+5}], s[{sMk}:{sMk+1}], 2")
    c("output row offset in the staging buffer: (lane&31)*56 + h*32 = lane*56 - h*1760")
    e(f"v_mul_u32_u24 v{vT0}, 1760, v{vR}")
    c("Q staging addresses: local block 1 is this wave's own block G, so group 0 swaps the lane halves")
    e(f"s_cmp_eq_u32 s{sG}, 0")
    e(f"s_cselect_b32 s{sTmp}, 1792, 0")
    e(f"s_add_u32 s{sAlt}, s{sAlt}, s{sTmp}")
    e(f"s_lshl_b32 s{sTmp}, s{sTmp}, 1")
    e(f"v_sub_u32 v{vOoff}, v{vNat}, v{vT0}")
    e(f"v_mul_u32_u24 v{vT1}, s{sTmp}, v{vR}")
    e(f"v_mov_b64 {vr(vVf+28,2)}, 0")
    e(f"v_sub_u32 v{vT1}, s{sAlt}, v{vT1}")
    e(f"v_mov_b64 {vr(vVf+30,2)}, 0")
    e(f"v_add_u32 v{vNq}, v{vNq}, v{vT1}")
    e(f"v_add_u32 v{vTq}, v{vTq}, v{vT1}")
    c("V transpose-read address: 512*b5 + 128*b3 + 8*sel(b4,b2,b1,b0); sel = pi + 7*b2 with pi = 2*b4 + b1 + 4*b0, 14 (the pad) if pi == 7")
    tab = 0
    for idx in range(16):
        b0, b1, b2, b4 = idx & 1, (idx >> 1) & 1, (idx >> 2) & 1, (idx >> 3) & 1
        pi = 2*b4 + b1 + 4*b0
        tab |= (14 if pi == 7 else pi + 7*b2) << (4*idx)
    e(f"s_mov_b32 s{sTmp}, {hex(tab & 0xffffffff)}")
    e(f"s_mov_b32 s{sTmp2}, {hex(tab >> 32)}")
    e(f"v_mfma_i32_32x32x32_i8 {vr(vO,16)}, {vr(vVf+28,4)}, {vr(vVf+28,4)}, 0")
    e(f"v_and_b32 v{vFr}, 7, v{vLane}")
    e(f"v_lshlrev_b32 v{vT0}, 1, v{vLane}")
    e(f"v_lshlrev_b32 v{vFr}, 2, v{vFr}")
    e(f"v_and_b32 v{vVr}, 40, v{vLane}")
    e(f"v_and_or_b32 v{vT0}, v{vT0}, 32, v{vFr}")
    e(f"v_lshlrev_b32 v{vVr}, 4, v{vVr}")
    e(f"v_lshrrev_b64 {vr(vB,2)}, v{vT0}, s[{sTmp}:{sTmp2}]")
    e(f"v_mfma_i32_32x32x32_i8 {vr(vO+16,16)}, {vr(vVf+28,4)}, {vr(vVf+28,4)}, 0")
    e(f"s_lshl_b32 s{sTmp2}, s{sG}, 13")
    e(f"v_and_b32 v{vB}, 15, v{vB}")
    e(f"v_add_u32 v{vFr}, {LDS_F}, v{vFr}")
    e(f"v_lshl_add_u32 v{vVr}, v{vB}, 3, v{vVr}")
    e(f"v_mov_b32 v{vCnt}, 1")
    e(f"v_add_u32 v{vVr}, s{sTmp2}, v{vVr}")
    e(f"s_add_u32 s{sTmp2}, s{sTmp2}, {LDS_K}")
    e(f"v_mov_b32 v{vIdx}, 0xdddddddd")
    e(f"v_add_u32 v{vKr}, s{sTmp2}, v{vL16}")
    e(f"v_mfma_i32_32x32x32_i8 {vr(vS+48,16)}, {vr(vVf+28,4)}, {vr(vVf+28,4)}, 0")
    e(f"s_mov_b32 s{sIter}, 0")
    e(f"s_movk_i32 s{sX}, 0x4000")
    if opt.dry:
        e(f"s_mov_b32 s{sAbsT}, 0")
        e(f"s_mov_b32 s{sScale}, 0")
    def xloads(tag):
        for t in vdma_l(): e(t)
        e(f"s_cmp_eq_u32 s{sG}, 0")
        e(f"s_cbranch_scc1 L_x{tag}")
        for t in rawnext_l(): e(t)
        lab(f"L_x{tag}")
    if opt.dry:
        c("run the Q section once on whatever is in LDS: brings its code into the instruction cache")
        e(f"s_mov_b32 s{sPre}, 0")
        e("s_branch L_qb")
    lab("L_p5")
    e(f"s_mov_b32 s{sPre}, 1")
    wst()
    e(f"s_waitcnt vmcnt(5)")
    wst(); lst(3)
    e(f"s_call_b64 s[{sRet}:{sRet+1}], L_prep")
    wst(); lst(4)
    e(f"s_waitcnt vmcnt(4)")
    c("c = t*log2e")
    e(f"v_lshlrev_b32 v{vTv}, 16, v{vTv}")
    e(f"v_mul_f32 v{vT0}, 0x3fb8aa3b, v{vTv}")
    e(f"v_readfirstlane_b32 s{sAbsT}, v{vTv}")
    e(f"v_readfirstlane_b32 s{sScale}, v{vT0}")
    e(f"v_mov_b32 v{vQ+15}, 0")
    c("the shift |t|*log2e bounds every logit; it is used only while it cannot underflow a row (|t| <= 16)")
    e(f"s_and_b32 s{sAbsT}, s{sAbsT}, 0x7fffffff")
    e(f"s_or_b32 s{sTmp2}, s{sScale}, 0x80000000")
    e(f"s_lshr_b32 s{sTmp2}, s{sTmp2}, 16")
    e(f"s_cmp_gt_u32 s{sAbsT}, {'0x41800000' if not opt.force_fallback else '0'}")
    e(f"s_cselect_b32 s{sTmp2}, 0, s{sTmp2}")
    e(f"s_cselect_b32 s{sAbsT}, 1, 0")
    e(f"v_mov_b32 v{vQ+14}, s{sTmp2}")
    e(f"s_setprio {opt.p_start}")
    e(f"s_cmp_eq_u32 s{sG}, 0")
    e("s_cbranch_scc1 L_st6")
    e(f"s_setprio {opt.g1prio}")
    lab("L_st6")
    lst(5)
    e("s_waitcnt vmcnt(0)")
    lst(0)
    if opt.xpos == 0: xloads("a")
    e("s_waitcnt lgkmcnt(0)")
    wst(); lst(1)
    e("s_barrier")
    lst(2)

    def kread(tile, buf):
        o = tile * 2048
        return [f"ds_read_b128 {vr(vKf+8*buf,4)}, v{vKr} offset:{o}",
                f"ds_read_b128 {vr(vKf+8*buf+4,4)}, v{vKr} offset:{o+1024}"]
    def vread(tile, buf):
        o = tile * 2048
        return [f"ds_read_b64_tr_b16 {vr(vVf+8*buf+4*s+2*u,2)}, v{vVr} offset:{o+s*1024+u*256}" for s in range(2) for u in range(2)]
    def m1(T):
        return f"v_mfma_f32_32x32x16_bf16 {vr(vS+16*(T%4),16)}, {vr(vKf+8*((T//2)%2),4)}, {vr(vQ+4*(T%2),4)}, 0"
    def m2(T):
        return f"v_mfma_f32_32x32x16_bf16 {vr(vS+16*(T%4),16)}, {vr(vKf+8*((T//2)%2)+4,4)}, {vr(vQ+8+4*(T%2),4)}, {vr(vS+16*(T%4),16)}"
    def sm(T, s):
        return f"v_smfmac_f32_32x32x32_bf16 {vr(vO+16*(T%2),16)}, {vr(vVf+8*((T//2)%4)+4*s,4)}, {vr(vS+16*(T%4)+8*s,8)}, v{vIdx}"
    def ex(T, j):
        r = vS + 16*(T%4) + j
        return f"v_exp_f32 v{r}, v{r}"

    lab("L_qb")
    c("normalise and scale the 64 Q rows straight into B fragments")
    for m in range(7): e(f"ds_read_b64 {vr(vP+2*m,2)}, v{vNq} offset:{8*m}")
    for m in range(7): e(f"ds_read_b64_tr_b16 {vr(vTt+2*m,2)}, v{vTq} offset:{8*m}")
    if opt.xpos == 1:
        e(f"s_cmp_eq_u32 s{sPre}, 0")
        e("s_cbranch_scc1 L_xb")
        xloads("b")
    for m in range(7):
        e(f"s_waitcnt lgkmcnt({13 - m})")
        if m > 0: e("s_nop 0")
        e(grams[m])
    v0 = vread(0, 0); v1 = vread(1, 1); k0 = kread(0, 0); k1 = kread(1, 1)
    for t in k0 + v0[:2]: e(t)
    e(f"s_setprio {opt.pmid}")
    for t in sels: e(t)
    e(norm[0]); e(v0[2]); e(norm[1]); e(norm[2]); e(v0[3])
    e(f"v_mul_f32 v{vR}, s{sScale}, v{vR}")
    for t in norm[3:]: e(t)
    e("s_waitcnt lgkmcnt(6)")
    e(k1[0])
    for t in smalls: e(t)
    e(k1[1])
    for i in range(14):
        e(f"v_cvt_pk_bf16_f32 v{vQ+i}, v{vD+2*i}, v{vD+2*i+1}")
    for i in range(4):
        e(f"v_permlane32_swap_b32 v{vQ+i}, v{vQ+4+i}")
    for i in range(4):
        e(f"v_permlane32_swap_b32 v{vQ+8+i}, v{vQ+12+i}")
    e(f"s_cmp_lg_u32 s{sAbsT}, 0")
    e("s_cbranch_scc1 L_special")
    lab("L_fill")
    lst(6)
    e("s_waitcnt lgkmcnt(0)")
    e(m1(0))
    e(v1[0])
    e(m2(0))
    e(v1[1])
    e(m1(1))
    e(v1[2])
    e(m2(1))
    e(v1[3])
    if opt.dry:
        e(f"s_cmp_eq_u32 s{sPre}, 0")
        e("s_cbranch_scc1 L_p5")
    lst(7)
    if opt.xpos == 2: xloads("c")
    for t in vdma_l(): e(t)
    wst(); lst(8)
    e(f"s_cmp_eq_u32 s{sG}, 0")
    e("s_cbranch_scc1 L_B")

    def build_half(name, pats):
        ops = []
        q = dict(n=list(nat_reads), t=list(tr_reads), g=list(grams), x=list(sels), s=list(norm), m=list(smalls), c=list(cvts), W=list(writes))
        cnt = dict(n=0, t=0, g=0, x=0, s=0, m=0, c=0, W=0, X=0)
        def add(t, lid=None, needs=()): ops.append((t, lid, list(needs)))
        for T in range(8):
            j = T // 2
            if opt.ws and T in opt.stampT:
                for s in wst_l(): add(s)
            if T % 2 == 0:
                rd_k = kread((j + 2) % 4, j % 2); rd_v = vread((j + 2) % 4, (j + 2) % 4)
                ki = vi = 0
            ei = 0
            for ch in pats[T]:
                if ch == 'e': add(ex(T, ei)); ei += 1
                elif ch == 'A':
                    add(sm(T - 1, 1), needs=[('v', ((T-1)//2), 2), ('v', ((T-1)//2), 3)])
                elif ch == 'B': add(m1(T + 2), needs=[('k', j + 1, 0)])
                elif ch == 'C': add(m2(T + 2), needs=[('k', j + 1, 1)])
                elif ch == 'D': add(sm(T, 0), needs=[('v', j, 0), ('v', j, 1)])
                elif ch == 'k': add(rd_k[ki], lid=('k', j + 2, ki)); ki += 1
                elif ch == 'v': add(rd_v[vi], lid=('v', j + 2, vi)); vi += 1
                elif ch == 'w': add("WAIT")
                elif ch == 'n': add(q['n'][cnt['n']], lid=('n', 0, cnt['n'])); cnt['n'] += 1
                elif ch == 't': add(q['t'][cnt['t']], lid=('t', 0, cnt['t'])); cnt['t'] += 1
                elif ch in '0123':
                    if opt.prio: add(f"s_setprio {opt.pmap[int(ch)]}")
                elif ch == 'g': add(q['g'][cnt['g']], needs=[('n', 0, cnt['g'] // 2)]); cnt['g'] += 1
                elif ch == 'x': assert cnt['g'] == 7; add(q['x'][cnt['x']]); cnt['x'] += 1
                elif ch == 's': assert cnt['x'] == 3; add(q['s'][cnt['s']]); cnt['s'] += 1
                elif ch == 'm': assert cnt['s'] == 6; add(q['m'][cnt['m']], needs=[('t', 0, cnt['m'])]); cnt['m'] += 1
                elif ch == 'c': assert cnt['m'] > cnt['c'] // 2; add(q['c'][cnt['c']]); cnt['c'] += 1
                elif ch == 'W':
                    assert cnt['c'] >= min(14, 4*cnt['W'] + 4)
                    add(q['W'][cnt['W']], lid=('W', 0, cnt['W'])); cnt['W'] += 1
                    if cnt['W'] == 4: pending_xor = True
                elif ch == 'X':
                    l = rawnext_l()
                    parts = [l[0:3], l[3:4], l[4:5], l[5:]]
                    for t in parts[cnt['X']]: add(t)
                    cnt['X'] += 1
                elif ch == 'Y': add("s_waitcnt vmcnt(2)")
                elif ch == 'V':
                    add(f"s_mov_b32 m0, s{sM0V}")
                    add(f"s_mov_b64 exec, s[{sExV}:{sExV+1}]")
                    add(f"buffer_load_dwordx4 v{vVoff}, s[{sV}:{sV+3}], s{sVoffs} offen lds")
                    add(f"s_mov_b64 exec, -1")
                elif ch == 'U':
                    add(f"s_add_u32 m0, s{sM0V}, 128")
                    add(f"s_mov_b64 exec, s[{sExV}:{sExV+1}]")
                    add(f"buffer_load_dwordx4 v{vVoff}, s[{sV}:{sV+3}], s{sVoffs} offen offset:896 lds")
                    add(f"s_mov_b64 exec, -1")
                elif ch == 'p':
                    if name == 'B': add("s_waitcnt vmcnt(6)")
                    add(f"ds_write_b32 v{vFw}, v{vCnt}", lid=('p', 0, 0))
                elif ch == 'q': add(f"s_cmp_eq_u32 s{sIter}, 7")
                elif ch == 'T': add("s_cbranch_scc1 L_tail")
                elif ch == 'y': add("s_waitcnt vmcnt(0)")
                elif ch == 'f': add(f"ds_read_b32 v{vFlag}, v{vFr}", lid=('f', 0, 0))
                elif ch == 'F':
                    add(f"v_cmp_lt_u32 vcc, v{vFlag}, v{vCnt}", needs=[('f', 0, 0)])
                    add(f"v_xor_b32 v{vKr}, s{sX}, v{vKr}")
                    add(f"v_xor_b32 v{vVr}, s{sX}, v{vVr}")
                    add(f"s_cbranch_vccnz L_spin{name}")
                    add(f"L_back{name}:")
                    add(f"v_add_u32 v{vCnt}, 1, v{vCnt}")
                    add(f"s_xor_b32 s{sX}, s{sX}, 0x8000")
                elif ch == 'i':
                    it = [f"s_add_u32 s{sIter}, s{sIter}, 1", f"s_cmp_ge_u32 s{sIter}, 5",
                          f"s_cselect_b32 s{sV+2}, 0, s{sV+2}", f"s_mov_b32 s{sK+2}, s{sV+2}"]
                    add(it[cnt.setdefault('i', 0)]); cnt['i'] += 1
                elif ch == 'a':
                    adv = [f"s_add_u32 s{sM0V}, s{sM0V}, 0x4000", f"s_and_b32 s{sM0V}, s{sM0V}, 0xffff",
                           f"s_add_u32 s{sVoffs}, s{sVoffs}, {CH}"]
                    add(adv[cnt.setdefault('a', 0)]); cnt['a'] += 1
                elif ch == 'P':
                    add(f"ds_write_b32 v{vFw}, v{vCnt}", lid=('P', 0, 0))
                    if name == 'A':
                        assert cnt['W'] == 4
                        add(f"v_xor_b32 v{vKw}, 0x8000, v{vKw}")
                else: raise ValueError(ch)
            assert ei == 16, (name, T, ei)
            if T % 2 == 1: assert ki == 2 and vi == 4
        if name == 'A':
            assert cnt == dict(n=4, t=7, g=7, x=3, s=6, m=7, c=14, W=4, X=0, a=3, i=4), cnt
        return ops

    halves = {'A': build_half('A', opt.patA), 'B': build_half('B', opt.patB)}
    def shift(ops):
        out = []
        for t, lid, needs in ops:
            if lid is not None:
                lid = (lid[0], lid[1] - 4, lid[2]) if lid[0] in 'kv' else (lid[0], -1, lid[2])
            out.append((t, lid, []))
        return out
    def resolve(name):
        ops = halves[name]
        res = {}
        for pred in 'AB':
            seq = shift(halves[pred]) + ops
            base = len(seq) - len(ops)
            pos = {lid: i for i, (t, lid, n) in enumerate(seq) if lid is not None}
            waits = [i for i in range(base, len(seq)) if seq[i][0] == "WAIT"]
            covered = -1
            covered = pos[('k', 0, 1)]
            for i in range(base, len(seq)):
                t, lid, needs = seq[i]
                if t == "WAIT":
                    nxt = min([w for w in waits if w > i] + [len(seq)])
                    need = [pos[x] for k in range(i, nxt) for x in seq[k][2] if x in pos]
                    tgt = max(need + [covered])
                    assert tgt < i, ("wait placed before its load", name, seq[tgt][0])
                    n = sum(1 for k in range(tgt + 1, i) if seq[k][1] is not None)
                    res[i - base] = min(res.get(i - base, 15), n)
                    covered = tgt
                for x in needs:
                    if x in pos: assert pos[x] <= covered, ("uncovered", name, t, x)
                    else: assert x[0] == 'v' and x[1] < -2 or x[1] <= -2, x
        out = [(f"s_waitcnt lgkmcnt({res[i]})" if t == "WAIT" else t) for i, (t, lid, n) in enumerate(ops)]
        return [t for t in out if not any(re.search(d, t) for d in opt.drop)]

    L.append(".p2align 3")
    lab("L_A")
    for t in resolve('A'):
        (L.append(t) if t.endswith(":") else e(t))
    lab("L_B")
    for t in resolve('B'):
        (L.append(t) if t.endswith(":") else e(t))
    e(f"s_cmp_lt_u32 s{sIter}, 6")
    e("s_cbranch_scc1 L_A")
    e("s_branch L_B")
    lab("L_tail")
    c("last two tiles; local block 0 goes to the partner wave, local block 1 is finished here")
    e(f"s_lshl_b32 s{sTmp}, s{sWave}, 12")
    e(f"s_add_u32 s{sTmp}, s{sTmp}, {LDS_K}")
    e(f"v_add_u32 v{vT0}, s{sTmp}, v{vL16}")
    e(f"v_xor_b32 v{vT1}, 0x4000, v{vT0}")
    if opt.st_lin:
        e(f"v_add_u32 v{vSS}, s{sM0R}, v{vL16}")
    no = nr = 0
    vF = vO + 16
    for T, Tp, Tn, pat in opt.patT:
        ei = 0
        for ch in pat:
            if ch == 'e': e(ex(T, ei)); ei += 1
            elif ch == 'A': e(sm(Tp, 1))
            elif ch == 'B': e(m1(Tn))
            elif ch == 'C': e(m2(Tn))
            elif ch == 'D': assert ei >= 10; e(sm(T, 0))
            elif ch == 'w': e("s_waitcnt lgkmcnt(0)")
            elif ch == 'y': e("s_waitcnt vmcnt(0)")
            elif ch == 'n': e("s_nop 0")
            elif ch == 'b': e("s_barrier")
            elif ch in '0123':
                if opt.prio: e(f"s_setprio {opt.pmap[int(ch)]}")
            elif ch == 'O':
                e(f"ds_write_b128 v{vT0}, {vr(vO+4*no,4)} offset:{1024*no}"); no += 1
            elif ch == 'R':
                e(f"ds_read_b128 {vr(vD+4*nr,4)}, v{vT1} offset:{1024*nr}"); nr += 1
            elif ch == 'a':
                for j in range(0, 16, 2):
                    e(f"v_pk_add_f32 {vr(vF+j,2)}, {vr(vF+j,2)}, {vr(vD+j,2)}")
            else: raise ValueError(ch)
        assert ei == 16
    assert no == 4 and nr == 4
    e("s_nop 1")
    e(sm(7, 1))
    wst()
    e("s_nop 11")
    e(f"v_mov_b32 v{vT0}, v{vF+12}")
    e(f"v_mov_b32 v{vT1}, v{vF+12}")
    e("s_nop 1")
    e(f"v_permlane32_swap_b32 v{vT0}, v{vT1}")
    e(f"v_rcp_f32 v{vB}, v{vT1}")
    e("s_nop 0")
    if True:
        c("rows -> own staging buffer -> whole lines")
        for j in range(4):
            e(f"v_pk_mul_f32 {vr(vF+4*j,2)}, {vr(vF+4*j,2)}, {vr(vB,2)} op_sel_hi:[1,0]")
            e(f"v_pk_mul_f32 {vr(vF+4*j+2,2)}, {vr(vF+4*j+2,2)}, {vr(vB,2)} op_sel_hi:[1,0]")
            e(f"v_cvt_pk_bf16_f32 v{vP+2*j}, v{vF+4*j}, v{vF+4*j+1}")
            e(f"v_cvt_pk_bf16_f32 v{vP+2*j+1}, v{vF+4*j+2}, v{vF+4*j+3}")
            if j == 3: e("s_mov_b32 exec_hi, 0")
            e(f"ds_write_b64 v{vOoff}, {vr(vP+2*j,2)} offset:{8*j}")
        e("s_mov_b32 exec_hi, -1")
        e(f"ds_read_b128 {vr(vD,4)}, v{vSS}")
        e(f"ds_read_b128 {vr(vD+4,4)}, v{vSS} offset:1024")
        e("s_waitcnt lgkmcnt(1)")
        e(f"buffer_store_dwordx4 {vr(vD,4)}, v{vL16}, s[{sO}:{sO+3}], s{sOoff} offen{opt.st_flags}")
        e("s_mov_b32 exec_hi, 0xffff")
        e("s_waitcnt lgkmcnt(0)")
        e(f"buffer_store_dwordx4 {vr(vD+4,4)}, v{vL16}, s[{sO}:{sO+3}], s{sOoff} offen offset:1024{opt.st_flags}")
    if opt.ws:
        e("s_mov_b64 exec, -1")
        if opt.lazy:
            lst(9)
            e("s_waitcnt lgkmcnt(0)")
            for k in range(10):
                e(f"s_sub_u32 s74, s{80+2*k}, s72")
                e(f"v_writelane_b32 v{vSt}, s74, {k}")
            e("s_mov_b32 s70, 10")
        wst()
        e("s_waitcnt vmcnt(0)")
        wst()
        e("s_memrealtime s[78:79]")
        e("s_load_dwordx2 s[80:81], s[0:1], 48")
        e("s_waitcnt lgkmcnt(0)")
        e("s_mov_b32 s82, 0x1000000"); e("s_mov_b32 s83, 0x00020000")
        e(f"v_writelane_b32 v{vSt}, s70, 31")
        e(f"v_writelane_b32 v{vSt}, s76, 30")
        e(f"v_writelane_b32 v{vSt}, s78, 29")
        e(f"s_lshl_b32 s3, s2, 3"); e(f"s_add_u32 s3, s3, s{sWave}"); e("s_lshl_b32 s3, s3, 7")
        e(f"v_lshlrev_b32 v1, 2, v{vLane}")
        e("s_mov_b32 exec_hi, 0")
        e(f"buffer_store_dword v{vSt}, v1, s[80:83], s3 offen")
    if opt.padto:
        e("s_waitcnt vmcnt(0)")
        lab("L_pspin")
        e("s_memrealtime s[78:79]")
        e("s_waitcnt lgkmcnt(0)")
        e("s_sub_u32 s84, s78, s76")
        e(f"s_cmp_lt_u32 s84, {opt.padto}")
        e("s_cbranch_scc1 L_pspin")
    lab("L_end")
    e("s_endpgm")

    for name in 'AB':
        lab(f"L_spin{name}")
        c("some wave has not yet published the next chunk: wait for it")
        e(f"s_sleep {opt.sleep}")
        e(f"ds_read_b32 v{vFlag}, v{vFr}")
        e("s_waitcnt lgkmcnt(0)")
        e(f"v_cmp_lt_u32 vcc, v{vFlag}, v{vCnt}")
        e(f"s_cbranch_vccnz L_spin{name}")
        e(f"s_branch L_back{name}")

    lab("L_prep")
    for m in range(7): e(f"ds_read_b64 {vr(vP+2*m,2)}, v{vNat} offset:{8*m}")
    for s in tr_reads: e(s)
    for m in range(7):
        e(f"s_waitcnt lgkmcnt({13 - m})")
        if m > 0: e("s_nop 0")
        e(grams[m])
    e("s_nop 4")
    for t in sels: e(t)
    e(norm[0]); e("s_nop 0"); e(norm[1]); e(norm[2]); e("s_nop 0")
    for s in norm[3:]: e(s)
    e("s_waitcnt lgkmcnt(0)")
    e("s_nop 0")
    for s in smalls: e(s)
    for i in range(14):
        e(cvts[i])
        if i % 4 == 3: e(writes[i // 4])
    e(writes[3])
    e(f"v_xor_b32 v{vKw}, 0x8000, v{vKw}")
    e(f"s_setpc_b64 s[{sRet}:{sRet+1}]")

    lab("L_special")
    e(f"s_cmp_eq_u32 s{sMode}, 0")
    e("s_cbranch_scc1 L_maxpass")
    c("second pass: put -max into the pad slots of the Q fragments (lanes 32..63)")
    e("s_mov_b32 exec_lo, 0")
    e(f"v_mov_b32 v{vQ+10}, v{vPad}")
    e(f"v_mov_b32 v{vQ+11}, v{vPad+1}")
    e(f"v_mov_b32 v{vQ+14}, v{vPad+2}")
    e(f"v_mov_b32 v{vQ+15}, v{vPad+3}")
    e("s_mov_b32 exec_lo, -1")
    e("s_nop 1")
    e("s_branch L_fill")
    lab("L_maxpass")
    mx = [vPad, vPad + 2]
    e(f"v_mov_b32 v{mx[0]}, 0xff800000")
    e(f"v_mov_b32 v{mx[1]}, 0xff800000")
    lab("L_mloop")
    c("chunk sIter is in LDS; group (sIter & 1) normalises chunk sIter + 1 (chunk 1 is done, K2 is staged)")
    e(f"s_add_u32 s{sTmp}, s{sIter}, s{sG}")
    e(f"s_bitcmp1_b32 s{sTmp}, 0")
    e("s_cbranch_scc1 L_mnoprep")
    e(f"s_cmp_eq_u32 s{sIter}, 7")
    e("s_cbranch_scc1 L_mnoprep")
    e(f"s_cmp_eq_u32 s{sIter}, 0")
    e("s_cbranch_scc1 L_mnoprep")
    e(f"s_cmp_eq_u32 s{sIter}, 1")
    e("s_cbranch_scc1 L_mhave")
    for t in rawnext_l(): e(t)
    lab("L_mhave")
    e(f"s_waitcnt vmcnt(0) lgkmcnt(0)")
    e(f"s_call_b64 s[{sRet}:{sRet+1}], L_prep")
    lab("L_mnoprep")
    for j in range(4):
        for s in kread(j, 0): e(s)
        e("s_waitcnt lgkmcnt(0)")
        e(m1(0)); e(m2(0)); e(m1(1)); e(m2(1))
        e("s_nop 15")
        for b in range(2):
            for i in range(0, 16, 2):
                e(f"v_max3_f32 v{mx[b]}, v{vS+16*b+i}, v{vS+16*b+i+1}, v{mx[b]}")
    e("s_barrier")
    e(f"v_xor_b32 v{vKr}, s{sX}, v{vKr}")
    e(f"s_xor_b32 s{sX}, s{sX}, 0x8000")
    e(f"s_add_u32 s{sIter}, s{sIter}, 1")
    e(f"s_cmp_lt_u32 s{sIter}, 8")
    e("s_cbranch_scc1 L_mloop")
    c("combine the two lane halves and the partner wave (whose local blocks are swapped)")
    for b in range(2):
        e(f"v_mov_b32 v{vT0}, v{mx[b]}")
        e("s_nop 1")
        e(f"v_permlane32_swap_b32 v{mx[b]}, v{vT0}")
        e("s_nop 1")
        e(f"v_max_f32 v{mx[b]}, v{mx[b]}, v{vT0}")
    e(f"s_lshl_b32 s{sTmp}, s{sWave}, 12")
    e(f"s_add_u32 s{sTmp}, s{sTmp}, {LDS_K}")
    e(f"v_add_u32 v{vT0}, s{sTmp}, v{vL16}")
    e(f"v_xor_b32 v{vT1}, 0x4000, v{vT0}")
    e("s_waitcnt vmcnt(0) lgkmcnt(0)")
    e(f"ds_write_b32 v{vT0}, v{mx[0]}")
    e(f"ds_write_b32 v{vT0}, v{mx[1]} offset:4")
    e("s_waitcnt lgkmcnt(0)")
    e("s_barrier")
    e(f"ds_read_b64 {vr(vD,2)}, v{vT1}")
    e("s_waitcnt lgkmcnt(0)")
    e("s_barrier")
    e(f"s_mov_b32 s{sTmp}, 0xffff0000")
    for b in range(2):
        m = mx[b]
        e(f"v_max_f32 v{m}, v{m}, v{vD+1-b}")
        c("split -max into three bf16 parts")
        e(f"v_sub_f32 v{m}, 0, v{m}")
        e(f"v_and_b32 v{vT0}, s{sTmp}, v{m}")
        e(f"v_sub_f32 v{m}, v{m}, v{vT0}")
        e(f"v_and_b32 v{vT1}, s{sTmp}, v{m}")
        e(f"v_sub_f32 v{m}, v{m}, v{vT1}")
        e(f"v_lshrrev_b32 v{m+1}, 16, v{m}")
        e(f"v_lshrrev_b32 v{vT0}, 16, v{vT0}")
        e(f"v_or_b32 v{m}, v{vT0}, v{vT1}")
    e(f"s_mov_b32 s{sMode}, 1")
    e("s_branch L_restart")

    txt = HEADER + f"; @launch grid=(256,1,1) block=(512,1,1) lds={LDS_TOTAL}\n"
    txt += """.amdgcn_target "amdgcn-amd-amdhsa--gfx950"
.text
.globl standalone__qk_norm__prompt_kernel
.p2align 8
.type standalone__qk_norm__prompt_kernel,@function
standalone__qk_norm__prompt_kernel:
"""
    txt += "\n".join(L) + "\n"
    txt += f""".section .rodata,"a"
.p2align 6
.amdhsa_kernel standalone__qk_norm__prompt_kernel
  .amdhsa_next_free_vgpr {NV}
  .amdhsa_next_free_sgpr {102 if (opt.ws or opt.padto) else 72}
  .amdhsa_accum_offset {(NV+3)//4*4}
  .amdhsa_group_segment_fixed_size 0
  .amdhsa_kernarg_size 56
  .amdhsa_user_sgpr_count 2
  .amdhsa_user_sgpr_kernarg_segment_ptr 1
  .amdhsa_system_sgpr_workgroup_id_x 1
.end_amdhsa_kernel
"""
    return txt

if __name__ == "__main__":
    opt = Opt()
    out = sys.argv[1]
    for a in sys.argv[2:]:
        k, v = a.split("=", 1)
        assert hasattr(opt, k), k
        setattr(opt, k, eval(v))
    open(out, "w").write(gen(opt))
```

```python
import sys, re

HEADER = """; Kernarg layout for this problem (56 bytes, ptrs only, base s[0:1]):
"""

PAT_B = [
 "eeA3wkeeeeBkeeeeCveeeeDvee",
 "eeAveeeeBzveeeeC[XX]eeeeD[XX]ee",
 "eeA2wkeeeeBkeeeeCqveeeeDvpeeT",
 "eeA1veeeeBveeeeC0feeeeDee",
 "eeA3wFkeeeeBkeeeeCveeeeDvee",
 "eeAzveeeeByveeeeC[V]eeeeD[U]ee",
 "eeA2wkeeeeBakeeeeCaveeeeDaivee",
 "eeA1veeeeBveeeeC0eeeeDPee",
]
PAT_A = [
 "eeA3wkeeeeBkeeeeCveeeeDvee",
 "eeAveeeeBveeeeCYnneeeeDnnee",
 "eeA2wkteeegeBkteeegeCvteeegeDvtee",
 "egeA1vteeegeBvteeegeC0fteeegeDee",
 "eeA3wFkexexexeBkesesesesCvesseemeDvee",
 "emeAzveecemeByvececemeC[V]ececemeD[U]ecec",
 "emeA2wkececemeBakWececeeCavWeceecceDaivee",
 "eeA1vWeeeeBvWeeeeC0eeeeDPee",
]
PAT_T = [
 (3, 2, 6, "eeA1Kveeee" "BveeeeC0eeeeDee"),
 (4, 3, 5, "eeA3eeeeBeeeeCeeeeDee"),
 (6, 4, 7, "eeA2weeeeBeeeeCeeeeD1ee"),
 (5, 6, 0, "eeAeeee0eeeeDeeeOeOeOeO"),
 (7, 5, 0, "eeAwbReReReReeeeewaeeDeeee"),
]

class Opt:
    ws = False
    patT = PAT_T
    st_flags = ' sc1'
    st_lin = True
    g1prio = 3
    v1pos = 0
    v1wait = 1
    touch = 0
    k1early = 0
    bpos = 0
    lazy = False
    cpf = 1
    padat = -1
    qdelay = 1
    dry = False
    g1early = 0
    nt0 = ' nt'
    ntl = ''
    pf0 = 3
    pf1 = 3
    pat0 = 'eeEaaeeeGaaeeeBkVeeeCkUeewDvveee'
    v0pos = 1
    xpos = 2
    pmid = 3
    drop = ()
    padto = 0
    force_fallback = False
    patA = PAT_A
    patB = PAT_B
    prio = True
    pmap = '0123'
    p_start = 2
    sleep = 1
    stampT = (4,)

def gen(opt):
    L = []
    def e(s): L.append("    " + s)
    def lab(s): L.append(s + ":")
    def c(s): L.append("    ; " + s)

    HB = 114688
    CH = 14336
    LDS_V = 0
    LDS_K = 65536
    LDS_Q = LDS_K + 3*16384
    LDS_R = 131072
    LDS_F = LDS_R + 8*3584
    LDS_TOTAL = LDS_F + 256
    vLane, vL16, vVoff, vKw, vKr, vVr, vIdx, vT0 = 0, 1, 2, 3, 4, 5, 6, 7
    vNat, vTr, vMa, vMb, vOoff, vT1, vSS, vR = 8, 9, 10, 11, 12, 13, 14, 15
    vQ = 16
    vO = 32
    vS = 64
    vKf = 128
    vVf = 144
    vP = 176
    vTt = 192
    vB = 206
    vD = 208
    vPad = 236
    vSt, vTv, vNq = 240, 241, 242
    vTq = 247
    vFw, vFr, vFlag, vCnt = 243, 244, 245, 246
    NV = 248
    sK, sV, sO, sR = 20, 24, 28, 48
    sWave, sHead, sQb, sG, sQg = 32, 33, 34, 35, 36
    sIter, sKnext, sVoffs, sM0V, sM0R = 37, 38, 39, 40, 41
    sT, sScale, sEps, sOoff = 42, 43, 44, 45
    sTmp, sTmp2 = 46, 47
    sExV = 52
    sRet = 54
    sMode, sAbsT = 56, 57
    sPre, sX = 58, 59
    sAlt = 60
    sMk = 64

    def vr(b, n): return f"v[{b}:{b+n-1}]"

    def wst_l():
        if not opt.ws: return []
        return ["s_memtime s[74:75]", "s_waitcnt lgkmcnt(0)", "s_sub_u32 s74, s74, s72", "s_mov_b32 m0, s70", "s_nop 0",
                f"v_writelane_b32 v{vSt}, s74, m0", "s_add_u32 s70, s70, 1"]
    def wst():
        if opt.lazy: return
        for s in wst_l(): e(s)
    def lst(k):
        if opt.padto and opt.padat == k: e("s_memrealtime s[76:77]")
        if opt.lazy: e(f"s_memtime s[{80+2*k}:{81+2*k}]")

    def rawdma_l(srd, soff, m0=None, fl=None):
        fl = opt.ntl if fl is None else fl
        r = [f"s_mov_b32 m0, s{sM0R if m0 is None else m0}", "s_nop 0"]
        for i in range(3):
            r.append(f"buffer_load_dwordx4 v{vL16}, s[{srd}:{srd+3}], s{soff} offen offset:{1024*i}{fl} lds")
        r.append("s_mov_b32 exec_hi, 0")
        r.append(f"buffer_load_dwordx4 v{vL16}, s[{srd}:{srd+3}], s{soff} offen offset:3072{fl} lds")
        r.append("s_mov_b32 exec_hi, -1")
        return r
    def rawnext_l(fl=None):
        return rawdma_l(sK, sKnext, fl=fl) + [f"s_add_u32 s{sKnext}, s{sKnext}, {2*CH}"]

    def vdma_l(m0=None, off=None, adv=True, fl=None):
        fl = opt.ntl if fl is None else fl
        m0 = sM0V if m0 is None else m0
        off = sVoffs if off is None else off
        r = [f"s_mov_b32 m0, s{m0}",
             f"s_mov_b64 exec, s[{sExV}:{sExV+1}]",
             f"buffer_load_dwordx4 v{vVoff}, s[{sV}:{sV+3}], s{off} offen{fl} lds",
             f"s_add_u32 m0, s{m0}, 128",
             f"s_add_u32 s{sM0V}, s{sM0V}, 0x4000" if adv else "s_nop 0",
             f"buffer_load_dwordx4 v{vVoff}, s[{sV}:{sV+3}], s{off} offen offset:896{fl} lds",
             f"s_mov_b64 exec, -1"]
        if adv:
            r += [f"s_and_b32 s{sM0V}, s{sM0V}, 0xffff", f"s_add_u32 s{sVoffs}, s{sVoffs}, {CH}"]
        return r

    nat_reads = [f"ds_read2_b64 {vr(vP+4*i,4)}, v{vNat} offset0:{2*i} offset1:{2*i+1}" for i in range(3)] + \
                [f"ds_read_b64 {vr(vP+12,2)}, v{vNat} offset:48"]
    tr_reads = [f"ds_read_b64_tr_b16 {vr(vTt+2*m,2)}, v{vTr} offset:{8*m}" for m in range(7)]
    dots = [f"v_dot2_f32_bf16 v{vSS}, v{vP+i}, v{vP+i}, {'0' if i == 0 else 'v%d' % vSS}" for i in range(14)]
    grams = [f"v_mfma_f32_4x4x4_16b_bf16 {vr(vD,4)}, {vr(vP+2*m,2)}, {vr(vP+2*m,2)}, {'0' if m == 0 else vr(vD,4)}" for m in range(7)]
    sels = [f"v_cndmask_b32 v{vSS}, v{vD if i == 0 else vSS}, v{vD+1+i}, s[{sMk+2*i}:{sMk+2*i+1}]" for i in range(3)]
    norm = [f"v_sqrt_f32 v{vSS}, v{vSS}", f"v_add_f32 v{vSS}, s{sEps}, v{vSS}", f"v_rcp_f32 v{vR}, v{vSS}",
            f"v_cvt_pk_bf16_f32 v{vR}, v{vR}, v{vR}", f"v_and_b32 v{vB}, v{vR}, v{vMa}", f"v_and_b32 v{vB+1}, v{vR}, v{vMb}"]
    smalls = [f"v_mfma_f32_4x4x4_16b_bf16 {vr(vD+4*m,4)}, {vr(vTt+2*m,2)}, {vr(vB,2)}, 0" for m in range(7)]
    cvts = [f"v_cvt_pk_bf16_f32 v{vP+i}, v{vD+2*i}, v{vD+2*i+1}" for i in range(14)]
    writes = [f"ds_write_b128 v{vKw}, {vr(vP+4*i,4)} offset:{512*i}" for i in range(4)]

    e("s_load_dwordx4 s[4:7], s[0:1], 0")
    e("s_load_dwordx4 s[8:11], s[0:1], 16")
    e("s_load_dwordx2 s[12:13], s[0:1], 32")
    e("s_cmp_ge_u32 s2, 256")
    e("s_cbranch_scc1 L_end")
    if opt.ws:
        e("s_memtime s[72:73]"); e("s_memrealtime s[76:77]"); e("s_mov_b32 s70, 0"); e("s_mov_b32 s71, 0")
    if opt.padto: e("s_memrealtime s[76:77]")
    e(f"v_lshrrev_b32 v{vT0}, 6, v0")
    e(f"v_and_b32 v{vLane}, 63, v0")
    e(f"v_readfirstlane_b32 s{sWave}, v{vT0}")
    if opt.cpf:
        c("pull the kernel's own code into L2 while the first data is on its way: one line per wave")
        e("s_getpc_b64 s[14:15]")
        lab("L_pc")
        e(f"s_and_b32 s3, s2, 56")
        e(f"v_add_u32 v{vT1}, s3, v{vT0}")
        e(f"v_min_u32 v{vT1}, (L_special - L_pc) / 128, v{vT1}")
        e(f"v_lshlrev_b32 v{vT1}, 7, v{vT1}")
        e(f"global_load_dword v{vPad}, v{vT1}, s[14:15]")
    c("head = (wg&7)*4 + (wg>>6), qblk = (wg>>3)&7")
    e("s_and_b32 s3, s2, 7")
    e(f"s_lshr_b32 s{sHead}, s2, 6")
    e(f"s_lshl2_add_u32 s{sHead}, s3, s{sHead}")
    e(f"s_mov_b32 s{sMode}, 0")
    e(f"v_lshlrev_b32 v{vL16}, 4, v{vLane}")
    lab("L_restart")
    e(f"s_movk_i32 s{sTmp2}, 3584")
    e(f"s_mov_b32 s{sR+2}, {HB}")
    e(f"s_mov_b32 s{sR+3}, 0x00020000")
    e(f"s_mul_i32 s3, s{sHead}, s{sR+2}")
    e(f"s_mul_i32 s{sM0R}, s{sWave}, s{sTmp2}")
    e(f"s_add_u32 s{sM0R}, s{sM0R}, {LDS_R}")
    e(f"s_and_b32 s{sQg}, s{sWave}, 3")
    e(f"s_mul_i32 s{sKnext}, s{sQg}, s{sTmp2}")
    c("waves 0..3 (group 1) start with K0, waves 4..7 (group 0) with the Q rows qblk*256 + qg*64")
    e(f"s_and_b32 s{sTmp}, s2, 56")
    e(f"s_mulk_i32 s{sTmp}, 1792")
    e(f"s_add_u32 s{sOoff}, s{sTmp}, s{sKnext}")
    e(f"s_and_b32 s{sTmp2}, s{sHead}, 15")
    e(f"s_lshl_b32 s{sTmp2}, s{sTmp2}, 1")
    e(f"v_mov_b32 v{vTv}, s{sTmp2}")
    if opt.touch:
        e(f"s_lshr_b32 s{sPre}, s{sTmp}, 3")
        e(f"s_add_u32 s{sPre}, s{sPre}, {CH}")
        e(f"s_lshl_b32 s{sTmp2}, s{sQg}, 2")
        e(f"v_and_or_b32 v{vT0}, v{vLane}, 3, s{sTmp2}")
        e(f"v_min_u32 v{vT0}, 13, v{vT0}")
        e(f"v_lshlrev_b32 v{vT0}, 7, v{vT0}")
    e(f"s_mov_b32 m0, s{sM0R}")
    e(f"s_cmp_lt_u32 s{sWave}, 4")
    e(f"s_cselect_b32 s{sG}, 1, 0")
    e(f"s_cselect_b32 s{sTmp}, s{sKnext}, s{sOoff}")
    e("s_waitcnt lgkmcnt(0)")
    e(f"s_cselect_b32 s{sR}, s6, s4")
    e(f"s_cselect_b32 s{sR+1}, s7, s5")
    e(f"global_load_ushort v{vTv}, v{vTv}, s[10:11]")
    e(f"s_add_u32 s{sR}, s{sR}, s3")
    e(f"s_addc_u32 s{sR+1}, s{sR+1}, 0")
    def touch():
        c("group 1 touches this block's share of K1: an L2 hit for the head's 8 blocks once it is fetched")
        e(f"s_cmp_eq_u32 s{sG}, 0")
        e("s_cbranch_scc1 L_nt")
        e(f"buffer_load_dword v{vFlag}, v{vT0}, s[{sR}:{sR+3}], s{sPre} offen{opt.nt0 if opt.touch & 2 else ''}")
        lab("L_nt")
    if opt.touch: touch()
    for t in rawdma_l(sR, sTmp, fl=opt.nt0)[2:]: e(t)
    lst(1)
    for srd, p in ((sK, 6), (sV, 8), (sO, 12)):
        e(f"s_add_u32 s{srd}, s{p}, s3")
        e(f"s_addc_u32 s{srd+1}, s{p+1}, 0")
        e(f"s_mov_b32 s{srd+2}, s{sR+2}")
        e(f"s_mov_b32 s{srd+3}, 0x00020000")
    c("output rows of this wave: + G*32")
    e(f"s_mul_i32 s{sTmp}, s{sG}, 1792")
    e(f"s_add_u32 s{sOoff}, s{sOoff}, s{sTmp}")
    e(f"s_mov_b32 s{sExV}, 0x7f7f7f7f")
    e(f"s_mov_b32 s{sExV+1}, s{sExV}")
    e(f"s_lshl_b32 s{sM0V}, s{sWave}, 11")
    c("vVoff = (lane>>3)*112 + (lane&7)*16 = lane*16 - (lane>>3)*16")
    e(f"v_lshrrev_b32 v{vT0}, 3, v{vLane}")
    e(f"v_and_b32 v{vT1}, 15, v{vLane}")
    e(f"v_sub_u32 v{vVoff}, v{vLane}, v{vT0}")
    e(f"v_lshrrev_b32 v{vSS}, 4, v{vLane}")
    e(f"v_lshlrev_b32 v{vVoff}, 4, v{vVoff}")
    c("ones pads in the V ring: lane -> slot lane>>4, pair lane&15")
    e(f"v_lshl_add_u32 v{vT1}, v{vSS}, 7, v{vT1}")
    e(f"v_mov_b32 v{vD}, 0x3f80")
    e(f"v_mov_b32 v{vD+1}, 0")
    e(f"v_lshl_add_u32 v{vT1}, v{vT1}, 7, s{sM0V}")
    e(f"ds_write_b64 v{vT1}, {vr(vD,2)} offset:112")
    c("progress flags: one word per wave")
    e(f"s_lshl_b32 s{sTmp}, s{sWave}, 2")
    e(f"s_add_u32 s{sTmp}, s{sTmp}, {LDS_F}")
    e(f"v_mov_b32 v{vFw}, s{sTmp}")
    e(f"v_mov_b32 v{vCnt}, 0" if not opt.v1wait else f"v_sub_u32 v{vCnt}, 1, s{sG}")
    e(f"v_and_b32 v{vT0}, 3, v{vLane}")
    e(f"v_bfe_u32 v{vSS}, v{vLane}, 2, 2")
    e(f"ds_write_b32 v{vFw}, v{vCnt}")
    c("staging addresses")
    e(f"v_lshl_add_u32 v{vSS}, v{vT0}, 2, v{vSS}")
    e(f"v_mul_u32_u24 v{vNat}, 56, v{vLane}")
    e(f"v_and_or_b32 v{vSS}, v{vLane}, 48, v{vSS}")
    e(f"v_lshlrev_b32 v{vT0}, 4, v{vT0}")
    e(f"v_mul_u32_u24 v{vTr}, 56, v{vSS}")
    e(f"v_mov_b32 v{vMa}, 0xffff")
    e(f"v_mov_b32 v{vMb}, 0")
    e(f"v_add_u32 v{vNat}, s{sM0R}, v{vNat}")
    e(f"v_add_u32 v{vTr}, s{sM0R}, v{vTr}")
    e(f"v_lshlrev_b64 {vr(vMa,2)}, v{vT0}, {vr(vMa,2)}")
    c("frag write address: (lane>>5)*2048 + (lane&31)*16 + qg*4096 + K slot 0 (group 1) / slot 3 (group 0: Q fragments, later K3)")
    e(f"v_lshrrev_b32 v{vR}, 5, v{vLane}")
    e(f"s_lshl_b32 s{sAlt}, s{sQg}, 12")
    e(f"s_cmp_eq_u32 s{sG}, 0")
    e(f"s_cselect_b32 s{sX}, {LDS_Q - LDS_K}, 0")
    e(f"s_add_u32 s{sAlt}, s{sAlt}, {LDS_K}")
    e(f"s_add_u32 s{sX}, s{sX}, s{sAlt}")
    e(f"v_mul_u32_u24 v{vKw}, 1536, v{vR}")
    e(f"v_mov_b32 v{vP+14}, 0x3f803f80")
    e(f"v_add3_u32 v{vKw}, v{vKw}, v{vL16}, s{sX}")
    e(f"v_mov_b32 v{vP+15}, v{vP+14}")
    e(f"s_mov_b32 s{sEps}, 0x358637bd")
    e(f"s_mov_b32 s{sMk}, 0x22222222")
    e(f"s_mov_b32 s{sMk+1}, s{sMk}")
    e(f"s_lshl_b64 s[{sMk+2}:{sMk+3}], s[{sMk}:{sMk+1}], 1")
    e(f"s_lshl_b64 s[{sMk+4}:{sMk+5}], s[{sMk}:{sMk+1}], 2")
    c("output row offset in the staging buffer: (lane&31)*56 + h*32 = lane*56 - h*1760")
    e(f"v_mul_u32_u24 v{vT0}, 1760, v{vR}")
    c("Q fragment addresses: local block 1 is this wave's own block G")
    e(f"s_lshl_b32 s{sTmp}, s{sG}, 11")
    e(f"s_add_u32 s{sTmp}, s{sTmp}, s{sAlt}")
    e(f"s_add_u32 s{sTmp}, s{sTmp}, {LDS_Q - LDS_K}")
    e(f"v_sub_u32 v{vOoff}, v{vNat}, v{vT0}")
    e(f"v_add_u32 v{vTq}, s{sTmp}, v{vL16}")
    e(f"v_mov_b64 {vr(vVf+28,2)}, 0")
    e(f"v_xor_b32 v{vNq}, 0x800, v{vTq}")
    e(f"v_mov_b64 {vr(vVf+30,2)}, 0")
    c("V transpose-read address: 512*b5 + 128*b3 + 8*sel(b4,b2,b1,b0); sel = pi + 7*b2 with pi = 2*b4 + b1 + 4*b0, 14 (the pad) if pi == 7")
    tab = 0
    for idx in range(16):
        b0, b1, b2, b4 = idx & 1, (idx >> 1) & 1, (idx >> 2) & 1, (idx >> 3) & 1
        pi = 2*b4 + b1 + 4*b0
        tab |= (14 if pi == 7 else pi + 7*b2) << (4*idx)
    e(f"s_mov_b32 s{sTmp}, {hex(tab & 0xffffffff)}")
    e(f"s_mov_b32 s{sTmp2}, {hex(tab >> 32)}")
    e(f"v_mfma_i32_32x32x32_i8 {vr(vO,16)}, {vr(vVf+28,4)}, {vr(vVf+28,4)}, 0")
    e(f"v_and_b32 v{vFr}, 7, v{vLane}")
    e(f"v_lshlrev_b32 v{vT0}, 1, v{vLane}")
    e(f"v_lshlrev_b32 v{vFr}, 2, v{vFr}")
    e(f"v_and_b32 v{vVr}, 40, v{vLane}")
    e(f"v_and_or_b32 v{vT0}, v{vT0}, 32, v{vFr}")
    e(f"v_lshlrev_b32 v{vVr}, 4, v{vVr}")
    e(f"v_lshrrev_b64 {vr(vB,2)}, v{vT0}, s[{sTmp}:{sTmp2}]")
    e(f"v_mfma_i32_32x32x32_i8 {vr(vO+16,16)}, {vr(vVf+28,4)}, {vr(vVf+28,4)}, 0")
    e(f"s_lshl_b32 s{sTmp2}, s{sG}, 13")
    e(f"v_and_b32 v{vB}, 15, v{vB}")
    e(f"v_add_u32 v{vFr}, {LDS_F}, v{vFr}")
    e(f"v_lshl_add_u32 v{vVr}, v{vB}, 3, v{vVr}")
    e(f"v_mov_b32 v{vCnt}, 1")
    e(f"v_add_u32 v{vVr}, s{sTmp2}, v{vVr}")
    e(f"s_add_u32 s{sTmp2}, s{sTmp2}, {LDS_K}")
    e(f"v_mov_b32 v{vIdx}, 0xdddddddd")
    e(f"v_add_u32 v{vKr}, s{sTmp2}, v{vL16}")
    e(f"s_mov_b32 s{sIter}, 0")
    e(f"s_movk_i32 s{sX}, 0x4000")
    def kread(tile, buf):
        o = tile * 2048
        return [f"ds_read_b128 {vr(vKf+8*buf,4)}, v{vKr} offset:{o}",
                f"ds_read_b128 {vr(vKf+8*buf+4,4)}, v{vKr} offset:{o+1024}"]
    def vread(tile, buf):
        o = tile * 2048
        return [f"ds_read_b64_tr_b16 {vr(vVf+8*buf+4*s+2*u,2)}, v{vVr} offset:{o+s*1024+u*256}" for s in range(2) for u in range(2)]
    def m1(T):
        return f"v_mfma_f32_32x32x16_bf16 {vr(vS+16*(T%4),16)}, {vr(vKf+8*((T//2)%2),4)}, {vr(vQ+4*(T%2),4)}, 0"
    def m2(T):
        return f"v_mfma_f32_32x32x16_bf16 {vr(vS+16*(T%4),16)}, {vr(vKf+8*((T//2)%2)+4,4)}, {vr(vQ+8+4*(T%2),4)}, {vr(vS+16*(T%4),16)}"
    def sm(T, s):
        return f"v_smfmac_f32_32x32x32_bf16 {vr(vO+16*(T%2),16)}, {vr(vVf+8*((T//2)%4)+4*s,4)}, {vr(vS+16*(T%4)+8*s,8)}, v{vIdx}"
    def ex(T, j):
        r = vS + 16*(T%4) + j
        return f"v_exp_f32 v{r}, v{r}"

    def vtwo(chunk):
        for half in range(2):
            e(f"s_lshl_b32 s{sTmp}, s{sQg}, 11")
            e(f"s_mul_i32 s{sTmp2}, s{sQg}, 1792")
            if chunk or half:
                e(f"s_add_u32 s{sTmp}, s{sTmp}, {chunk*16384 + half*8192}")
                e(f"s_add_u32 s{sTmp2}, s{sTmp2}, {chunk*CH + half*7168}")
            for t in vdma_l(m0=sTmp, off=sTmp2, adv=False, fl=opt.nt0): e(t)
    def tproc(q):
        e(f"v_lshlrev_b32 v{vTv}, 16, v{vTv}")
        if q:
            c("c = t*log2e")
            e(f"v_mul_f32 v{vT0}, 0x3fb8aa3b, v{vTv}")
        else: e("s_nop 0")
        e(f"v_readfirstlane_b32 s{sAbsT}, v{vTv}")
        if q:
            e(f"v_readfirstlane_b32 s{sScale}, v{vT0}")
            e(f"v_mov_b32 v{vP+15}, 0")
        else: e("s_nop 1")
        c("the shift |t|*log2e bounds every logit; it is used only while it cannot underflow a row (|t| <= 16)")
        e(f"s_and_b32 s{sAbsT}, s{sAbsT}, 0x7fffffff")
        if q:
            e(f"s_or_b32 s{sTmp2}, s{sScale}, 0x80000000")
            e(f"s_lshr_b32 s{sTmp2}, s{sTmp2}, 16")
        e(f"s_cmp_gt_u32 s{sAbsT}, {'0x41800000' if not opt.force_fallback else '0'}")
        if q: e(f"s_cselect_b32 s{sTmp2}, 0, s{sTmp2}")
        e(f"s_cselect_b32 s{sAbsT}, 1, 0")
        if q: e(f"v_mov_b32 v{vP+14}, s{sTmp2}")
    def qreads():
        e(f"ds_read_b128 {vr(vQ,4)}, v{vNq}")
        e(f"ds_read_b128 {vr(vQ+8,4)}, v{vNq} offset:1024")
        e(f"ds_read_b128 {vr(vQ+4,4)}, v{vTq}")
        e(f"ds_read_b128 {vr(vQ+12,4)}, v{vTq} offset:1024")
    def x3():
        for t in rawnext_l(fl=opt.nt0): e(t)
    v0 = vread(0, 0); v1 = vread(1, 1); k0 = kread(0, 0); k1 = kread(1, 1)
    e(f"s_mul_i32 s{sVoffs}, s{sWave}, 1792")
    e(f"s_add_u32 s{sM0V}, s{sM0V}, 0x8000")
    e(f"s_add_u32 s{sVoffs}, s{sVoffs}, {2*CH}")
    e(f"s_cmp_eq_u32 s{sG}, 0")
    e("s_cbranch_scc1 L_st4")
    c("group 1: K1 rows into this wave's part of the still unused K slot 2; K0, K1; V1 and K2 rows")
    e(f"s_add_u32 s{sAlt}, s{sAlt}, 32768")
    e(f"s_add_u32 s{sTmp}, s{sKnext}, {CH}")
    for t in rawdma_l(sK, sTmp, sAlt, fl=opt.nt0): e(t)
    lst(5)
    e(f"s_add_u32 s{sKnext}, s{sKnext}, {2*CH}")
    e(f"s_sub_u32 s{sAlt}, s{sM0R}, s{sAlt}")
    e(f"s_mov_b32 s{sScale}, 1.0")
    if opt.dry:
        c("run the normalisation once on whatever is staged: brings its code into the instruction cache")
        e(f"s_call_b64 s[{sRet}:{sRet+1}], L_prep")
        e(f"v_xor_b32 v{vKw}, 0x8000, v{vKw}")
    e(f"s_waitcnt vmcnt(4)")
    lst(3)
    e(f"s_call_b64 s[{sRet}:{sRet+1}], L_prep")
    e(f"v_xor_b32 v{vKw}, 0xc000, v{vKw}")
    e(f"v_subrev_u32 v{vNat}, s{sAlt}, v{vNat}")
    e(f"v_subrev_u32 v{vTr}, s{sAlt}, v{vTr}")
    tproc(False)
    e("s_waitcnt lgkmcnt(0)")
    lst(4)
    e("s_barrier")
    for t in k0 + k1: e(t)
    if opt.xpos == 0: x3()
    e(f"s_setprio {opt.g1prio}")
    e(f"s_waitcnt vmcnt({4 if opt.xpos == 0 else 0})")
    lst(0)
    if opt.xpos == 1: x3()
    if opt.bpos == 1:
        lst(6); e("s_barrier"); lst(2)
    e(f"s_call_b64 s[{sRet}:{sRet+1}], L_prep")
    e(f"v_xor_b32 v{vKw}, 0x4000, v{vKw}")
    e(f"v_add_u32 v{vNat}, s{sAlt}, v{vNat}")
    e(f"v_add_u32 v{vTr}, s{sAlt}, v{vTr}")
    if opt.xpos == 2: x3()
    if opt.bpos == 0:
        e("s_waitcnt lgkmcnt(0)")
        lst(6); e("s_barrier"); lst(2)
    qreads()
    e(f"ds_write_b32 v{vFw}, v{vCnt}")
    e("s_waitcnt lgkmcnt(1)")
    lab("L_fill")
    e(m1(0)); e(m2(0))
    e("s_nop 1")
    e("s_branch L_st5")
    lab("L_st4")
    c("group 0: V0; Q rows -> fragments for this wave and its partner")
    vtwo(0)
    if opt.v1pos == 0: vtwo(1)
    n1 = 4 if opt.v1pos == 0 else 0
    lst(5)
    e(f"s_add_u32 s{sKnext}, s{sKnext}, {3*CH}")
    e(f"s_waitcnt vmcnt({8 + n1})")
    tproc(True)
    e("s_waitcnt lgkmcnt(0)")
    lst(3); lst(4)
    e("s_barrier")
    for t in k0 + k1: e(t)
    e(f"s_setprio {opt.p_start}")
    e(f"s_waitcnt vmcnt({4 + n1})")
    lst(0)
    e(f"s_call_b64 s[{sRet}:{sRet+1}], L_prep")
    qreads()
    e(f"v_xor_b32 v{vKw}, 0x8000, v{vKw}")
    e(f"s_mov_b32 s{sScale}, 1.0")
    e("s_waitcnt lgkmcnt(2)")
    e(m1(0)); e(m2(0))
    e(f"v_mov_b32 v{vP+14}, 0x3f803f80")
    e(f"v_mov_b32 v{vP+15}, 0x3f803f80")
    if opt.v1pos == 1: vtwo(1)
    e(f"s_waitcnt vmcnt({0 if opt.v1wait else 4}) lgkmcnt(0)")
    lst(6)
    e("s_barrier")
    lst(2)
    lab("L_st5")
    e(f"s_cmp_lg_u32 s{sAbsT}, 0")
    e("s_cbranch_scc1 L_special")
    lst(7)
    for t in v0: e(t)
    e(f"s_setprio {opt.pf0}")
    e(f"s_cmp_eq_u32 s{sG}, 0")
    e("s_cbranch_scc1 L_pf")
    e(f"s_setprio {opt.pf1}")
    lab("L_pf")
    wst(); lst(8)
    c("first tile: also computes the scores of tile 1")
    k2 = kread(2, 0); v2 = vread(2, 2); vd = vdma_l()
    ei = 0; nl = 0
    for ch in opt.pat0:
        if ch == 'e': e(ex(0, ei)); ei += 1
        elif ch == 'E': e(m1(1))
        elif ch == 'G': e(m2(1))
        elif ch == 'B': e(m1(2))
        elif ch == 'C': e(m2(2))
        elif ch == 'D': e(sm(0, 0))
        elif ch == 'a': e(v1.pop(0)); nl += 1
        elif ch == 'k': assert not v1; e(k2.pop(0)); nl += 1
        elif ch == 'v': assert not k2; e(v2.pop(0)); nl += 1
        elif ch == 'w': e(f"s_waitcnt lgkmcnt({nl})")
        elif ch == 'V':
            for t in vd[0:3] + ["s_mov_b64 exec, -1"]: e(t)
        elif ch == 'U':
            for t in [vd[3], vd[1], vd[5], vd[6], vd[4]] + vd[7:]: e(t)
    assert ei == 16 and len(v2) == 2
    e(f"s_cmp_eq_u32 s{sG}, 0")
    e("s_cbranch_scc1 L_B1")
    e("s_branch L_A1")

    lab("L_prep")
    for m in range(7): e(f"ds_read_b64 {vr(vP+2*m,2)}, v{vNat} offset:{8*m}")
    for s in tr_reads: e(s)
    for m in range(7):
        e(f"s_waitcnt lgkmcnt({13 - m})")
        if m > 0: e("s_nop 0")
        e(grams[m])
    e("s_nop 4")
    for t in sels: e(t)
    e(norm[0]); e("s_nop 0"); e(norm[1]); e(norm[2]); e("s_nop 0")
    e(f"v_mul_f32 v{vR}, s{sScale}, v{vR}")
    for s in norm[3:]: e(s)
    e("s_waitcnt lgkmcnt(0)")
    e("s_nop 0")
    for s in smalls: e(s)
    for i in range(14):
        e(cvts[i])
        if i % 4 == 3: e(writes[i // 4])
    e(writes[3])
    e(f"v_xor_b32 v{vKw}, 0x8000, v{vKw}")
    e(f"s_setpc_b64 s[{sRet}:{sRet+1}]")

    nskip = [0]
    def build_half(name, pats):
        ops = []
        q = dict(n=list(nat_reads), t=list(tr_reads), g=list(grams), x=list(sels), s=list(norm), m=list(smalls), c=list(cvts), W=list(writes))
        cnt = dict(n=0, t=0, g=0, x=0, s=0, m=0, c=0, W=0, X=0)
        def add(t, lid=None, needs=()): ops.append((t, lid, list(needs)))
        for T in range(8):
            j = T // 2
            if T == 1: add(f"L_{name}1:")
            if opt.ws and T in opt.stampT:
                for s in wst_l(): add(s)
            if T % 2 == 0:
                rd_k = kread((j + 2) % 4, j % 2); rd_v = vread((j + 2) % 4, (j + 2) % 4)
                ki = vi = 0
            ei = 0
            for ch in pats[T]:
                if ch == 'e': add(ex(T, ei)); ei += 1
                elif ch == 'A':
                    add(sm(T - 1, 1), needs=[('v', ((T-1)//2), 2), ('v', ((T-1)//2), 3)])
                elif ch == 'B': add(m1(T + 2), needs=[('k', j + 1, 0)])
                elif ch == 'C': add(m2(T + 2), needs=[('k', j + 1, 1)])
                elif ch == 'D': add(sm(T, 0), needs=[('v', j, 0), ('v', j, 1)])
                elif ch == 'k': add(rd_k[ki], lid=('k', j + 2, ki)); ki += 1
                elif ch == 'v': add(rd_v[vi], lid=('v', j + 2, vi)); vi += 1
                elif ch == 'w': add("WAIT")
                elif ch == 'n': add(q['n'][cnt['n']], lid=('n', 0, cnt['n'])); cnt['n'] += 1
                elif ch == 't': add(q['t'][cnt['t']], lid=('t', 0, cnt['t'])); cnt['t'] += 1
                elif ch in '0123':
                    if opt.prio: add(f"s_setprio {opt.pmap[int(ch)]}")
                elif ch == 'g': add(q['g'][cnt['g']], needs=[('n', 0, cnt['g'] // 2)]); cnt['g'] += 1
                elif ch == 'x': assert cnt['g'] == 7; add(q['x'][cnt['x']]); cnt['x'] += 1
                elif ch == 's': assert cnt['x'] == 3; add(q['s'][cnt['s']]); cnt['s'] += 1
                elif ch == 'm': assert cnt['s'] == 6; add(q['m'][cnt['m']], needs=[('t', 0, cnt['m'])]); cnt['m'] += 1
                elif ch == 'c': assert cnt['m'] > cnt['c'] // 2; add(q['c'][cnt['c']]); cnt['c'] += 1
                elif ch == 'W':
                    assert cnt['c'] >= min(14, 4*cnt['W'] + 4)
                    add(q['W'][cnt['W']], lid=('W', 0, cnt['W'])); cnt['W'] += 1
                    if cnt['W'] == 4: pending_xor = True
                elif ch == 'X':
                    l = rawnext_l()
                    parts = [l[0:3], l[3:4], l[4:5], l[5:]]
                    for t in parts[cnt['X']]: add(t)
                    cnt['X'] += 1
                elif ch == 'Y': add("s_waitcnt vmcnt(2)")
                elif ch == 'z': add(f"s_cmp_ge_u32 s{sIter}, 5")
                elif ch == '[':
                    nskip[0] += 1; add(f"s_cbranch_scc1 L_skip{nskip[0]}")
                elif ch == ']': add(f"L_skip{nskip[0]}:")
                elif ch == 'V':
                    add(f"s_mov_b32 m0, s{sM0V}")
                    add(f"s_mov_b64 exec, s[{sExV}:{sExV+1}]")
                    add(f"buffer_load_dwordx4 v{vVoff}, s[{sV}:{sV+3}], s{sVoffs} offen{opt.ntl} lds")
                    add(f"s_mov_b64 exec, -1")
                elif ch == 'U':
                    add(f"s_add_u32 m0, s{sM0V}, 128")
                    add(f"s_mov_b64 exec, s[{sExV}:{sExV+1}]")
                    add(f"buffer_load_dwordx4 v{vVoff}, s[{sV}:{sV+3}], s{sVoffs} offen offset:896{opt.ntl} lds")
                    add(f"s_mov_b64 exec, -1")
                elif ch == 'p':
                    if opt.v1wait: continue
                    add("s_waitcnt vmcnt(6)")
                    add(f"ds_write_b32 v{vFw}, v{vCnt}", lid=('p', 0, 0))
                elif ch == 'q': add(f"s_cmp_eq_u32 s{sIter}, 7")
                elif ch == 'T': add("s_cbranch_scc1 L_tail")
                elif ch == 'y': add("s_waitcnt vmcnt(0)")
                elif ch == 'f': add(f"ds_read_b32 v{vFlag}, v{vFr}", lid=('f', 0, 0))
                elif ch == 'F':
                    add(f"v_cmp_lt_u32 vcc, v{vFlag}, v{vCnt}", needs=[('f', 0, 0)])
                    add(f"v_xor_b32 v{vKr}, s{sX}, v{vKr}")
                    add(f"v_xor_b32 v{vVr}, s{sX}, v{vVr}")
                    add(f"s_cbranch_vccnz L_spin{name}")
                    add(f"L_back{name}:")
                    add(f"v_add_u32 v{vCnt}, 1, v{vCnt}")
                    add(f"s_xor_b32 s{sX}, s{sX}, 0x8000")
                elif ch == 'i':
                    it = [f"s_add_u32 s{sIter}, s{sIter}, 1"]
                    add(it[cnt.setdefault('i', 0)]); cnt['i'] += 1
                elif ch == 'a':
                    adv = [f"s_add_u32 s{sM0V}, s{sM0V}, 0x4000", f"s_and_b32 s{sM0V}, s{sM0V}, 0xffff",
                           f"s_add_u32 s{sVoffs}, s{sVoffs}, {CH}"]
                    add(adv[cnt.setdefault('a', 0)]); cnt['a'] += 1
                elif ch == 'P':
                    add(f"ds_write_b32 v{vFw}, v{vCnt}", lid=('P', 0, 0))
                    if name == 'A':
                        assert cnt['W'] == 4
                        add(f"v_xor_b32 v{vKw}, 0x8000, v{vKw}")
                else: raise ValueError(ch)
            assert ei == 16, (name, T, ei)
            if T % 2 == 1: assert ki == 2 and vi == 4
        if name == 'A':
            assert cnt == dict(n=4, t=7, g=7, x=3, s=6, m=7, c=14, W=4, X=0, a=3, i=1), cnt
        return ops

    halves = {'A': build_half('A', opt.patA), 'B': build_half('B', opt.patB)}
    def shift(ops):
        out = []
        for t, lid, needs in ops:
            if lid is not None:
                lid = (lid[0], lid[1] - 4, lid[2]) if lid[0] in 'kv' else (lid[0], -1, lid[2])
            out.append((t, lid, []))
        return out
    def resolve(name):
        ops = halves[name]
        res = {}
        for pred in 'AB':
            seq = shift(halves[pred]) + ops
            base = len(seq) - len(ops)
            pos = {lid: i for i, (t, lid, n) in enumerate(seq) if lid is not None}
            waits = [i for i in range(base, len(seq)) if seq[i][0] == "WAIT"]
            covered = -1
            covered = pos[('k', 0, 1)]
            for i in range(base, len(seq)):
                t, lid, needs = seq[i]
                if t == "WAIT":
                    nxt = min([w for w in waits if w > i] + [len(seq)])
                    need = [pos[x] for k in range(i, nxt) for x in seq[k][2] if x in pos]
                    tgt = max(need + [covered])
                    assert tgt < i, ("wait placed before its load", name, seq[tgt][0])
                    n = sum(1 for k in range(tgt + 1, i) if seq[k][1] is not None)
                    res[i - base] = min(res.get(i - base, 15), n)
                    covered = tgt
                for x in needs:
                    if x in pos: assert pos[x] <= covered, ("uncovered", name, t, x)
                    else: assert x[0] == 'v' and x[1] < -2 or x[1] <= -2, x
        out = [(f"s_waitcnt lgkmcnt({res[i]})" if t == "WAIT" else t) for i, (t, lid, n) in enumerate(ops)]
        return [t for t in out if not any(re.search(d, t) for d in opt.drop)]

    L.append(".p2align 3")
    lab("L_A")
    for t in resolve('A'):
        (L.append(t) if t.endswith(":") else e(t))
    lab("L_B")
    for t in resolve('B'):
        (L.append(t) if t.endswith(":") else e(t))
    e(f"s_cmp_lt_u32 s{sIter}, 6")
    e("s_cbranch_scc1 L_A")
    e("s_branch L_B")
    lab("L_tail")
    c("last two tiles; local block 0 goes to the partner wave, local block 1 is finished here")
    e(f"s_lshl_b32 s{sTmp}, s{sWave}, 12")
    e(f"s_add_u32 s{sTmp}, s{sTmp}, {LDS_K}")
    e(f"v_add_u32 v{vT0}, s{sTmp}, v{vL16}")
    e(f"v_xor_b32 v{vT1}, 0x4000, v{vT0}")
    if opt.st_lin:
        e(f"v_add_u32 v{vSS}, s{sM0R}, v{vL16}")
    no = nr = 0
    tv = vread(3, 3)[2:]
    vF = vO + 16
    for T, Tp, Tn, pat in opt.patT:
        ei = 0
        for ch in pat:
            if ch == 'e': e(ex(T, ei)); ei += 1
            elif ch == 'A': e(sm(Tp, 1))
            elif ch == 'B': e(m1(Tn))
            elif ch == 'C': e(m2(Tn))
            elif ch == 'D': assert ei >= 10; e(sm(T, 0))
            elif ch == 'w': e("s_waitcnt lgkmcnt(0)")
            elif ch == 'y': e("s_waitcnt vmcnt(0)")
            elif ch == 'n': e("s_nop 0")
            elif ch == 'K': e("s_waitcnt lgkmcnt(2)")
            elif ch == 'v': e(tv.pop(0))
            elif ch == 'b': e("s_barrier")
            elif ch in '0123':
                if opt.prio: e(f"s_setprio {opt.pmap[int(ch)]}")
            elif ch == 'O':
                e(f"ds_write_b128 v{vT0}, {vr(vO+4*no,4)} offset:{1024*no}"); no += 1
            elif ch == 'R':
                e(f"ds_read_b128 {vr(vD+4*nr,4)}, v{vT1} offset:{1024*nr}"); nr += 1
            elif ch == 'a':
                for j in range(0, 16, 2):
                    e(f"v_pk_add_f32 {vr(vF+j,2)}, {vr(vF+j,2)}, {vr(vD+j,2)}")
            else: raise ValueError(ch)
        assert ei == 16
    assert no == 4 and nr == 4
    e("s_nop 1")
    e(sm(7, 1))
    wst()
    e("s_nop 11")
    e(f"v_mov_b32 v{vT0}, v{vF+12}")
    e(f"v_mov_b32 v{vT1}, v{vF+12}")
    e("s_nop 1")
    e(f"v_permlane32_swap_b32 v{vT0}, v{vT1}")
    e(f"v_rcp_f32 v{vB}, v{vT1}")
    e("s_nop 0")
    if True:
        c("rows -> own staging buffer -> whole lines")
        for j in range(4):
            e(f"v_pk_mul_f32 {vr(vF+4*j,2)}, {vr(vF+4*j,2)}, {vr(vB,2)} op_sel_hi:[1,0]")
            e(f"v_pk_mul_f32 {vr(vF+4*j+2,2)}, {vr(vF+4*j+2,2)}, {vr(vB,2)} op_sel_hi:[1,0]")
            e(f"v_cvt_pk_bf16_f32 v{vP+2*j}, v{vF+4*j}, v{vF+4*j+1}")
            e(f"v_cvt_pk_bf16_f32 v{vP+2*j+1}, v{vF+4*j+2}, v{vF+4*j+3}")
            if j == 3: e("s_mov_b32 exec_hi, 0")
            e(f"ds_write_b64 v{vOoff}, {vr(vP+2*j,2)} offset:{8*j}")
        e("s_mov_b32 exec_hi, -1")
        e(f"ds_read_b128 {vr(vD,4)}, v{vSS}")
        e(f"ds_read_b128 {vr(vD+4,4)}, v{vSS} offset:1024")
        e("s_waitcnt lgkmcnt(1)")
        e(f"buffer_store_dwordx4 {vr(vD,4)}, v{vL16}, s[{sO}:{sO+3}], s{sOoff} offen{opt.st_flags}")
        e("s_mov_b32 exec_hi, 0xffff")
        e("s_waitcnt lgkmcnt(0)")
        e(f"buffer_store_dwordx4 {vr(vD+4,4)}, v{vL16}, s[{sO}:{sO+3}], s{sOoff} offen offset:1024{opt.st_flags}")
    if opt.ws:
        e("s_mov_b64 exec, -1")
        if opt.lazy:
            lst(9)
            e("s_waitcnt lgkmcnt(0)")
            for k in range(10):
                e(f"s_sub_u32 s74, s{80+2*k}, s72")
                e(f"v_writelane_b32 v{vSt}, s74, {k}")
            e(f"v_writelane_b32 v{vSt}, s71, 10")
            e("s_mov_b32 s70, 11")
        wst()
        e("s_waitcnt vmcnt(0)")
        wst()
        e("s_memrealtime s[78:79]")
        e("s_load_dwordx2 s[80:81], s[0:1], 48")
        e("s_waitcnt lgkmcnt(0)")
        e("s_mov_b32 s82, 0x1000000"); e("s_mov_b32 s83, 0x00020000")
        e(f"v_writelane_b32 v{vSt}, s70, 31")
        e(f"v_writelane_b32 v{vSt}, s76, 30")
        e(f"v_writelane_b32 v{vSt}, s78, 29")
        e(f"s_lshl_b32 s3, s2, 3"); e(f"s_add_u32 s3, s3, s{sWave}"); e("s_lshl_b32 s3, s3, 7")
        e(f"v_lshlrev_b32 v1, 2, v{vLane}")
        e("s_mov_b32 exec_hi, 0")
        e(f"buffer_store_dword v{vSt}, v1, s[80:83], s3 offen")
    if opt.padto:
        e("s_waitcnt vmcnt(0)")
        lab("L_pspin")
        e("s_memrealtime s[78:79]")
        e("s_waitcnt lgkmcnt(0)")
        e("s_sub_u32 s84, s78, s76")
        e(f"s_cmp_lt_u32 s84, {opt.padto}")
        e("s_cbranch_scc1 L_pspin")
    lab("L_end")
    e("s_endpgm")

    for name in 'AB':
        lab(f"L_spin{name}")
        c("some wave has not yet published the next chunk: wait for it")
        if opt.ws:
            e(f"s_lshl_b32 s{sTmp}, s{sIter}, 2")
            e(f"s_lshl_b32 s{sTmp}, 1, s{sTmp}")
            e(f"s_add_u32 s71, s71, s{sTmp}")
        e(f"s_sleep {opt.sleep}")
        e(f"ds_read_b32 v{vFlag}, v{vFr}")
        e("s_waitcnt lgkmcnt(0)")
        e(f"v_cmp_lt_u32 vcc, v{vFlag}, v{vCnt}")
        e(f"s_cbranch_vccnz L_spin{name}")
        e(f"s_branch L_back{name}")

    lab("L_special")
    e(f"s_cmp_eq_u32 s{sMode}, 0")
    e("s_cbranch_scc1 L_maxpass")
    c("second pass: put -max into the pad slots of the Q fragments (lanes 32..63)")
    e("s_mov_b32 exec_lo, 0")
    e(f"v_mov_b32 v{vQ+10}, v{vPad}")
    e(f"v_mov_b32 v{vQ+11}, v{vPad+1}")
    e(f"v_mov_b32 v{vQ+14}, v{vPad+2}")
    e(f"v_mov_b32 v{vQ+15}, v{vPad+3}")
    e("s_mov_b32 exec_lo, -1")
    e(f"s_mov_b32 s{sAbsT}, 0")
    e("s_nop 7")
    e("s_branch L_fill")
    lab("L_maxpass")
    mx = [vPad, vPad + 2]
    e(f"v_mov_b32 v{mx[0]}, 0xff800000")
    e(f"v_mov_b32 v{mx[1]}, 0xff800000")
    lab("L_mloop")
    c("chunk sIter is in LDS; group (sIter & 1) normalises chunk sIter + 1 (chunk 1 is done, K2 is staged)")
    e(f"s_add_u32 s{sTmp}, s{sIter}, s{sG}")
    e(f"s_bitcmp1_b32 s{sTmp}, 0")
    e("s_cbranch_scc1 L_mnoprep")
    e(f"s_cmp_eq_u32 s{sIter}, 7")
    e("s_cbranch_scc1 L_mnoprep")
    e(f"s_cmp_eq_u32 s{sIter}, 0")
    e("s_cbranch_scc1 L_mnoprep")
    e(f"s_cmp_eq_u32 s{sIter}, 1")
    e("s_cbranch_scc1 L_mhave")
    for t in rawnext_l(): e(t)
    lab("L_mhave")
    e(f"s_waitcnt vmcnt(0) lgkmcnt(0)")
    e(f"s_call_b64 s[{sRet}:{sRet+1}], L_prep")
    lab("L_mnoprep")
    for j in range(4):
        for s in kread(j, 0): e(s)
        e("s_waitcnt lgkmcnt(0)")
        e(m1(0)); e(m2(0)); e(m1(1)); e(m2(1))
        e("s_nop 15")
        for b in range(2):
            for i in range(0, 16, 2):
                e(f"v_max3_f32 v{mx[b]}, v{vS+16*b+i}, v{vS+16*b+i+1}, v{mx[b]}")
    e("s_barrier")
    e(f"v_xor_b32 v{vKr}, s{sX}, v{vKr}")
    e(f"s_xor_b32 s{sX}, s{sX}, 0x8000")
    e(f"s_add_u32 s{sIter}, s{sIter}, 1")
    e(f"s_cmp_lt_u32 s{sIter}, 8")
    e("s_cbranch_scc1 L_mloop")
    c("combine the two lane halves and the partner wave (whose local blocks are swapped)")
    for b in range(2):
        e(f"v_mov_b32 v{vT0}, v{mx[b]}")
        e("s_nop 1")
        e(f"v_permlane32_swap_b32 v{mx[b]}, v{vT0}")
        e("s_nop 1")
        e(f"v_max_f32 v{mx[b]}, v{mx[b]}, v{vT0}")
    e(f"s_lshl_b32 s{sTmp}, s{sWave}, 12")
    e(f"s_add_u32 s{sTmp}, s{sTmp}, {LDS_K}")
    e(f"v_add_u32 v{vT0}, s{sTmp}, v{vL16}")
    e(f"v_xor_b32 v{vT1}, 0x4000, v{vT0}")
    e("s_waitcnt vmcnt(0) lgkmcnt(0)")
    e(f"ds_write_b32 v{vT0}, v{mx[0]}")
    e(f"ds_write_b32 v{vT0}, v{mx[1]} offset:4")
    e("s_waitcnt lgkmcnt(0)")
    e("s_barrier")
    e(f"ds_read_b64 {vr(vD,2)}, v{vT1}")
    e("s_waitcnt lgkmcnt(0)")
    e("s_barrier")
    e(f"s_mov_b32 s{sTmp}, 0xffff0000")
    for b in range(2):
        m = mx[b]
        e(f"v_max_f32 v{m}, v{m}, v{vD+1-b}")
        c("split -max into three bf16 parts")
        e(f"v_sub_f32 v{m}, 0, v{m}")
        e(f"v_and_b32 v{vT0}, s{sTmp}, v{m}")
        e(f"v_sub_f32 v{m}, v{m}, v{vT0}")
        e(f"v_and_b32 v{vT1}, s{sTmp}, v{m}")
        e(f"v_sub_f32 v{m}, v{m}, v{vT1}")
        e(f"v_lshrrev_b32 v{m+1}, 16, v{m}")
        e(f"v_lshrrev_b32 v{vT0}, 16, v{vT0}")
        e(f"v_or_b32 v{m}, v{vT0}, v{vT1}")
    e(f"s_mov_b32 s{sMode}, 1")
    e("s_branch L_restart")

    txt = HEADER + f"; @launch grid=(256,1,1) block=(512,1,1) lds={LDS_TOTAL}\n"
    txt += """.amdgcn_target "amdgcn-amd-amdhsa--gfx950"
.text
.globl standalone__qk_norm__prompt_kernel
.p2align 8
.type standalone__qk_norm__prompt_kernel,@function
standalone__qk_norm__prompt_kernel:
"""
    txt += "\n".join(L) + "\n"
    txt += f""".section .rodata,"a"
.p2align 6
.amdhsa_kernel standalone__qk_norm__prompt_kernel
  .amdhsa_next_free_vgpr {NV}
  .amdhsa_next_free_sgpr {102 if (opt.ws or opt.padto) else 72}
  .amdhsa_accum_offset {(NV+3)//4*4}
  .amdhsa_group_segment_fixed_size 0
  .amdhsa_kernarg_size 56
  .amdhsa_user_sgpr_count 2
  .amdhsa_user_sgpr_kernarg_segment_ptr 1
  .amdhsa_system_sgpr_workgroup_id_x 1
.end_amdhsa_kernel
"""
    return txt

if __name__ == "__main__":
    opt = Opt()
    out = sys.argv[1]
    for a in sys.argv[2:]:
        k, v = a.split("=", 1)
        assert hasattr(opt, k), k
        setattr(opt, k, eval(v))
    open(out, "w").write(gen(opt))
```

```python
import sys, re

HEADER = """; Kernarg layout for this problem (56 bytes, ptrs only, base s[0:1]):
"""

PAT_B = [
 "eeA3wkeeeeBkeeeeCveeeeDvee",
 "eeAveeeeBzveeeeCeeeeD[XXXX]ee",
 "eeA2wkeeeeBkeeeeCqveeeeDvpeeT",
 "eeA1veeeeBveeeeC0feeeeDjjee",
 "eeA3wFkeeeeBkeeeeCveeeeDvee",
 "eeAzveeeeByveeeeC[V]eeeeD[U]ee",
 "eeA2wkeeeeBakeeeeCaveeeeDaivee",
 "eeA1aaveeeeBveeeeC0eeeeDPee",
]
PAT_A = [
 "eeA3wkeeeeBkeeeeCveeeeDvee",
 "eeAveeeeBveeeeCYnneeeeDnnee",
 "eeA2wkteeegeBkteeegeCvteeegeDvtee",
 "egeA1vteeegeBvteeegeC0fteeegeDjjee",
 "eeA3wFkexexexeBkesesesesCvesseemeDvee",
 "emeAzveecemeByvececemeC[V]ececemeD[U]ecec",
 "emeA2wkececemeBakWececeeCavWeceecceDaivee",
 "eeA1aavWeeeeBvWeeeeC0eeeeDPee",
]
PAT_T = [
 (3, 2, 6, "eeA1Kveeee" "BveeeeC0eeeeDee"),
 (4, 3, 5, "eeA3eeeeBeeeeCeeeeDee"),
 (6, 4, 7, "eeA2weeeeBeeeeCeeeeD1ee"),
 (5, 6, 0, "eeAeeee0eeeeDeeeOeOeOeO"),
 (7, 5, 0, "eeAwbReReReReeeeewaeeDeeee"),
]

class Opt:
    ws = False
    patT = PAT_T
    st_flags = ' sc1'
    st_lin = True
    g1prio = 3
    v1pos = 0
    v1wait = 1
    touch = 0
    k1early = 0
    bpos = 0
    lazy = False
    cpf = 1
    padat = -1
    qdelay = 1
    dry = False
    g1early = 0
    nt0 = ''
    add64 = 0
    dsadd = 1
    rotm = 0
    ntl = ''
    pf0 = 3
    pf1 = 3
    pat0 = 'eeEaaeeeGaaeeeBkVeeeCkUeewDvveee'
    v0pos = 1
    xpos = 2
    pmid = 3
    drop = ()
    padto = 0
    force_fallback = False
    patA = PAT_A
    patB = PAT_B
    prio = True
    pmap = '0123'
    p_start = 2
    sleep = 1
    stampT = (4,)

def gen(opt):
    L = []
    def e(s): L.append("    " + s)
    def lab(s): L.append(s + ":")
    def c(s): L.append("    ; " + s)

    HB = 114688
    CH = 14336
    LDS_V = 0
    LDS_K = 65536
    LDS_Q = LDS_K + 3*16384
    LDS_R = 131072
    LDS_F = LDS_R + 8*3584
    LDS_TOTAL = LDS_F + 2048
    vLane, vL16, vVoff, vKw, vKr, vVr, vIdx, vT0 = 0, 1, 2, 3, 4, 5, 6, 7
    vNat, vTr, vMa, vMb, vOoff, vT1, vSS, vR = 8, 9, 10, 11, 12, 13, 14, 15
    vQ = 16
    vO = 32
    vS = 64
    vKf = 128
    vVf = 144
    vP = 176
    vTt = 192
    vB = 206
    vD = 208
    vPad = 236
    vSt, vTv, vNq = 240, 241, 242
    vTq = 247
    vFw, vFr, vFlag, vCnt = 243, 244, 245, 246
    NV = 248
    sK, sV, sO, sR = 20, 24, 28, 48
    sWave, sHead, sQb, sG, sQg = 32, 33, 34, 35, 36
    sIter, sKnext, sVoffs, sM0V, sM0R = 37, 38, 39, 40, 41
    sT, sScale, sEps, sOoff = 42, 43, 44, 45
    sTmp, sTmp2 = 46, 47
    sExV = 52
    sRet = 54
    sMode, sAbsT = 56, 57
    sPre, sX = 58, 59
    sAlt = 60
    sRot = 61
    sD = 14
    sMk = 64

    def vr(b, n): return f"v[{b}:{b+n-1}]"

    def wst_l():
        if not opt.ws: return []
        return ["s_memtime s[74:75]", "s_waitcnt lgkmcnt(0)", "s_sub_u32 s74, s74, s72", "s_mov_b32 m0, s70", "s_nop 0",
                f"v_writelane_b32 v{vSt}, s74, m0", "s_add_u32 s70, s70, 1"]
    def wst():
        if opt.lazy: return
        for s in wst_l(): e(s)
    def lst(k):
        if opt.padto and opt.padat == k: e("s_memrealtime s[76:77]")
        if opt.lazy: e(f"s_memtime s[{80+2*k}:{81+2*k}]")

    def rawdma_l(srd, soff, m0=None, fl=None):
        fl = opt.ntl if fl is None else fl
        r = [f"s_mov_b32 m0, s{sM0R if m0 is None else m0}", "s_nop 0"]
        for i in range(3):
            r.append(f"buffer_load_dwordx4 v{vL16}, s[{srd}:{srd+3}], s{soff} offen offset:{1024*i}{fl} lds")
        r.append("s_mov_b32 exec_hi, 0")
        r.append(f"buffer_load_dwordx4 v{vL16}, s[{srd}:{srd+3}], s{soff} offen offset:3072{fl} lds")
        r.append("s_mov_b32 exec_hi, -1")
        return r
    def wrap_l(r):
        return [f"s_sub_u32 s3, s{r}, s{sR+2}", f"s_cselect_b32 s{r}, s{r}, s3"]
    def rawnext_l(fl=None):
        return rawdma_l(sK, sKnext, fl=fl) + [f"s_add_u32 s{sKnext}, s{sKnext}, {2*CH}"] + wrap_l(sKnext)

    def vdma_l(m0=None, off=None, adv=True, fl=None):
        fl = opt.ntl if fl is None else fl
        m0 = sM0V if m0 is None else m0
        off = sVoffs if off is None else off
        r = [f"s_mov_b32 m0, s{m0}",
             f"s_mov_b64 exec, s[{sExV}:{sExV+1}]",
             f"buffer_load_dwordx4 v{vVoff}, s[{sV}:{sV+3}], s{off} offen{fl} lds",
             f"s_add_u32 m0, s{m0}, 128",
             f"s_add_u32 s{sM0V}, s{sM0V}, 0x4000" if adv else "s_nop 0",
             f"buffer_load_dwordx4 v{vVoff}, s[{sV}:{sV+3}], s{off} offen offset:896{fl} lds",
             f"s_mov_b64 exec, -1"]
        if adv:
            r += [f"s_and_b32 s{sM0V}, s{sM0V}, 0xffff", f"s_add_u32 s{sVoffs}, s{sVoffs}, {CH}"] + wrap_l(sVoffs)
        return r

    nat_reads = [f"ds_read2_b64 {vr(vP+4*i,4)}, v{vNat} offset0:{2*i} offset1:{2*i+1}" for i in range(3)] + \
                [f"ds_read_b64 {vr(vP+12,2)}, v{vNat} offset:48"]
    tr_reads = [f"ds_read_b64_tr_b16 {vr(vTt+2*m,2)}, v{vTr} offset:{8*m}" for m in range(7)]
    dots = [f"v_dot2_f32_bf16 v{vSS}, v{vP+i}, v{vP+i}, {'0' if i == 0 else 'v%d' % vSS}" for i in range(14)]
    grams = [f"v_mfma_f32_4x4x4_16b_bf16 {vr(vD,4)}, {vr(vP+2*m,2)}, {vr(vP+2*m,2)}, {'0' if m == 0 else vr(vD,4)}" for m in range(7)]
    sels = [f"v_cndmask_b32 v{vSS}, v{vD if i == 0 else vSS}, v{vD+1+i}, s[{sMk+2*i}:{sMk+2*i+1}]" for i in range(3)]
    norm = [f"v_sqrt_f32 v{vSS}, v{vSS}", f"v_add_f32 v{vSS}, s{sEps}, v{vSS}", f"v_rcp_f32 v{vR}, v{vSS}",
            f"v_cvt_pk_bf16_f32 v{vR}, v{vR}, v{vR}", f"v_and_b32 v{vB}, v{vR}, v{vMa}", f"v_and_b32 v{vB+1}, v{vR}, v{vMb}"]
    smalls = [f"v_mfma_f32_4x4x4_16b_bf16 {vr(vD+4*m,4)}, {vr(vTt+2*m,2)}, {vr(vB,2)}, 0" for m in range(7)]
    cvts = [f"v_cvt_pk_bf16_f32 v{vP+i}, v{vD+2*i}, v{vD+2*i+1}" for i in range(14)]
    writes = [f"ds_write_b128 v{vKw}, {vr(vP+4*i,4)} offset:{512*i}" for i in range(4)]

    e("s_load_dwordx4 s[4:7], s[0:1], 0")
    e("s_load_dwordx4 s[8:11], s[0:1], 16")
    e("s_load_dwordx2 s[12:13], s[0:1], 32")
    e("s_cmp_ge_u32 s2, 256")
    e("s_cbranch_scc1 L_end")
    if opt.ws:
        e("s_memtime s[72:73]"); e("s_memrealtime s[76:77]"); e("s_mov_b32 s70, 0"); e("s_mov_b32 s71, 0")
    if opt.padto: e("s_memrealtime s[76:77]")
    e(f"v_lshrrev_b32 v{vT0}, 6, v0")
    e(f"v_and_b32 v{vLane}, 63, v0")
    e(f"v_readfirstlane_b32 s{sWave}, v{vT0}")
    if opt.cpf:
        c("pull the kernel's own code into L2 while the first data is on its way: one line per wave")
        e("s_getpc_b64 s[14:15]")
        lab("L_pc")
        e(f"s_and_b32 s3, s2, 56")
        e(f"v_add_u32 v{vT1}, s3, v{vT0}")
        e(f"v_min_u32 v{vT1}, (L_special - L_pc) / 128, v{vT1}")
        e(f"v_lshlrev_b32 v{vT1}, 7, v{vT1}")
        e(f"global_load_dword v{vPad}, v{vT1}, s[14:15]")
    c("head = (wg&7)*4 + (wg>>6), qblk = (wg>>3)&7")
    e("s_and_b32 s3, s2, 7")
    e(f"s_lshr_b32 s{sHead}, s2, 6")
    e(f"s_lshl2_add_u32 s{sHead}, s3, s{sHead}")
    e(f"s_mov_b32 s{sMode}, 0")
    e(f"v_lshlrev_b32 v{vL16}, 4, v{vLane}")
    lab("L_restart")
    e(f"s_movk_i32 s{sTmp2}, 3584")
    e(f"s_mov_b32 s{sR+2}, {HB}")
    e(f"s_mov_b32 s{sR+3}, 0x00020000")
    e(f"s_mul_i32 s3, s{sHead}, s{sR+2}")
    e(f"s_mul_i32 s{sM0R}, s{sWave}, s{sTmp2}")
    e(f"s_add_u32 s{sM0R}, s{sM0R}, {LDS_R}")
    e(f"s_and_b32 s{sQg}, s{sWave}, 3")
    e(f"s_mul_i32 s{sKnext}, s{sQg}, s{sTmp2}")
    c("waves 0..3 (group 1) start with K0, waves 4..7 (group 0) with the Q rows qblk*256 + qg*64")
    e(f"s_and_b32 s{sTmp}, s2, 56")
    e(f"s_mulk_i32 s{sTmp}, 1792")
    e(f"s_add_u32 s{sOoff}, s{sTmp}, s{sKnext}")
    e(f"s_and_b32 s{sRot}, s2, {opt.rotm * 8}")
    e(f"s_mulk_i32 s{sRot}, 1792")
    e(f"s_add_u32 s{sKnext}, s{sKnext}, s{sRot}")
    e(f"s_and_b32 s{sTmp2}, s{sHead}, 15")
    e(f"s_lshl_b32 s{sTmp2}, s{sTmp2}, 1")
    e(f"v_mov_b32 v{vTv}, s{sTmp2}")
    if opt.touch:
        e(f"s_lshr_b32 s{sPre}, s{sTmp}, 3")
        e(f"s_add_u32 s{sPre}, s{sPre}, {CH}")
        e(f"s_lshl_b32 s{sTmp2}, s{sQg}, 2")
        e(f"v_and_or_b32 v{vT0}, v{vLane}, 3, s{sTmp2}")
        e(f"v_min_u32 v{vT0}, 13, v{vT0}")
        e(f"v_lshlrev_b32 v{vT0}, 7, v{vT0}")
    e(f"s_mov_b32 m0, s{sM0R}")
    e(f"s_cmp_lt_u32 s{sWave}, 4")
    e(f"s_cselect_b32 s{sG}, 1, 0")
    e(f"s_cselect_b32 s{sTmp}, s{sKnext}, s{sOoff}")
    e("s_waitcnt lgkmcnt(0)")
    e(f"s_cselect_b32 s{sR}, s6, s4")
    e(f"s_cselect_b32 s{sR+1}, s7, s5")
    e(f"global_load_ushort v{vTv}, v{vTv}, s[10:11]")
    e(f"s_add_u32 s{sR}, s{sR}, s3")
    e(f"s_addc_u32 s{sR+1}, s{sR+1}, 0")
    def touch():
        c("group 1 touches this block's share of K1: an L2 hit for the head's 8 blocks once it is fetched")
        e(f"s_cmp_eq_u32 s{sG}, 0")
        e("s_cbranch_scc1 L_nt")
        e(f"buffer_load_dword v{vFlag}, v{vT0}, s[{sR}:{sR+3}], s{sPre} offen{opt.nt0 if opt.touch & 2 else ''}")
        lab("L_nt")
    if opt.touch: touch()
    for t in rawdma_l(sR, sTmp, fl=opt.nt0)[2:]: e(t)
    lst(1)
    for srd, p in ((sK, 6), (sV, 8), (sO, 12)):
        e(f"s_add_u32 s{srd}, s{p}, s3")
        e(f"s_addc_u32 s{srd+1}, s{p+1}, 0")
        e(f"s_mov_b32 s{srd+2}, s{sR+2}")
        e(f"s_mov_b32 s{srd+3}, 0x00020000")
    c("output rows of this wave: + G*32")
    e(f"s_mul_i32 s{sTmp}, s{sG}, 1792")
    e(f"s_add_u32 s{sOoff}, s{sOoff}, s{sTmp}")
    e(f"s_mov_b32 s{sExV}, 0x7f7f7f7f")
    e(f"s_mov_b32 s{sExV+1}, s{sExV}")
    e(f"s_lshl_b32 s{sM0V}, s{sWave}, 11")
    c("vVoff = (lane>>3)*112 + (lane&7)*16 = lane*16 - (lane>>3)*16")
    e(f"v_lshrrev_b32 v{vT0}, 3, v{vLane}")
    e(f"v_and_b32 v{vT1}, 15, v{vLane}")
    e(f"v_sub_u32 v{vVoff}, v{vLane}, v{vT0}")
    e(f"v_lshrrev_b32 v{vSS}, 4, v{vLane}")
    e(f"v_lshlrev_b32 v{vVoff}, 4, v{vVoff}")
    c("ones pads in the V ring: lane -> slot lane>>4, pair lane&15")
    e(f"v_lshl_add_u32 v{vT1}, v{vSS}, 7, v{vT1}")
    e(f"v_mov_b32 v{vD}, 0x3f80")
    e(f"v_mov_b32 v{vD+1}, 0")
    e(f"v_lshl_add_u32 v{vT1}, v{vT1}, 7, s{sM0V}")
    e(f"ds_write_b64 v{vT1}, {vr(vD,2)} offset:112")
    c("progress flags: one word per wave")
    if opt.dsadd:
        e(f"s_lshl_b32 s{sTmp}, s{sWave}, 8")
        e(f"s_add_u32 s{sTmp}, s{sTmp}, {LDS_F}")
        e(f"v_lshl_add_u32 v{vFw}, v{vLane}, 2, s{sTmp}")
    else:
        e(f"s_lshl_b32 s{sTmp}, s{sWave}, 2")
        e(f"s_add_u32 s{sTmp}, s{sTmp}, {LDS_F}")
        e(f"v_mov_b32 v{vFw}, s{sTmp}")
    e(f"v_mov_b32 v{vCnt}, 0" if not opt.v1wait else f"v_sub_u32 v{vCnt}, 1, s{sG}")
    e(f"v_and_b32 v{vT0}, 3, v{vLane}")
    e(f"v_bfe_u32 v{vSS}, v{vLane}, 2, 2")
    e(f"ds_write_b32 v{vFw}, v{vCnt}")
    c("staging addresses")
    e(f"v_lshl_add_u32 v{vSS}, v{vT0}, 2, v{vSS}")
    e(f"v_mul_u32_u24 v{vNat}, 56, v{vLane}")
    e(f"v_and_or_b32 v{vSS}, v{vLane}, 48, v{vSS}")
    e(f"v_lshlrev_b32 v{vT0}, 4, v{vT0}")
    e(f"v_mul_u32_u24 v{vTr}, 56, v{vSS}")
    e(f"v_mov_b32 v{vMa}, 0xffff")
    e(f"v_mov_b32 v{vMb}, 0")
    e(f"v_add_u32 v{vNat}, s{sM0R}, v{vNat}")
    e(f"v_add_u32 v{vTr}, s{sM0R}, v{vTr}")
    e(f"v_lshlrev_b64 {vr(vMa,2)}, v{vT0}, {vr(vMa,2)}")
    c("frag write address: (lane>>5)*2048 + (lane&31)*16 + qg*4096 + K slot 0 (group 1) / slot 3 (group 0: Q fragments, later K3)")
    e(f"v_lshrrev_b32 v{vR}, 5, v{vLane}")
    e(f"s_lshl_b32 s{sAlt}, s{sQg}, 12")
    e(f"s_cmp_eq_u32 s{sG}, 0")
    e(f"s_cselect_b32 s{sX}, {LDS_Q - LDS_K}, 0")
    e(f"s_add_u32 s{sAlt}, s{sAlt}, {LDS_K}")
    e(f"s_add_u32 s{sX}, s{sX}, s{sAlt}")
    e(f"v_mul_u32_u24 v{vKw}, 1536, v{vR}")
    e(f"v_mov_b32 v{vP+14}, 0x3f803f80")
    e(f"v_add3_u32 v{vKw}, v{vKw}, v{vL16}, s{sX}")
    e(f"v_mov_b32 v{vP+15}, v{vP+14}")
    e(f"s_mov_b32 s{sEps}, 0x358637bd")
    e(f"s_mov_b32 s{sMk}, 0x22222222")
    e(f"s_mov_b32 s{sMk+1}, s{sMk}")
    e(f"s_lshl_b64 s[{sMk+2}:{sMk+3}], s[{sMk}:{sMk+1}], 1")
    e(f"s_lshl_b64 s[{sMk+4}:{sMk+5}], s[{sMk}:{sMk+1}], 2")
    c("output row offset in the staging buffer: (lane&31)*56 + h*32 = lane*56 - h*1760")
    e(f"v_mul_u32_u24 v{vT0}, 1760, v{vR}")
    c("Q fragment addresses: local block 1 is this wave's own block G")
    e(f"s_lshl_b32 s{sTmp}, s{sG}, 11")
    e(f"s_add_u32 s{sTmp}, s{sTmp}, s{sAlt}")
    e(f"s_add_u32 s{sTmp}, s{sTmp}, {LDS_Q - LDS_K}")
    e(f"v_sub_u32 v{vOoff}, v{vNat}, v{vT0}")
    e(f"v_add_u32 v{vTq}, s{sTmp}, v{vL16}")
    e(f"v_mov_b64 {vr(vVf+28,2)}, 0")
    e(f"v_xor_b32 v{vNq}, 0x800, v{vTq}")
    e(f"v_mov_b64 {vr(vVf+30,2)}, 0")
    c("V transpose-read address: 512*b5 + 128*b3 + 8*sel(b4,b2,b1,b0); sel = pi + 7*b2 with pi = 2*b4 + b1 + 4*b0, 14 (the pad) if pi == 7")
    tab = 0
    for idx in range(16):
        b0, b1, b2, b4 = idx & 1, (idx >> 1) & 1, (idx >> 2) & 1, (idx >> 3) & 1
        pi = 2*b4 + b1 + 4*b0
        tab |= (14 if pi == 7 else pi + 7*b2) << (4*idx)
    e(f"s_mov_b32 s{sTmp}, {hex(tab & 0xffffffff)}")
    e(f"s_mov_b32 s{sTmp2}, {hex(tab >> 32)}")
    e(f"v_mfma_i32_32x32x32_i8 {vr(vO,16)}, {vr(vVf+28,4)}, {vr(vVf+28,4)}, 0")
    e(f"v_and_b32 v{vFr}, 7, v{vLane}")
    e(f"v_lshlrev_b32 v{vT0}, 1, v{vLane}")
    e(f"v_lshlrev_b32 v{vFr}, 2, v{vFr}")
    e(f"v_and_b32 v{vVr}, 40, v{vLane}")
    e(f"v_and_or_b32 v{vT0}, v{vT0}, 32, v{vFr}")
    e(f"v_lshlrev_b32 v{vVr}, 4, v{vVr}")
    e(f"v_lshrrev_b64 {vr(vB,2)}, v{vT0}, s[{sTmp}:{sTmp2}]")
    e(f"v_mfma_i32_32x32x32_i8 {vr(vO+16,16)}, {vr(vVf+28,4)}, {vr(vVf+28,4)}, 0")
    e(f"s_lshl_b32 s{sTmp2}, s{sG}, 13")
    e(f"v_and_b32 v{vB}, 15, v{vB}")
    if opt.dsadd: e(f"v_mul_u32_u24 v{vFr}, 65, v{vFr}")
    e(f"v_add_u32 v{vFr}, {LDS_F}, v{vFr}")
    e(f"v_lshl_add_u32 v{vVr}, v{vB}, 3, v{vVr}")
    e(f"v_mov_b32 v{vCnt}, 1")
    e(f"v_add_u32 v{vVr}, s{sTmp2}, v{vVr}")
    e(f"s_add_u32 s{sTmp2}, s{sTmp2}, {LDS_K}")
    e(f"v_mov_b32 v{vIdx}, 0xdddddddd")
    e(f"v_add_u32 v{vKr}, s{sTmp2}, v{vL16}")
    e(f"s_mov_b32 s{sIter}, 0")
    e(f"s_movk_i32 s{sX}, 0x4000")
    if opt.add64:
        e(f"s_mov_b32 s{sD+2}, 0xffff4000")
        e(f"s_mov_b32 s{sD+3}, 0xffff3fff")
        e(f"s_mov_b32 s{sD+4}, s{sX}")
        e(f"s_mov_b32 s{sD+5}, s{sX}")
    def kread(tile, buf):
        o = tile * 2048
        return [f"ds_read_b128 {vr(vKf+8*buf,4)}, v{vKr} offset:{o}",
                f"ds_read_b128 {vr(vKf+8*buf+4,4)}, v{vKr} offset:{o+1024}"]
    def vread(tile, buf):
        o = tile * 2048
        return [f"ds_read_b64_tr_b16 {vr(vVf+8*buf+4*s+2*u,2)}, v{vVr} offset:{o+s*1024+u*256}" for s in range(2) for u in range(2)]
    def m1(T):
        return f"v_mfma_f32_32x32x16_bf16 {vr(vS+16*(T%4),16)}, {vr(vKf+8*((T//2)%2),4)}, {vr(vQ+4*(T%2),4)}, 0"
    def m2(T):
        return f"v_mfma_f32_32x32x16_bf16 {vr(vS+16*(T%4),16)}, {vr(vKf+8*((T//2)%2)+4,4)}, {vr(vQ+8+4*(T%2),4)}, {vr(vS+16*(T%4),16)}"
    def sm(T, s):
        return f"v_smfmac_f32_32x32x32_bf16 {vr(vO+16*(T%2),16)}, {vr(vVf+8*((T//2)%4)+4*s,4)}, {vr(vS+16*(T%4)+8*s,8)}, v{vIdx}"
    def ex(T, j):
        r = vS + 16*(T%4) + j
        return f"v_exp_f32 v{r}, v{r}"

    def vtwo(chunk):
        for half in range(2):
            e(f"s_lshl_b32 s{sTmp}, s{sQg}, 11")
            e(f"s_mul_i32 s{sTmp2}, s{sQg}, 1792")
            e(f"s_add_u32 s{sTmp2}, s{sTmp2}, s{sRot}")
            if chunk or half:
                e(f"s_add_u32 s{sTmp}, s{sTmp}, {chunk*16384 + half*8192}")
                e(f"s_add_u32 s{sTmp2}, s{sTmp2}, {chunk*CH + half*7168}")
            if chunk:
                for t in wrap_l(sTmp2): e(t)
            for t in vdma_l(m0=sTmp, off=sTmp2, adv=False, fl=opt.nt0): e(t)
    def tproc(q):
        e(f"v_lshlrev_b32 v{vTv}, 16, v{vTv}")
        if q:
            c("c = t*log2e")
            e(f"v_mul_f32 v{vT0}, 0x3fb8aa3b, v{vTv}")
        else: e("s_nop 0")
        e(f"v_readfirstlane_b32 s{sAbsT}, v{vTv}")
        if q:
            e(f"v_readfirstlane_b32 s{sScale}, v{vT0}")
            e(f"v_mov_b32 v{vP+15}, 0")
        else: e("s_nop 1")
        c("the shift |t|*log2e bounds every logit; it is used only while it cannot underflow a row (|t| <= 16)")
        e(f"s_and_b32 s{sAbsT}, s{sAbsT}, 0x7fffffff")
        if q:
            e(f"s_or_b32 s{sTmp2}, s{sScale}, 0x80000000")
            e(f"s_lshr_b32 s{sTmp2}, s{sTmp2}, 16")
        e(f"s_cmp_gt_u32 s{sAbsT}, {'0x41800000' if not opt.force_fallback else '0'}")
        if q: e(f"s_cselect_b32 s{sTmp2}, 0, s{sTmp2}")
        e(f"s_cselect_b32 s{sAbsT}, 1, 0")
        if q: e(f"v_mov_b32 v{vP+14}, s{sTmp2}")
    def qreads():
        e(f"ds_read_b128 {vr(vQ,4)}, v{vNq}")
        e(f"ds_read_b128 {vr(vQ+8,4)}, v{vNq} offset:1024")
        e(f"ds_read_b128 {vr(vQ+4,4)}, v{vTq}")
        e(f"ds_read_b128 {vr(vQ+12,4)}, v{vTq} offset:1024")
    def x3():
        for t in rawnext_l(fl=opt.nt0): e(t)
    v0 = vread(0, 0); v1 = vread(1, 1); k0 = kread(0, 0); k1 = kread(1, 1)
    e(f"s_mul_i32 s{sVoffs}, s{sWave}, 1792")
    e(f"s_add_u32 s{sM0V}, s{sM0V}, 0x8000")
    e(f"s_add_u32 s{sVoffs}, s{sVoffs}, {2*CH}")
    e(f"s_add_u32 s{sVoffs}, s{sVoffs}, s{sRot}")
    for t in wrap_l(sVoffs): e(t)
    e(f"s_cmp_eq_u32 s{sG}, 0")
    e("s_cbranch_scc1 L_st4")
    c("group 1: K1 rows into this wave's part of the still unused K slot 2; K0, K1; V1 and K2 rows")
    e(f"s_add_u32 s{sAlt}, s{sAlt}, 32768")
    e(f"s_add_u32 s{sTmp}, s{sKnext}, {CH}")
    for t in wrap_l(sTmp): e(t)
    for t in rawdma_l(sK, sTmp, sAlt, fl=opt.nt0): e(t)
    lst(5)
    e(f"s_add_u32 s{sKnext}, s{sKnext}, {2*CH}")
    for t in wrap_l(sKnext): e(t)
    e(f"s_sub_u32 s{sAlt}, s{sM0R}, s{sAlt}")
    e(f"s_mov_b32 s{sScale}, 1.0")
    if opt.dry:
        c("run the normalisation once on whatever is staged: brings its code into the instruction cache")
        e(f"s_call_b64 s[{sRet}:{sRet+1}], L_prep")
        e(f"v_xor_b32 v{vKw}, 0x8000, v{vKw}")
    e(f"s_waitcnt vmcnt(4)")
    lst(3)
    e(f"s_call_b64 s[{sRet}:{sRet+1}], L_prep")
    e(f"v_xor_b32 v{vKw}, 0xc000, v{vKw}")
    e(f"v_subrev_u32 v{vNat}, s{sAlt}, v{vNat}")
    e(f"v_subrev_u32 v{vTr}, s{sAlt}, v{vTr}")
    tproc(False)
    e("s_waitcnt lgkmcnt(0)")
    lst(4)
    e("s_barrier")
    for t in k0 + k1: e(t)
    if opt.xpos == 0: x3()
    e(f"s_setprio {opt.g1prio}")
    e(f"s_waitcnt vmcnt({4 if opt.xpos == 0 else 0})")
    lst(0)
    if opt.xpos == 1: x3()
    if opt.bpos == 1:
        lst(6); e("s_barrier"); lst(2)
    e(f"s_call_b64 s[{sRet}:{sRet+1}], L_prep")
    e(f"v_xor_b32 v{vKw}, 0x4000, v{vKw}")
    e(f"v_add_u32 v{vNat}, s{sAlt}, v{vNat}")
    e(f"v_add_u32 v{vTr}, s{sAlt}, v{vTr}")
    if opt.xpos == 2: x3()
    if opt.bpos == 0:
        e("s_waitcnt lgkmcnt(0)")
        lst(6); e("s_barrier"); lst(2)
    qreads()
    e(f"ds_write_b32 v{vFw}, v{vCnt}")
    e("s_waitcnt lgkmcnt(1)")
    lab("L_fill")
    e(m1(0)); e(m2(0))
    e("s_nop 1")
    e("s_branch L_st5")
    lab("L_st4")
    c("group 0: V0; Q rows -> fragments for this wave and its partner")
    vtwo(0)
    if opt.v1pos == 0: vtwo(1)
    n1 = 4 if opt.v1pos == 0 else 0
    lst(5)
    e(f"s_add_u32 s{sKnext}, s{sKnext}, {3*CH}")
    for t in wrap_l(sKnext): e(t)
    e(f"s_waitcnt vmcnt({8 + n1})")
    tproc(True)
    e("s_waitcnt lgkmcnt(0)")
    lst(3); lst(4)
    e("s_barrier")
    for t in k0 + k1: e(t)
    e(f"s_setprio {opt.p_start}")
    e(f"s_waitcnt vmcnt({4 + n1})")
    lst(0)
    e(f"s_call_b64 s[{sRet}:{sRet+1}], L_prep")
    qreads()
    e(f"v_xor_b32 v{vKw}, 0x8000, v{vKw}")
    e(f"s_mov_b32 s{sScale}, 1.0")
    e("s_waitcnt lgkmcnt(2)")
    e(m1(0)); e(m2(0))
    e(f"v_mov_b32 v{vP+14}, 0x3f803f80")
    e(f"v_mov_b32 v{vP+15}, 0x3f803f80")
    if opt.v1pos == 1: vtwo(1)
    e(f"s_waitcnt vmcnt({0 if opt.v1wait else 4}) lgkmcnt(0)")
    lst(6)
    e("s_barrier")
    lst(2)
    lab("L_st5")
    e(f"s_cmp_lg_u32 s{sAbsT}, 0")
    e("s_cbranch_scc1 L_special")
    lst(7)
    for t in v0: e(t)
    e(f"s_setprio {opt.pf0}")
    e(f"s_cmp_eq_u32 s{sG}, 0")
    e("s_cbranch_scc1 L_pf")
    e(f"s_setprio {opt.pf1}")
    lab("L_pf")
    wst(); lst(8)
    c("first tile: also computes the scores of tile 1")
    k2 = kread(2, 0); v2 = vread(2, 2); vd = vdma_l()
    ei = 0; nl = 0
    for ch in opt.pat0:
        if ch == 'e': e(ex(0, ei)); ei += 1
        elif ch == 'E': e(m1(1))
        elif ch == 'G': e(m2(1))
        elif ch == 'B': e(m1(2))
        elif ch == 'C': e(m2(2))
        elif ch == 'D': e(sm(0, 0))
        elif ch == 'a': e(v1.pop(0)); nl += 1
        elif ch == 'k': assert not v1; e(k2.pop(0)); nl += 1
        elif ch == 'v': assert not k2; e(v2.pop(0)); nl += 1
        elif ch == 'w': e(f"s_waitcnt lgkmcnt({nl})")
        elif ch == 'V':
            for t in vd[0:3] + ["s_mov_b64 exec, -1"]: e(t)
        elif ch == 'U':
            for t in [vd[3], vd[1], vd[5], vd[6], vd[4]] + vd[7:]: e(t)
    assert ei == 16 and len(v2) == 2
    e(f"s_cmp_eq_u32 s{sG}, 0")
    e("s_cbranch_scc1 L_B1")
    e("s_branch L_A1")

    lab("L_prep")
    for m in range(7): e(f"ds_read_b64 {vr(vP+2*m,2)}, v{vNat} offset:{8*m}")
    for s in tr_reads: e(s)
    for m in range(7):
        e(f"s_waitcnt lgkmcnt({13 - m})")
        if m > 0: e("s_nop 0")
        e(grams[m])
    e("s_nop 4")
    for t in sels: e(t)
    e(norm[0]); e("s_nop 0"); e(norm[1]); e(norm[2]); e("s_nop 0")
    e(f"v_mul_f32 v{vR}, s{sScale}, v{vR}")
    for s in norm[3:]: e(s)
    e("s_waitcnt lgkmcnt(0)")
    e("s_nop 0")
    for s in smalls: e(s)
    for i in range(14):
        e(cvts[i])
        if i % 4 == 3: e(writes[i // 4])
    e(writes[3])
    e(f"v_xor_b32 v{vKw}, 0x8000, v{vKw}")
    e(f"s_setpc_b64 s[{sRet}:{sRet+1}]")

    nskip = [0]
    fcmp = f"v_cmp_ge_u32 vcc, s{sIter}, v{vFlag}" if opt.dsadd else f"v_cmp_lt_u32 vcc, v{vFlag}, v{vCnt}"
    def build_half(name, pats):
        ops = []
        q = dict(n=list(nat_reads), t=list(tr_reads), g=list(grams), x=list(sels), s=list(norm), m=list(smalls), c=list(cvts), W=list(writes))
        cnt = dict(n=0, t=0, g=0, x=0, s=0, m=0, c=0, W=0, X=0)
        def add(t, lid=None, needs=()): ops.append((t, lid, list(needs)))
        for T in range(8):
            j = T // 2
            if T == 1: add(f"L_{name}1:")
            if opt.ws and T in opt.stampT:
                for s in wst_l(): add(s)
            if T % 2 == 0:
                rd_k = kread((j + 2) % 4, j % 2); rd_v = vread((j + 2) % 4, (j + 2) % 4)
                ki = vi = 0
            ei = 0
            for ch in pats[T]:
                if ch == 'e': add(ex(T, ei)); ei += 1
                elif ch == 'A':
                    add(sm(T - 1, 1), needs=[('v', ((T-1)//2), 2), ('v', ((T-1)//2), 3)])
                elif ch == 'B': add(m1(T + 2), needs=[('k', j + 1, 0)])
                elif ch == 'C': add(m2(T + 2), needs=[('k', j + 1, 1)])
                elif ch == 'D': add(sm(T, 0), needs=[('v', j, 0), ('v', j, 1)])
                elif ch == 'k': add(rd_k[ki], lid=('k', j + 2, ki)); ki += 1
                elif ch == 'v': add(rd_v[vi], lid=('v', j + 2, vi)); vi += 1
                elif ch == 'w': add("WAIT")
                elif ch == 'n': add(q['n'][cnt['n']], lid=('n', 0, cnt['n'])); cnt['n'] += 1
                elif ch == 't': add(q['t'][cnt['t']], lid=('t', 0, cnt['t'])); cnt['t'] += 1
                elif ch in '0123':
                    if opt.prio: add(f"s_setprio {opt.pmap[int(ch)]}")
                elif ch == 'g': add(q['g'][cnt['g']], needs=[('n', 0, cnt['g'] // 2)]); cnt['g'] += 1
                elif ch == 'x': assert cnt['g'] == 7; add(q['x'][cnt['x']]); cnt['x'] += 1
                elif ch == 's': assert cnt['x'] == 3; add(q['s'][cnt['s']]); cnt['s'] += 1
                elif ch == 'm': assert cnt['s'] == 6; add(q['m'][cnt['m']], needs=[('t', 0, cnt['m'])]); cnt['m'] += 1
                elif ch == 'c': assert cnt['m'] > cnt['c'] // 2; add(q['c'][cnt['c']]); cnt['c'] += 1
                elif ch == 'W':
                    assert cnt['c'] >= min(14, 4*cnt['W'] + 4)
                    add(q['W'][cnt['W']], lid=('W', 0, cnt['W'])); cnt['W'] += 1
                    if cnt['W'] == 4: pending_xor = True
                elif ch == 'X':
                    l = rawnext_l()
                    parts = [l[0:3], l[3:4], l[4:5], l[5:]]
                    for t in parts[cnt['X']]: add(t)
                    cnt['X'] += 1
                elif ch == 'Y': add("s_waitcnt vmcnt(2)")
                elif ch == 'z': add(f"s_cmp_ge_u32 s{sIter}, 5")
                elif ch == '[':
                    nskip[0] += 1; add(f"s_cbranch_scc1 L_skip{nskip[0]}")
                elif ch == ']': add(f"L_skip{nskip[0]}:")
                elif ch == 'V':
                    add(f"s_mov_b32 m0, s{sM0V}")
                    add(f"s_mov_b64 exec, s[{sExV}:{sExV+1}]")
                    add(f"buffer_load_dwordx4 v{vVoff}, s[{sV}:{sV+3}], s{sVoffs} offen{opt.ntl} lds")
                    add(f"s_mov_b64 exec, -1")
                elif ch == 'U':
                    add(f"s_add_u32 m0, s{sM0V}, 128")
                    add(f"s_mov_b64 exec, s[{sExV}:{sExV+1}]")
                    add(f"buffer_load_dwordx4 v{vVoff}, s[{sV}:{sV+3}], s{sVoffs} offen offset:896{opt.ntl} lds")
                    add(f"s_mov_b64 exec, -1")
                elif ch == 'p':
                    if opt.v1wait: continue
                    add("s_waitcnt vmcnt(6)")
                    add(f"ds_write_b32 v{vFw}, v{vCnt}", lid=('p', 0, 0))
                elif ch == 'q': add(f"s_cmp_eq_u32 s{sIter}, 7")
                elif ch == 'T': add("s_cbranch_scc1 L_tail")
                elif ch == 'y': add("s_waitcnt vmcnt(0)")
                elif ch == 'f': add(f"ds_read_b32 v{vFlag}, v{vFr}", lid=('f', 0, 0))
                elif ch == 'F':
                    add(fcmp, needs=[('f', 0, 0)])
                    if opt.add64:
                        add(f"v_lshl_add_u64 {vr(vKr,2)}, {vr(vKr,2)}, 0, s[{sD}:{sD+1}]")
                    else:
                        add(f"v_xor_b32 v{vKr}, s{sX}, v{vKr}")
                        add(f"v_xor_b32 v{vVr}, s{sX}, v{vVr}")
                    add(f"s_cbranch_vccnz L_spin{name}")
                    add(f"L_back{name}:")
                    if not opt.dsadd: add(f"v_add_u32 v{vCnt}, 1, v{vCnt}")
                    if not opt.add64: add(f"s_xor_b32 s{sX}, s{sX}, 0x8000")
                elif ch == 'j':
                    if opt.add64:
                        jj = [f"s_cmp_eq_u32 s{sIter}, 3", f"s_cselect_b64 s[{sD}:{sD+1}], s[{sD+2}:{sD+3}], s[{sD+4}:{sD+5}]"]
                        add(jj[cnt.setdefault('j', 0)])
                    cnt['j'] = cnt.get('j', 0) + 1
                elif ch == 'i':
                    it = [f"s_add_u32 s{sIter}, s{sIter}, 1"]
                    add(it[cnt.setdefault('i', 0)]); cnt['i'] += 1
                elif ch == 'a':
                    adv = [f"s_add_u32 s{sM0V}, s{sM0V}, 0x4000", f"s_and_b32 s{sM0V}, s{sM0V}, 0xffff",
                           f"s_add_u32 s{sVoffs}, s{sVoffs}, {CH}"] + wrap_l(sVoffs)
                    add(adv[cnt.setdefault('a', 0)]); cnt['a'] += 1
                elif ch == 'P':
                    add(f"ds_add_u32 v{vFw}, v{vCnt}" if opt.dsadd else f"ds_write_b32 v{vFw}, v{vCnt}", lid=('P', 0, 0))
                    if name == 'A':
                        assert cnt['W'] == 4
                        add(f"v_xor_b32 v{vKw}, 0x8000, v{vKw}")
                else: raise ValueError(ch)
            assert ei == 16, (name, T, ei)
            if T % 2 == 1: assert ki == 2 and vi == 4
        if name == 'A':
            assert cnt == dict(n=4, t=7, g=7, x=3, s=6, m=7, c=14, W=4, X=0, a=5, i=1, j=2), cnt
        return ops

    halves = {'A': build_half('A', opt.patA), 'B': build_half('B', opt.patB)}
    def shift(ops):
        out = []
        for t, lid, needs in ops:
            if lid is not None:
                lid = (lid[0], lid[1] - 4, lid[2]) if lid[0] in 'kv' else (lid[0], -1, lid[2])
            out.append((t, lid, []))
        return out
    def resolve(name):
        ops = halves[name]
        res = {}
        for pred in 'AB':
            seq = shift(halves[pred]) + ops
            base = len(seq) - len(ops)
            pos = {lid: i for i, (t, lid, n) in enumerate(seq) if lid is not None}
            waits = [i for i in range(base, len(seq)) if seq[i][0] == "WAIT"]
            covered = -1
            covered = pos[('k', 0, 1)]
            for i in range(base, len(seq)):
                t, lid, needs = seq[i]
                if t == "WAIT":
                    nxt = min([w for w in waits if w > i] + [len(seq)])
                    need = [pos[x] for k in range(i, nxt) for x in seq[k][2] if x in pos]
                    tgt = max(need + [covered])
                    assert tgt < i, ("wait placed before its load", name, seq[tgt][0])
                    n = sum(1 for k in range(tgt + 1, i) if seq[k][1] is not None)
                    res[i - base] = min(res.get(i - base, 15), n)
                    covered = tgt
                for x in needs:
                    if x in pos: assert pos[x] <= covered, ("uncovered", name, t, x)
                    else: assert x[0] == 'v' and x[1] < -2 or x[1] <= -2, x
        out = [(f"s_waitcnt lgkmcnt({res[i]})" if t == "WAIT" else t) for i, (t, lid, n) in enumerate(ops)]
        return [t for t in out if not any(re.search(d, t) for d in opt.drop)]

    L.append(".p2align 3")
    lab("L_A")
    for t in resolve('A'):
        (L.append(t) if t.endswith(":") else e(t))
    lab("L_B")
    for t in resolve('B'):
        (L.append(t) if t.endswith(":") else e(t))
    e(f"s_cmp_lt_u32 s{sIter}, 6")
    e("s_cbranch_scc1 L_A")
    e("s_branch L_B")
    lab("L_tail")
    c("last two tiles; local block 0 goes to the partner wave, local block 1 is finished here")
    e(f"s_lshl_b32 s{sTmp}, s{sWave}, 12")
    e(f"s_add_u32 s{sTmp}, s{sTmp}, {LDS_K}")
    e(f"v_add_u32 v{vT0}, s{sTmp}, v{vL16}")
    e(f"v_xor_b32 v{vT1}, 0x4000, v{vT0}")
    if opt.st_lin:
        e(f"v_add_u32 v{vSS}, s{sM0R}, v{vL16}")
    no = nr = 0
    tv = vread(3, 3)[2:]
    vF = vO + 16
    for T, Tp, Tn, pat in opt.patT:
        ei = 0
        for ch in pat:
            if ch == 'e': e(ex(T, ei)); ei += 1
            elif ch == 'A': e(sm(Tp, 1))
            elif ch == 'B': e(m1(Tn))
            elif ch == 'C': e(m2(Tn))
            elif ch == 'D': assert ei >= 10; e(sm(T, 0))
            elif ch == 'w': e("s_waitcnt lgkmcnt(0)")
            elif ch == 'y': e("s_waitcnt vmcnt(0)")
            elif ch == 'n': e("s_nop 0")
            elif ch == 'K': e("s_waitcnt lgkmcnt(2)")
            elif ch == 'v': e(tv.pop(0))
            elif ch == 'b': e("s_barrier")
            elif ch in '0123':
                if opt.prio: e(f"s_setprio {opt.pmap[int(ch)]}")
            elif ch == 'O':
                e(f"ds_write_b128 v{vT0}, {vr(vO+4*no,4)} offset:{1024*no}"); no += 1
            elif ch == 'R':
                e(f"ds_read_b128 {vr(vD+4*nr,4)}, v{vT1} offset:{1024*nr}"); nr += 1
            elif ch == 'a':
                for j in range(0, 16, 2):
                    e(f"v_pk_add_f32 {vr(vF+j,2)}, {vr(vF+j,2)}, {vr(vD+j,2)}")
            else: raise ValueError(ch)
        assert ei == 16
    assert no == 4 and nr == 4
    e("s_nop 1")
    e(sm(7, 1))
    wst()
    e("s_nop 11")
    e(f"v_mov_b32 v{vT0}, v{vF+12}")
    e(f"v_mov_b32 v{vT1}, v{vF+12}")
    e("s_nop 1")
    e(f"v_permlane32_swap_b32 v{vT0}, v{vT1}")
    e(f"v_rcp_f32 v{vB}, v{vT1}")
    e("s_nop 0")
    if True:
        c("rows -> own staging buffer -> whole lines")
        for j in range(4):
            e(f"v_pk_mul_f32 {vr(vF+4*j,2)}, {vr(vF+4*j,2)}, {vr(vB,2)} op_sel_hi:[1,0]")
            e(f"v_pk_mul_f32 {vr(vF+4*j+2,2)}, {vr(vF+4*j+2,2)}, {vr(vB,2)} op_sel_hi:[1,0]")
            e(f"v_cvt_pk_bf16_f32 v{vP+2*j}, v{vF+4*j}, v{vF+4*j+1}")
            e(f"v_cvt_pk_bf16_f32 v{vP+2*j+1}, v{vF+4*j+2}, v{vF+4*j+3}")
            if j == 3: e("s_mov_b32 exec_hi, 0")
            e(f"ds_write_b64 v{vOoff}, {vr(vP+2*j,2)} offset:{8*j}")
        e("s_mov_b32 exec_hi, -1")
        e(f"ds_read_b128 {vr(vD,4)}, v{vSS}")
        e(f"ds_read_b128 {vr(vD+4,4)}, v{vSS} offset:1024")
        e("s_waitcnt lgkmcnt(1)")
        e(f"buffer_store_dwordx4 {vr(vD,4)}, v{vL16}, s[{sO}:{sO+3}], s{sOoff} offen{opt.st_flags}")
        e("s_mov_b32 exec_hi, 0xffff")
        e("s_waitcnt lgkmcnt(0)")
        e(f"buffer_store_dwordx4 {vr(vD+4,4)}, v{vL16}, s[{sO}:{sO+3}], s{sOoff} offen offset:1024{opt.st_flags}")
    if opt.ws:
        e("s_mov_b64 exec, -1")
        if opt.lazy:
            lst(9)
            e("s_waitcnt lgkmcnt(0)")
            for k in range(10):
                e(f"s_sub_u32 s74, s{80+2*k}, s72")
                e(f"v_writelane_b32 v{vSt}, s74, {k}")
            e(f"v_writelane_b32 v{vSt}, s71, 10")
            e("s_mov_b32 s70, 11")
        wst()
        e("s_waitcnt vmcnt(0)")
        wst()
        e("s_memrealtime s[78:79]")
        e("s_load_dwordx2 s[80:81], s[0:1], 48")
        e("s_waitcnt lgkmcnt(0)")
        e("s_mov_b32 s82, 0x1000000"); e("s_mov_b32 s83, 0x00020000")
        e(f"v_writelane_b32 v{vSt}, s70, 31")
        e(f"v_writelane_b32 v{vSt}, s76, 30")
        e(f"v_writelane_b32 v{vSt}, s78, 29")
        e(f"s_lshl_b32 s3, s2, 3"); e(f"s_add_u32 s3, s3, s{sWave}"); e("s_lshl_b32 s3, s3, 7")
        e(f"v_lshlrev_b32 v1, 2, v{vLane}")
        e("s_mov_b32 exec_hi, 0")
        e(f"buffer_store_dword v{vSt}, v1, s[80:83], s3 offen")
    if opt.padto:
        e("s_waitcnt vmcnt(0)")
        lab("L_pspin")
        e("s_memrealtime s[78:79]")
        e("s_waitcnt lgkmcnt(0)")
        e("s_sub_u32 s84, s78, s76")
        e(f"s_cmp_lt_u32 s84, {opt.padto}")
        e("s_cbranch_scc1 L_pspin")
    lab("L_end")
    e("s_endpgm")

    for name in 'AB':
        lab(f"L_spin{name}")
        c("some wave has not yet published the next chunk: wait for it")
        if opt.ws:
            e(f"s_lshl_b32 s{sTmp}, s{sIter}, 2")
            e(f"s_lshl_b32 s{sTmp}, 1, s{sTmp}")
            e(f"s_add_u32 s71, s71, s{sTmp}")
        e(f"s_sleep {opt.sleep}")
        e(f"ds_read_b32 v{vFlag}, v{vFr}")
        e("s_waitcnt lgkmcnt(0)")
        e(fcmp)
        e(f"s_cbranch_vccnz L_spin{name}")
        e(f"s_branch L_back{name}")

    lab("L_special")
    e(f"s_cmp_eq_u32 s{sMode}, 0")
    e("s_cbranch_scc1 L_maxpass")
    c("second pass: put -max into the pad slots of the Q fragments (lanes 32..63)")
    e("s_mov_b32 exec_lo, 0")
    e(f"v_mov_b32 v{vQ+10}, v{vPad}")
    e(f"v_mov_b32 v{vQ+11}, v{vPad+1}")
    e(f"v_mov_b32 v{vQ+14}, v{vPad+2}")
    e(f"v_mov_b32 v{vQ+15}, v{vPad+3}")
    e("s_mov_b32 exec_lo, -1")
    e(f"s_mov_b32 s{sAbsT}, 0")
    e("s_nop 7")
    e("s_branch L_fill")
    lab("L_maxpass")
    mx = [vPad, vPad + 2]
    e(f"v_mov_b32 v{mx[0]}, 0xff800000")
    e(f"v_mov_b32 v{mx[1]}, 0xff800000")
    lab("L_mloop")
    c("chunk sIter is in LDS; group (sIter & 1) normalises chunk sIter + 1 (chunk 1 is done, K2 is staged)")
    e(f"s_add_u32 s{sTmp}, s{sIter}, s{sG}")
    e(f"s_bitcmp1_b32 s{sTmp}, 0")
    e("s_cbranch_scc1 L_mnoprep")
    e(f"s_cmp_eq_u32 s{sIter}, 7")
    e("s_cbranch_scc1 L_mnoprep")
    e(f"s_cmp_eq_u32 s{sIter}, 0")
    e("s_cbranch_scc1 L_mnoprep")
    e(f"s_cmp_eq_u32 s{sIter}, 1")
    e("s_cbranch_scc1 L_mhave")
    for t in rawnext_l(): e(t)
    lab("L_mhave")
    e(f"s_waitcnt vmcnt(0) lgkmcnt(0)")
    e(f"s_call_b64 s[{sRet}:{sRet+1}], L_prep")
    lab("L_mnoprep")
    for j in range(4):
        for s in kread(j, 0): e(s)
        e("s_waitcnt lgkmcnt(0)")
        e(m1(0)); e(m2(0)); e(m1(1)); e(m2(1))
        e("s_nop 15")
        for b in range(2):
            for i in range(0, 16, 2):
                e(f"v_max3_f32 v{mx[b]}, v{vS+16*b+i}, v{vS+16*b+i+1}, v{mx[b]}")
    e("s_barrier")
    e(f"v_xor_b32 v{vKr}, s{sX}, v{vKr}")
    e(f"s_xor_b32 s{sX}, s{sX}, 0x8000")
    e(f"s_add_u32 s{sIter}, s{sIter}, 1")
    e(f"s_cmp_lt_u32 s{sIter}, 8")
    e("s_cbranch_scc1 L_mloop")
    c("combine the two lane halves and the partner wave (whose local blocks are swapped)")
    for b in range(2):
        e(f"v_mov_b32 v{vT0}, v{mx[b]}")
        e("s_nop 1")
        e(f"v_permlane32_swap_b32 v{mx[b]}, v{vT0}")
        e("s_nop 1")
        e(f"v_max_f32 v{mx[b]}, v{mx[b]}, v{vT0}")
    e(f"s_lshl_b32 s{sTmp}, s{sWave}, 12")
    e(f"s_add_u32 s{sTmp}, s{sTmp}, {LDS_K}")
    e(f"v_add_u32 v{vT0}, s{sTmp}, v{vL16}")
    e(f"v_xor_b32 v{vT1}, 0x4000, v{vT0}")
    e("s_waitcnt vmcnt(0) lgkmcnt(0)")
    e(f"ds_write_b32 v{vT0}, v{mx[0]}")
    e(f"ds_write_b32 v{vT0}, v{mx[1]} offset:4")
    e("s_waitcnt lgkmcnt(0)")
    e("s_barrier")
    e(f"ds_read_b64 {vr(vD,2)}, v{vT1}")
    e("s_waitcnt lgkmcnt(0)")
    e("s_barrier")
    e(f"s_mov_b32 s{sTmp}, 0xffff0000")
    for b in range(2):
        m = mx[b]
        e(f"v_max_f32 v{m}, v{m}, v{vD+1-b}")
        c("split -max into three bf16 parts")
        e(f"v_sub_f32 v{m}, 0, v{m}")
        e(f"v_and_b32 v{vT0}, s{sTmp}, v{m}")
        e(f"v_sub_f32 v{m}, v{m}, v{vT0}")
        e(f"v_and_b32 v{vT1}, s{sTmp}, v{m}")
        e(f"v_sub_f32 v{m}, v{m}, v{vT1}")
        e(f"v_lshrrev_b32 v{m+1}, 16, v{m}")
        e(f"v_lshrrev_b32 v{vT0}, 16, v{vT0}")
        e(f"v_or_b32 v{m}, v{vT0}, v{vT1}")
    e(f"s_mov_b32 s{sMode}, 1")
    e("s_branch L_restart")

    txt = HEADER + f"; @launch grid=(256,1,1) block=(512,1,1) lds={LDS_TOTAL}\n"
    txt += """.amdgcn_target "amdgcn-amd-amdhsa--gfx950"
.text
.globl standalone__qk_norm__prompt_kernel
.p2align 8
.type standalone__qk_norm__prompt_kernel,@function
standalone__qk_norm__prompt_kernel:
"""
    txt += "\n".join(L) + "\n"
    txt += f""".section .rodata,"a"
.p2align 6
.amdhsa_kernel standalone__qk_norm__prompt_kernel
  .amdhsa_next_free_vgpr {NV}
  .amdhsa_next_free_sgpr {102 if (opt.ws or opt.padto) else 72}
  .amdhsa_accum_offset {(NV+3)//4*4}
  .amdhsa_group_segment_fixed_size 0
  .amdhsa_kernarg_size 56
  .amdhsa_user_sgpr_count 2
  .amdhsa_user_sgpr_kernarg_segment_ptr 1
  .amdhsa_system_sgpr_workgroup_id_x 1
.end_amdhsa_kernel
"""
    return txt

if __name__ == "__main__":
    opt = Opt()
    out = sys.argv[1]
    for a in sys.argv[2:]:
        k, v = a.split("=", 1)
        assert hasattr(opt, k), k
        setattr(opt, k, eval(v))
    open(out, "w").write(gen(opt))
```

```python
import sys, re

HEADER = """; Kernarg layout for this problem (56 bytes, ptrs only, base s[0:1]):
"""

PAT_B = [
 "eeA3wkeeeeBkeeeeCveeeeDvee",
 "eeAuuveeeeBveeeeC[I]eeeeDee",
 "eeA2wkeeeeBkeeeeCqveeeeDveeT",
 "eeA1veeeeBveeeeC0feeeeDee",
 "eeA3wFkeeeeBkeeeeCveeeeDSvee",
 "eeAzveeeeByveeeeC[LV]eeeeD[U]ee",
 "eeA2wkeeeeBakeeeeCaveeeeDaivee",
 "eeA1aaveeeeBveeeeC0eeeeDPee",
]
PAT_A = [
 "eeA3wkeeeeBkeeeeCveeeeDvee",
 "eeAveeeeBveeeeCYnneeeeDnnee",
 "eeA2wkteeegeBkteeegeCvteeegeDvtee",
 "egeA1vteeegeBvteeegeC0fteeegeDee",
 "eeA3wFkexexexeBkesesesesCvesseemeDSvee",
 "emeAveecemeByvececemeCLVececemeDUecec",
 "emeA2wkececemeBakWececeeCavWeceecceDaivee",
 "eeA1aavWeeeeBvWeeeeC0EeeeeDPee",
]
PAT_T = [
 (3, 2, 6, "eeA1Kveeee" "BveeeeC0eeeeDee"),
 (4, 3, 5, "eeA3eeeeBeeeeCeeeeDee"),
 (6, 4, 7, "eeA2weeeeBeeeeCeeeeD1ee"),
 (5, 6, 0, "eeAeeee0eeeeDeeeOeOeOeO"),
 (7, 5, 0, "eeAwbReReReReeeeewaeeDeeee"),
]

class Opt:
    ws = False
    patT = PAT_T
    st_flags = ' sc1'
    st_lin = True
    g1prio = 3
    v1pos = 0
    v1wait = 1
    touch = 0
    k1early = 0
    bpos = 0
    lazy = False
    cpf = 1
    padat = -1
    qdelay = 1
    dry = False
    g1early = 0
    nt0 = ''
    add64 = 0
    dsadd = 1
    rotm = 4
    never = False
    xmap = False
    hs = ' sc1'
    hp = ' sc1'
    ntl = ''
    pf0 = 3
    pf1 = 3
    pat0 = 'eeEaaeeeGaaeeeBkVeeeCkUeewDvveee'
    v0pos = 1
    xpos = 2
    pmid = 3
    drop = ()
    padto = 0
    force_fallback = False
    patA = PAT_A
    patB = PAT_B
    prio = True
    pmap = '0123'
    p_start = 2
    sleep = 1
    stampT = (4,)

def gen(opt):
    L = []
    def e(s): L.append("    " + s)
    def lab(s): L.append(s + ":")
    def c(s): L.append("    ; " + s)

    HB = 114688
    CH = 14336
    LDS_V = 0
    LDS_K = 65536
    LDS_Q = LDS_K + 3*16384
    LDS_R = 131072
    LDS_F = LDS_R + 8*3584
    LDS_TOTAL = LDS_F + 2048
    vLane, vL16, vVoff, vKw, vKr, vVr, vIdx, vT0 = 0, 1, 2, 3, 4, 5, 6, 7
    vNat, vTr, vMa, vMb, vOoff, vT1, vSS, vR = 8, 9, 10, 11, 12, 13, 14, 15
    vQ = 16
    vO = 32
    vS = 64
    vKf = 128
    vVf = 144
    vP = 176
    vTt = 192
    vB = 206
    vD = 208
    vPad = 236
    vSt, vTv, vNq = 240, 241, 242
    vTq = 247
    vFw, vFr, vFlag, vCnt = 243, 244, 245, 246
    vEx, vPa, vPoll, vInit = 248, 249, 250, 251
    NV = 252
    sK, sV, sO, sR = 20, 24, 28, 48
    sWave, sHead, sQb, sG, sQg = 32, 33, 34, 35, 36
    sIter, sKnext, sVoffs, sM0V, sM0R = 37, 38, 39, 40, 41
    sT, sScale, sEps, sOoff = 42, 43, 44, 45
    sTmp, sTmp2 = 46, 47
    sExV = 52
    sRet = 54
    sMode, sAbsT = 56, 57
    sPre, sX = 58, 59
    sAlt = 60
    sRot = 61
    sW, sFl = 16, 62
    sImp, sExp, sSig, sJm1, sRdy = 14, 15, 34, 42, 58
    sMk = 64

    def vr(b, n): return f"v[{b}:{b+n-1}]"

    def wst_l():
        if not opt.ws: return []
        return ["s_memtime s[74:75]", "s_waitcnt lgkmcnt(0)", "s_sub_u32 s74, s74, s72", "s_mov_b32 m0, s70", "s_nop 0",
                f"v_writelane_b32 v{vSt}, s74, m0", "s_add_u32 s70, s70, 1"]
    def wst():
        if opt.lazy: return
        for s in wst_l(): e(s)
    def lst(k):
        if opt.padto and opt.padat == k: e("s_memrealtime s[76:77]")
        if opt.lazy: e(f"s_memtime s[{80+2*k}:{81+2*k}]")

    def rawdma_l(srd, soff, m0=None, fl=None):
        fl = opt.ntl if fl is None else fl
        r = [f"s_mov_b32 m0, s{sM0R if m0 is None else m0}", "s_nop 0"]
        for i in range(3):
            r.append(f"buffer_load_dwordx4 v{vL16}, s[{srd}:{srd+3}], s{soff} offen offset:{1024*i}{fl} lds")
        r.append("s_mov_b32 exec_hi, 0")
        r.append(f"buffer_load_dwordx4 v{vL16}, s[{srd}:{srd+3}], s{soff} offen offset:3072{fl} lds")
        r.append("s_mov_b32 exec_hi, -1")
        return r
    def wrap_l(r):
        return [f"s_sub_u32 s3, s{r}, s{sR+2}", f"s_cselect_b32 s{r}, s{r}, s3"]
    def rawnext_l(fl=None):
        return rawdma_l(sK, sKnext, fl=fl) + [f"s_add_u32 s{sKnext}, s{sKnext}, {2*CH}"] + wrap_l(sKnext)

    def vdma_l(m0=None, off=None, adv=True, fl=None):
        fl = opt.ntl if fl is None else fl
        m0 = sM0V if m0 is None else m0
        off = sVoffs if off is None else off
        r = [f"s_mov_b32 m0, s{m0}",
             f"s_mov_b64 exec, s[{sExV}:{sExV+1}]",
             f"buffer_load_dwordx4 v{vVoff}, s[{sV}:{sV+3}], s{off} offen{fl} lds",
             f"s_add_u32 m0, s{m0}, 128",
             f"s_add_u32 s{sM0V}, s{sM0V}, 0x4000" if adv else "s_nop 0",
             f"buffer_load_dwordx4 v{vVoff}, s[{sV}:{sV+3}], s{off} offen offset:896{fl} lds",
             f"s_mov_b64 exec, -1"]
        if adv:
            r += [f"s_and_b32 s{sM0V}, s{sM0V}, 0xffff", f"s_add_u32 s{sVoffs}, s{sVoffs}, {CH}"] + wrap_l(sVoffs)
        return r

    nat_reads = [f"ds_read2_b64 {vr(vP+4*i,4)}, v{vNat} offset0:{2*i} offset1:{2*i+1}" for i in range(3)] + \
                [f"ds_read_b64 {vr(vP+12,2)}, v{vNat} offset:48"]
    tr_reads = [f"ds_read_b64_tr_b16 {vr(vTt+2*m,2)}, v{vTr} offset:{8*m}" for m in range(7)]
    dots = [f"v_dot2_f32_bf16 v{vSS}, v{vP+i}, v{vP+i}, {'0' if i == 0 else 'v%d' % vSS}" for i in range(14)]
    grams = [f"v_mfma_f32_4x4x4_16b_bf16 {vr(vD,4)}, {vr(vP+2*m,2)}, {vr(vP+2*m,2)}, {'0' if m == 0 else vr(vD,4)}" for m in range(7)]
    sels = [f"v_cndmask_b32 v{vSS}, v{vD if i == 0 else vSS}, v{vD+1+i}, s[{sMk+2*i}:{sMk+2*i+1}]" for i in range(3)]
    norm = [f"v_sqrt_f32 v{vSS}, v{vSS}", f"v_add_f32 v{vSS}, s{sEps}, v{vSS}", f"v_rcp_f32 v{vR}, v{vSS}",
            f"v_cvt_pk_bf16_f32 v{vR}, v{vR}, v{vR}", f"v_and_b32 v{vB}, v{vR}, v{vMa}", f"v_and_b32 v{vB+1}, v{vR}, v{vMb}"]
    smalls = [f"v_mfma_f32_4x4x4_16b_bf16 {vr(vD+4*m,4)}, {vr(vTt+2*m,2)}, {vr(vB,2)}, 0" for m in range(7)]
    cvts = [f"v_cvt_pk_bf16_f32 v{vP+i}, v{vD+2*i}, v{vD+2*i+1}" for i in range(14)]
    writes = [f"ds_write_b128 v{vKw}, {vr(vP+4*i,4)} offset:{512*i}" for i in range(4)]

    e("s_load_dwordx4 s[4:7], s[0:1], 0")
    e("s_load_dwordx4 s[8:11], s[0:1], 16")
    e("s_load_dwordx2 s[12:13], s[0:1], 32")
    e(f"s_load_dwordx2 s[{sW}:{sW+1}], s[0:1], 48")
    e("s_cmp_ge_u32 s2, 256")
    e("s_cbranch_scc1 L_end")
    if opt.xmap:
        e("s_and_b32 s3, s2, 7"); e("s_lshl_b32 s3, s3, 3"); e("s_bfe_u32 s14, s2, 0x30003"); e("s_or_b32 s3, s3, s14")
        e("s_and_b32 s2, s2, 192"); e("s_or_b32 s2, s2, s3")
    if opt.ws:
        e("s_memtime s[72:73]"); e("s_memrealtime s[76:77]"); e("s_mov_b32 s70, 0"); e("s_mov_b32 s71, 0")
    if opt.padto: e("s_memrealtime s[76:77]")
    e(f"v_lshrrev_b32 v{vT0}, 6, v0")
    e(f"v_and_b32 v{vLane}, 63, v0")
    e(f"v_readfirstlane_b32 s{sWave}, v{vT0}")
    if opt.cpf:
        c("pull the kernel's own code into L2 while the first data is on its way: one line per wave")
        e("s_getpc_b64 s[14:15]")
        lab("L_pc")
        e(f"s_and_b32 s3, s2, 56")
        e(f"v_add_u32 v{vT1}, s3, v{vT0}")
        e(f"v_min_u32 v{vT1}, (L_special - L_pc) / 128, v{vT1}")
        e(f"v_lshlrev_b32 v{vT1}, 7, v{vT1}")
        e(f"global_load_dword v{vPad}, v{vT1}, s[14:15]")
    c("head = (wg&7)*4 + (wg>>6), qblk = (wg>>3)&7")
    e("s_and_b32 s3, s2, 7")
    e(f"s_lshr_b32 s{sHead}, s2, 6")
    e(f"s_lshl2_add_u32 s{sHead}, s3, s{sHead}")
    e(f"s_mov_b32 s{sMode}, 0")
    e(f"v_lshlrev_b32 v{vL16}, 4, v{vLane}")
    lab("L_restart")
    e(f"s_movk_i32 s{sTmp2}, 3584")
    e(f"s_mov_b32 s{sR+2}, {HB}")
    e(f"s_mov_b32 s{sR+3}, 0x00020000")
    e(f"s_mul_i32 s3, s{sHead}, s{sR+2}")
    e(f"s_mul_i32 s{sM0R}, s{sWave}, s{sTmp2}")
    e(f"s_add_u32 s{sM0R}, s{sM0R}, {LDS_R}")
    e(f"s_and_b32 s{sQg}, s{sWave}, 3")
    e(f"s_mul_i32 s{sKnext}, s{sQg}, s{sTmp2}")
    c("waves 0..3 (group 1) start with K0, waves 4..7 (group 0) with the Q rows qblk*256 + qg*64")
    e(f"s_and_b32 s{sTmp}, s2, 56")
    e(f"s_mulk_i32 s{sTmp}, 1792")
    e(f"s_add_u32 s{sOoff}, s{sTmp}, s{sKnext}")
    e(f"s_and_b32 s{sRot}, s2, {opt.rotm * 8}")
    e(f"s_mulk_i32 s{sRot}, 1792")
    e(f"s_add_u32 s{sKnext}, s{sKnext}, s{sRot}")
    e(f"s_and_b32 s{sTmp2}, s{sHead}, 15")
    e(f"s_lshl_b32 s{sTmp2}, s{sTmp2}, 1")
    e(f"v_mov_b32 v{vTv}, s{sTmp2}")
    if opt.touch:
        e(f"s_lshr_b32 s{sPre}, s{sTmp}, 3")
        e(f"s_add_u32 s{sPre}, s{sPre}, {CH}")
        e(f"s_lshl_b32 s{sTmp2}, s{sQg}, 2")
        e(f"v_and_or_b32 v{vT0}, v{vLane}, 3, s{sTmp2}")
        e(f"v_min_u32 v{vT0}, 13, v{vT0}")
        e(f"v_lshlrev_b32 v{vT0}, 7, v{vT0}")
    e(f"s_mov_b32 m0, s{sM0R}")
    e(f"s_cmp_lt_u32 s{sWave}, 4")
    e(f"s_cselect_b32 s{sG}, 1, 0")
    e(f"s_cselect_b32 s{sTmp}, s{sKnext}, s{sOoff}")
    e("s_waitcnt lgkmcnt(0)")
    e(f"s_cselect_b32 s{sR}, s6, s4")
    e(f"s_cselect_b32 s{sR+1}, s7, s5")
    e(f"global_load_ushort v{vTv}, v{vTv}, s[10:11]")
    e(f"s_add_u32 s{sR}, s{sR}, s3")
    e(f"s_addc_u32 s{sR+1}, s{sR+1}, 0")
    def touch():
        c("group 1 touches this block's share of K1: an L2 hit for the head's 8 blocks once it is fetched")
        e(f"s_cmp_eq_u32 s{sG}, 0")
        e("s_cbranch_scc1 L_nt")
        e(f"buffer_load_dword v{vFlag}, v{vT0}, s[{sR}:{sR+3}], s{sPre} offen{opt.nt0 if opt.touch & 2 else ''}")
        lab("L_nt")
    if opt.touch: touch()
    for t in rawdma_l(sR, sTmp, fl=opt.nt0)[2:]: e(t)
    lst(1)
    for srd, p in ((sK, 6), (sV, 8), (sO, 12)):
        e(f"s_add_u32 s{srd}, s{p}, s3")
        e(f"s_addc_u32 s{srd+1}, s{p+1}, 0")
        e(f"s_mov_b32 s{srd+2}, s{sR+2}")
        e(f"s_mov_b32 s{srd+3}, 0x00020000")
    c("output rows of this wave: + G*32")
    e(f"s_mul_i32 s{sTmp}, s{sG}, 1792")
    e(f"s_add_u32 s{sOoff}, s{sOoff}, s{sTmp}")
    e(f"s_mov_b32 s{sExV}, 0x7f7f7f7f")
    e(f"s_mov_b32 s{sExV+1}, s{sExV}")
    e(f"s_lshl_b32 s{sM0V}, s{sWave}, 11")
    c("vVoff = (lane>>3)*112 + (lane&7)*16 = lane*16 - (lane>>3)*16")
    e(f"v_lshrrev_b32 v{vT0}, 3, v{vLane}")
    e(f"v_and_b32 v{vT1}, 15, v{vLane}")
    e(f"v_sub_u32 v{vVoff}, v{vLane}, v{vT0}")
    e(f"v_lshrrev_b32 v{vSS}, 4, v{vLane}")
    e(f"v_lshlrev_b32 v{vVoff}, 4, v{vVoff}")
    c("ones pads in the V ring: lane -> slot lane>>4, pair lane&15")
    e(f"v_lshl_add_u32 v{vT1}, v{vSS}, 7, v{vT1}")
    e(f"v_mov_b32 v{vD}, 0x3f80")
    e(f"v_mov_b32 v{vD+1}, 0")
    e(f"v_lshl_add_u32 v{vT1}, v{vT1}, 7, s{sM0V}")
    e(f"ds_write_b64 v{vT1}, {vr(vD,2)} offset:112")
    c("progress flags: one word per wave")
    if opt.dsadd:
        e(f"s_lshl_b32 s{sTmp}, s{sWave}, 8")
        e(f"s_add_u32 s{sTmp}, s{sTmp}, {LDS_F}")
        e(f"v_lshl_add_u32 v{vFw}, v{vLane}, 2, s{sTmp}")
    else:
        e(f"s_lshl_b32 s{sTmp}, s{sWave}, 2")
        e(f"s_add_u32 s{sTmp}, s{sTmp}, {LDS_F}")
        e(f"v_mov_b32 v{vFw}, s{sTmp}")
    e(f"v_mov_b32 v{vCnt}, 0" if not opt.v1wait else f"v_sub_u32 v{vCnt}, 1, s{sG}")
    e(f"v_and_b32 v{vT0}, 3, v{vLane}")
    e(f"v_bfe_u32 v{vSS}, v{vLane}, 2, 2")
    e(f"ds_write_b32 v{vFw}, v{vCnt}")
    c("staging addresses")
    e(f"v_lshl_add_u32 v{vSS}, v{vT0}, 2, v{vSS}")
    e(f"v_mul_u32_u24 v{vNat}, 56, v{vLane}")
    e(f"v_and_or_b32 v{vSS}, v{vLane}, 48, v{vSS}")
    e(f"v_lshlrev_b32 v{vT0}, 4, v{vT0}")
    e(f"v_mul_u32_u24 v{vTr}, 56, v{vSS}")
    e(f"v_mov_b32 v{vMa}, 0xffff")
    e(f"v_mov_b32 v{vMb}, 0")
    e(f"v_add_u32 v{vNat}, s{sM0R}, v{vNat}")
    e(f"v_add_u32 v{vTr}, s{sM0R}, v{vTr}")
    e(f"v_lshlrev_b64 {vr(vMa,2)}, v{vT0}, {vr(vMa,2)}")
    c("frag write address: (lane>>5)*2048 + (lane&31)*16 + qg*4096 + K slot 0 (group 1) / slot 3 (group 0: Q fragments, later K3)")
    e(f"v_lshrrev_b32 v{vR}, 5, v{vLane}")
    e(f"s_lshl_b32 s{sAlt}, s{sQg}, 12")
    e(f"s_cmp_eq_u32 s{sG}, 0")
    e(f"s_cselect_b32 s{sX}, {LDS_Q - LDS_K}, 0")
    e(f"s_add_u32 s{sAlt}, s{sAlt}, {LDS_K}")
    e(f"s_add_u32 s{sX}, s{sX}, s{sAlt}")
    e(f"v_mul_u32_u24 v{vKw}, 1536, v{vR}")
    e(f"v_mov_b32 v{vP+14}, 0x3f803f80")
    e(f"v_add_u32 v{vEx}, v{vKw}, v{vL16}")
    e(f"v_add_u32 v{vKw}, s{sX}, v{vEx}")
    e(f"v_mov_b32 v{vP+15}, v{vP+14}")
    e(f"s_mov_b32 s{sEps}, 0x358637bd")
    e(f"s_mov_b32 s{sMk}, 0x22222222")
    e(f"s_mov_b32 s{sMk+1}, s{sMk}")
    e(f"s_lshl_b64 s[{sMk+2}:{sMk+3}], s[{sMk}:{sMk+1}], 1")
    e(f"s_lshl_b64 s[{sMk+4}:{sMk+5}], s[{sMk}:{sMk+1}], 2")
    c("output row offset in the staging buffer: (lane&31)*56 + h*32 = lane*56 - h*1760")
    e(f"v_mul_u32_u24 v{vT0}, 1760, v{vR}")
    c("Q fragment addresses: local block 1 is this wave's own block G")
    e(f"s_lshl_b32 s{sTmp}, s{sG}, 11")
    e(f"s_add_u32 s{sTmp}, s{sTmp}, s{sAlt}")
    e(f"s_add_u32 s{sTmp}, s{sTmp}, {LDS_Q - LDS_K}")
    e(f"v_sub_u32 v{vOoff}, v{vNat}, v{vT0}")
    e(f"v_add_u32 v{vTq}, s{sTmp}, v{vL16}")
    e(f"v_mov_b64 {vr(vVf+28,2)}, 0")
    e(f"v_xor_b32 v{vNq}, 0x800, v{vTq}")
    e(f"v_mov_b64 {vr(vVf+30,2)}, 0")
    c("V transpose-read address: 512*b5 + 128*b3 + 8*sel(b4,b2,b1,b0); sel = pi + 7*b2 with pi = 2*b4 + b1 + 4*b0, 14 (the pad) if pi == 7")
    tab = 0
    for idx in range(16):
        b0, b1, b2, b4 = idx & 1, (idx >> 1) & 1, (idx >> 2) & 1, (idx >> 3) & 1
        pi = 2*b4 + b1 + 4*b0
        tab |= (14 if pi == 7 else pi + 7*b2) << (4*idx)
    e(f"s_mov_b32 s{sTmp}, {hex(tab & 0xffffffff)}")
    e(f"s_mov_b32 s{sTmp2}, {hex(tab >> 32)}")
    e(f"v_mfma_i32_32x32x32_i8 {vr(vO,16)}, {vr(vVf+28,4)}, {vr(vVf+28,4)}, 0")
    e(f"v_and_b32 v{vFr}, 7, v{vLane}")
    e(f"v_lshlrev_b32 v{vT0}, 1, v{vLane}")
    e(f"v_lshlrev_b32 v{vFr}, 2, v{vFr}")
    e(f"v_and_b32 v{vVr}, 40, v{vLane}")
    e(f"v_and_or_b32 v{vT0}, v{vT0}, 32, v{vFr}")
    e(f"v_lshlrev_b32 v{vVr}, 4, v{vVr}")
    e(f"v_lshrrev_b64 {vr(vB,2)}, v{vT0}, s[{sTmp}:{sTmp2}]")
    e(f"v_mfma_i32_32x32x32_i8 {vr(vO+16,16)}, {vr(vVf+28,4)}, {vr(vVf+28,4)}, 0")
    e(f"s_lshl_b32 s{sTmp2}, s{sG}, 13")
    e(f"v_and_b32 v{vB}, 15, v{vB}")
    if opt.dsadd: e(f"v_mul_u32_u24 v{vFr}, 65, v{vFr}")
    e(f"v_add_u32 v{vFr}, {LDS_F}, v{vFr}")
    e(f"v_lshl_add_u32 v{vVr}, v{vB}, 3, v{vVr}")
    e(f"v_mov_b32 v{vCnt}, 1")
    e(f"v_add_u32 v{vVr}, s{sTmp2}, v{vVr}")
    e(f"s_add_u32 s{sTmp2}, s{sTmp2}, {LDS_K}")
    e(f"v_mov_b32 v{vIdx}, 0xdddddddd")
    e(f"v_add_u32 v{vKr}, s{sTmp2}, v{vL16}")
    e(f"s_mov_b32 s{sIter}, 0")
    e(f"s_movk_i32 s{sX}, 0x4000")
    c("hand-off of K fragments between the blocks of a head: block qblk stores chunk qblk, the blocks of the other half fetch it")
    e(f"s_mov_b32 s{sW+2}, {32*131072 + 256*128}")
    e(f"s_mov_b32 s{sW+3}, 0x00020000")
    e(f"s_bfe_u32 s{sTmp}, s2, 0x30003")
    e(f"s_lshl3_add_u32 s{sTmp2}, s{sHead}, s{sTmp}")
    e(f"s_lshl2_add_u32 s{sExp}, s{sTmp2}, s{sQg}")
    e(f"s_lshl_b32 s{sExp}, s{sExp}, 12")
    e(f"v_mov_b32 v{vT0}, s{sTmp2}")
    e(f"s_lshr_b32 s{sTmp2}, s{sTmp2}, 2")
    e(f"s_xor_b32 s{sTmp2}, s{sTmp2}, 1")
    e(f"s_lshl_b32 s{sImp}, s{sTmp2}, 16")
    e(f"s_add_u32 s{sImp}, s{sImp}, s{sM0V}")
    c("hand-off words, one 128-byte line per block: lanes 0..3 -> the other half's blocks, lane 4 -> this block")
    e(f"s_lshl_b32 s{sTmp2}, s{sTmp2}, 2")
    e(f"v_cmp_gt_u32 vcc, 4, v{vLane}")
    e(f"v_add_u32 v{vPa}, s{sTmp2}, v{vLane}")
    e(f"s_mov_b32 s{sFl}, {32*131072}")
    e(f"v_cndmask_b32 v{vPa}, v{vT0}, v{vPa}, vcc")
    e(f"v_lshlrev_b32 v{vPa}, 7, v{vPa}")
    e(f"s_and_b32 s{sTmp}, s{sTmp}, 3")
    e(f"s_sub_u32 s{sJm1}, s{sTmp}, 1")
    e(f"s_cmp_eq_u32 s{sWave}, 0")
    e(f"s_cselect_b32 s{sSig}, s{sTmp}, 64")
    def kread(tile, buf):
        o = tile * 2048
        return [f"ds_read_b128 {vr(vKf+8*buf,4)}, v{vKr} offset:{o}",
                f"ds_read_b128 {vr(vKf+8*buf+4,4)}, v{vKr} offset:{o+1024}"]
    def vread(tile, buf):
        o = tile * 2048
        return [f"ds_read_b64_tr_b16 {vr(vVf+8*buf+4*s+2*u,2)}, v{vVr} offset:{o+s*1024+u*256}" for s in range(2) for u in range(2)]
    def m1(T):
        return f"v_mfma_f32_32x32x16_bf16 {vr(vS+16*(T%4),16)}, {vr(vKf+8*((T//2)%2),4)}, {vr(vQ+4*(T%2),4)}, 0"
    def m2(T):
        return f"v_mfma_f32_32x32x16_bf16 {vr(vS+16*(T%4),16)}, {vr(vKf+8*((T//2)%2)+4,4)}, {vr(vQ+8+4*(T%2),4)}, {vr(vS+16*(T%4),16)}"
    def sm(T, s):
        return f"v_smfmac_f32_32x32x32_bf16 {vr(vO+16*(T%2),16)}, {vr(vVf+8*((T//2)%4)+4*s,4)}, {vr(vS+16*(T%4)+8*s,8)}, v{vIdx}"
    def ex(T, j):
        r = vS + 16*(T%4) + j
        return f"v_exp_f32 v{r}, v{r}"

    def vtwo(chunk):
        for half in range(2):
            e(f"s_lshl_b32 s{sTmp}, s{sQg}, 11")
            e(f"s_mul_i32 s{sTmp2}, s{sQg}, 1792")
            e(f"s_add_u32 s{sTmp2}, s{sTmp2}, s{sRot}")
            if chunk or half:
                e(f"s_add_u32 s{sTmp}, s{sTmp}, {chunk*16384 + half*8192}")
                e(f"s_add_u32 s{sTmp2}, s{sTmp2}, {chunk*CH + half*7168}")
            if chunk:
                for t in wrap_l(sTmp2): e(t)
            for t in vdma_l(m0=sTmp, off=sTmp2, adv=False, fl=opt.nt0): e(t)
    def tproc(q):
        e(f"v_lshlrev_b32 v{vTv}, 16, v{vTv}")
        if q:
            c("c = t*log2e")
            e(f"v_mul_f32 v{vT0}, 0x3fb8aa3b, v{vTv}")
        else: e("s_nop 0")
        e(f"v_readfirstlane_b32 s{sAbsT}, v{vTv}")
        if q:
            e(f"v_readfirstlane_b32 s{sScale}, v{vT0}")
            e(f"v_mov_b32 v{vP+15}, 0")
        else: e("s_nop 1")
        c("the shift |t|*log2e bounds every logit; it is used only while it cannot underflow a row (|t| <= 16)")
        e(f"s_and_b32 s{sAbsT}, s{sAbsT}, 0x7fffffff")
        if q:
            e(f"s_or_b32 s{sTmp2}, s{sScale}, 0x80000000")
            e(f"s_lshr_b32 s{sTmp2}, s{sTmp2}, 16")
        e(f"s_cmp_gt_u32 s{sAbsT}, {'0x41800000' if not opt.force_fallback else '0'}")
        if q: e(f"s_cselect_b32 s{sTmp2}, 0, s{sTmp2}")
        e(f"s_cselect_b32 s{sAbsT}, 1, 0")
        if q: e(f"v_mov_b32 v{vP+14}, s{sTmp2}")
    def qreads():
        e(f"ds_read_b128 {vr(vQ,4)}, v{vNq}")
        e(f"ds_read_b128 {vr(vQ+8,4)}, v{vNq} offset:1024")
        e(f"ds_read_b128 {vr(vQ+4,4)}, v{vTq}")
        e(f"ds_read_b128 {vr(vQ+12,4)}, v{vTq} offset:1024")
    def x3():
        for t in rawnext_l(fl=opt.nt0): e(t)
    v0 = vread(0, 0); v1 = vread(1, 1); k0 = kread(0, 0); k1 = kread(1, 1)
    e(f"s_mul_i32 s{sVoffs}, s{sWave}, 1792")
    e(f"s_add_u32 s{sM0V}, s{sM0V}, 0x8000")
    e(f"s_add_u32 s{sVoffs}, s{sVoffs}, {2*CH}")
    e(f"s_add_u32 s{sVoffs}, s{sVoffs}, s{sRot}")
    for t in wrap_l(sVoffs): e(t)
    def initread():
        c("what the hand-off words hold on entry: a block signals by changing its word")
        e("s_mov_b64 exec, 31")
        e(f"buffer_load_dword v{vInit}, v{vPa}, s[{sW}:{sW+3}], s{sFl} offen{opt.hp}")
        e("s_mov_b64 exec, -1")
    e(f"s_cmp_eq_u32 s{sG}, 0")
    e("s_cbranch_scc1 L_st4")
    c("group 1: K1 rows into this wave's part of the still unused K slot 2; K0, K1; V1 and K2 rows")
    e(f"s_add_u32 s{sAlt}, s{sAlt}, 32768")
    e(f"s_add_u32 s{sTmp}, s{sKnext}, {CH}")
    for t in wrap_l(sTmp): e(t)
    for t in rawdma_l(sK, sTmp, sAlt, fl=opt.nt0): e(t)
    lst(5)
    e(f"s_add_u32 s{sKnext}, s{sKnext}, {2*CH}")
    for t in wrap_l(sKnext): e(t)
    e(f"s_sub_u32 s{sAlt}, s{sM0R}, s{sAlt}")
    e(f"s_mov_b32 s{sScale}, 1.0")
    if opt.dry:
        c("run the normalisation once on whatever is staged: brings its code into the instruction cache")
        e(f"s_call_b64 s[{sRet}:{sRet+1}], L_prep")
        e(f"v_xor_b32 v{vKw}, 0x8000, v{vKw}")
    e(f"s_waitcnt vmcnt(4)")
    lst(3)
    e(f"s_call_b64 s[{sRet}:{sRet+1}], L_prep")
    e(f"v_xor_b32 v{vKw}, 0xc000, v{vKw}")
    e(f"v_subrev_u32 v{vNat}, s{sAlt}, v{vNat}")
    e(f"v_subrev_u32 v{vTr}, s{sAlt}, v{vTr}")
    tproc(False)
    e("s_waitcnt lgkmcnt(0)")
    lst(4)
    e("s_barrier")
    for t in k0 + k1: e(t)
    e(f"s_setprio {opt.g1prio}")
    e(f"s_cmp_eq_u32 s{sJm1}, -1")
    e("s_cbranch_scc0 L_st2")
    e(f"s_call_b64 s[{sRet}:{sRet+1}], L_exp")
    e("s_waitcnt vmcnt(4)")
    e("s_branch L_st3")
    lab("L_st2")
    e("s_waitcnt vmcnt(0)")
    lab("L_st3")
    lst(0)
    e(f"s_call_b64 s[{sRet}:{sRet+1}], L_prep")
    e(f"v_xor_b32 v{vKw}, 0x4000, v{vKw}")
    e(f"v_add_u32 v{vNat}, s{sAlt}, v{vNat}")
    e(f"v_add_u32 v{vTr}, s{sAlt}, v{vTr}")
    x3()
    initread()
    e("s_waitcnt vmcnt(5) lgkmcnt(0)")
    lst(6); e("s_barrier"); lst(2)
    qreads()
    e(f"ds_write_b32 v{vFw}, v{vCnt}")
    e(f"s_cmp_eq_u32 s{sJm1}, 0")
    e("s_cbranch_scc0 L_st7")
    e(f"s_call_b64 s[{sRet}:{sRet+1}], L_exp")
    lab("L_st7")
    e("s_waitcnt lgkmcnt(1)")
    lab("L_fill")
    e(m1(0)); e(m2(0))
    e("s_nop 1")
    e("s_branch L_st5")
    lab("L_st4")
    c("group 0: V0; Q rows -> fragments for this wave and its partner")
    vtwo(0)
    if opt.v1pos == 0: vtwo(1)
    n1 = 4 if opt.v1pos == 0 else 0
    lst(5)
    e(f"s_add_u32 s{sKnext}, s{sKnext}, {3*CH}")
    for t in wrap_l(sKnext): e(t)
    e(f"s_waitcnt vmcnt({8 + n1})")
    tproc(True)
    e("s_waitcnt lgkmcnt(0)")
    lst(3); lst(4)
    e("s_barrier")
    for t in k0 + k1: e(t)
    e(f"s_setprio {opt.p_start}")
    e(f"s_waitcnt vmcnt({4 + n1})")
    lst(0)
    e(f"s_call_b64 s[{sRet}:{sRet+1}], L_prep")
    qreads()
    e(f"v_xor_b32 v{vKw}, 0x8000, v{vKw}")
    e(f"s_mov_b32 s{sScale}, 1.0")
    e("s_waitcnt lgkmcnt(2)")
    e(m1(0)); e(m2(0))
    e(f"v_mov_b32 v{vP+14}, 0x3f803f80")
    e(f"v_mov_b32 v{vP+15}, 0x3f803f80")
    x3()
    initread()
    e(f"s_waitcnt vmcnt(5) lgkmcnt(0)")
    lst(6)
    e("s_barrier")
    lst(2)
    lab("L_st5")
    e(f"s_cmp_lg_u32 s{sAbsT}, 0")
    e("s_cbranch_scc1 L_special")
    lst(7)
    for t in v0: e(t)
    e(f"s_setprio {opt.pf0}")
    e(f"s_cmp_eq_u32 s{sG}, 0")
    e("s_cbranch_scc1 L_pf")
    e(f"s_setprio {opt.pf1}")
    lab("L_pf")
    wst(); lst(8)
    c("first tile: also computes the scores of tile 1")
    k2 = kread(2, 0); v2 = vread(2, 2); vd = vdma_l()
    ei = 0; nl = 0
    for ch in opt.pat0:
        if ch == 'e': e(ex(0, ei)); ei += 1
        elif ch == 'E': e(m1(1))
        elif ch == 'G': e(m2(1))
        elif ch == 'B': e(m1(2))
        elif ch == 'C': e(m2(2))
        elif ch == 'D': e(sm(0, 0))
        elif ch == 'a': e(v1.pop(0)); nl += 1
        elif ch == 'k': assert not v1; e(k2.pop(0)); nl += 1
        elif ch == 'v': assert not k2; e(v2.pop(0)); nl += 1
        elif ch == 'w': e(f"s_waitcnt lgkmcnt({nl})")
        elif ch == 'V':
            for t in vd[0:3] + ["s_mov_b64 exec, -1"]: e(t)
        elif ch == 'U':
            for t in [vd[3], vd[1], vd[5], vd[6], vd[4]] + vd[7:]: e(t)
    assert ei == 16 and len(v2) == 2
    e(f"s_cmp_eq_u32 s{sG}, 0")
    e("s_cbranch_scc1 L_B1")
    e("s_branch L_A1")

    lab("L_prep")
    for m in range(7): e(f"ds_read_b64 {vr(vP+2*m,2)}, v{vNat} offset:{8*m}")
    for s in tr_reads: e(s)
    for m in range(7):
        e(f"s_waitcnt lgkmcnt({13 - m})")
        if m > 0: e("s_nop 0")
        e(grams[m])
    e("s_nop 4")
    for t in sels: e(t)
    e(norm[0]); e("s_nop 0"); e(norm[1]); e(norm[2]); e("s_nop 0")
    e(f"v_mul_f32 v{vR}, s{sScale}, v{vR}")
    for s in norm[3:]: e(s)
    e("s_waitcnt lgkmcnt(0)")
    e("s_nop 0")
    for s in smalls: e(s)
    for i in range(14):
        e(cvts[i])
        if i % 4 == 3: e(writes[i // 4])
    e(writes[3])
    e(f"v_xor_b32 v{vKw}, 0x8000, v{vKw}")
    e(f"s_setpc_b64 s[{sRet}:{sRet+1}]")
    lab("L_exp")
    for i in range(4):
        e(f"buffer_store_dwordx4 {vr(vP+4*i,4)}, v{vEx}, s[{sW}:{sW+3}], s{sExp} offen offset:{512*i}{opt.hs}")
    e(f"s_setpc_b64 s[{sRet}:{sRet+1}]")

    nskip = [0]
    fcmp = f"v_cmp_ge_u32 vcc, s{sIter}, v{vFlag}" if opt.dsadd else f"v_cmp_lt_u32 vcc, v{vFlag}, v{vCnt}"
    def build_half(name, pats):
        ops = []
        q = dict(n=list(nat_reads), t=list(tr_reads), g=list(grams), x=list(sels), s=list(norm), m=list(smalls), c=list(cvts), W=list(writes))
        cnt = dict(n=0, t=0, g=0, x=0, s=0, m=0, c=0, W=0, X=0)
        def add(t, lid=None, needs=()): ops.append((t, lid, list(needs)))
        for T in range(8):
            j = T // 2
            if T == 1: add(f"L_{name}1:")
            if opt.ws and T in opt.stampT:
                for s in wst_l(): add(s)
            if T % 2 == 0:
                rd_k = kread((j + 2) % 4, j % 2); rd_v = vread((j + 2) % 4, (j + 2) % 4)
                ki = vi = 0
            ei = 0
            for ch in pats[T]:
                if ch == 'e': add(ex(T, ei)); ei += 1
                elif ch == 'A':
                    add(sm(T - 1, 1), needs=[('v', ((T-1)//2), 2), ('v', ((T-1)//2), 3)])
                elif ch == 'B': add(m1(T + 2), needs=[('k', j + 1, 0)])
                elif ch == 'C': add(m2(T + 2), needs=[('k', j + 1, 1)])
                elif ch == 'D': add(sm(T, 0), needs=[('v', j, 0), ('v', j, 1)])
                elif ch == 'k': add(rd_k[ki], lid=('k', j + 2, ki)); ki += 1
                elif ch == 'v': add(rd_v[vi], lid=('v', j + 2, vi)); vi += 1
                elif ch == 'w': add("WAIT")
                elif ch == 'n': add(q['n'][cnt['n']], lid=('n', 0, cnt['n'])); cnt['n'] += 1
                elif ch == 't': add(q['t'][cnt['t']], lid=('t', 0, cnt['t'])); cnt['t'] += 1
                elif ch in '0123':
                    if opt.prio: add(f"s_setprio {opt.pmap[int(ch)]}")
                elif ch == 'g': add(q['g'][cnt['g']], needs=[('n', 0, cnt['g'] // 2)]); cnt['g'] += 1
                elif ch == 'x': assert cnt['g'] == 7; add(q['x'][cnt['x']]); cnt['x'] += 1
                elif ch == 's': assert cnt['x'] == 3; add(q['s'][cnt['s']]); cnt['s'] += 1
                elif ch == 'm': assert cnt['s'] == 6; add(q['m'][cnt['m']], needs=[('t', 0, cnt['m'])]); cnt['m'] += 1
                elif ch == 'c': assert cnt['m'] > cnt['c'] // 2; add(q['c'][cnt['c']]); cnt['c'] += 1
                elif ch == 'W':
                    assert cnt['c'] >= min(14, 4*cnt['W'] + 4)
                    add(q['W'][cnt['W']], lid=('W', 0, cnt['W'])); cnt['W'] += 1
                    if cnt['W'] == 4: pending_xor = True
                elif ch == 'X':
                    l = rawnext_l()
                    parts = [l[0:3], l[3:4], l[4:5], l[5:]]
                    for t in parts[cnt['X']]: add(t)
                    cnt['X'] += 1
                elif ch == 'Y': add("s_waitcnt vmcnt(2)")
                elif ch == 'z': add(f"s_cmp_ge_u32 s{sIter}, 5")
                elif ch == '[':
                    nskip[0] += 1; add(f"s_cbranch_scc1 L_skip{nskip[0]}")
                elif ch == ']': add(f"L_skip{nskip[0]}:")
                elif ch == 'V':
                    add(f"s_mov_b32 m0, s{sM0V}")
                    add(f"s_mov_b64 exec, s[{sExV}:{sExV+1}]")
                    add(f"buffer_load_dwordx4 v{vVoff}, s[{sV}:{sV+3}], s{sVoffs} offen{opt.ntl} lds")
                    add(f"s_mov_b64 exec, -1")
                elif ch == 'U':
                    add(f"s_add_u32 m0, s{sM0V}, 128")
                    add(f"s_mov_b64 exec, s[{sExV}:{sExV+1}]")
                    add(f"buffer_load_dwordx4 v{vVoff}, s[{sV}:{sV+3}], s{sVoffs} offen offset:896{opt.ntl} lds")
                    add(f"s_mov_b64 exec, -1")
                elif ch == 'p':
                    if opt.v1wait: continue
                    add("s_waitcnt vmcnt(6)")
                    add(f"ds_write_b32 v{vFw}, v{vCnt}", lid=('p', 0, 0))
                elif ch == 'q': add(f"s_cmp_eq_u32 s{sIter}, 7")
                elif ch == 'T': add("s_cbranch_scc1 L_tail")
                elif ch == 'y': add("s_waitcnt vmcnt(0)")
                elif ch == 'f': add(f"ds_read_b32 v{vFlag}, v{vFr}", lid=('f', 0, 0))
                elif ch == 'F':
                    add(fcmp, needs=[('f', 0, 0)])
                    if opt.add64:
                        add(f"v_lshl_add_u64 {vr(vKr,2)}, {vr(vKr,2)}, 0, s[{sD}:{sD+1}]")
                    else:
                        add(f"v_xor_b32 v{vKr}, s{sX}, v{vKr}")
                        add(f"v_xor_b32 v{vVr}, s{sX}, v{vVr}")
                    add(f"s_cbranch_vccnz L_spin{name}")
                    add(f"L_back{name}:")
                    if not opt.dsadd: add(f"v_add_u32 v{vCnt}, 1, v{vCnt}")
                    if not opt.add64: add(f"s_xor_b32 s{sX}, s{sX}, 0x8000")
                elif ch == 'u':
                    uu = [f"s_sub_u32 s{sTmp}, s{sIter}, 2", f"s_cmp_ge_u32 s{sTmp}, 4"]
                    add(uu[cnt.setdefault('u', 0)]); cnt['u'] += 1
                elif ch == 'I':
                    add("s_waitcnt vmcnt(2)")
                    add(f"v_cmp_ne_u32 vcc, v{vPoll}, v{vInit}")
                    add(f"s_and_b32 s{sTmp2}, s{sImp}, 0xffff")
                    add(f"s_or_b32 m0, s{sTmp2}, {LDS_K}")
                    add(f"s_bitcmp1_b32 vcc_lo, s{sTmp}" if not opt.never else "s_cmp_eq_u32 0, 1")
                    add("s_cbranch_scc0 L_own")
                    add(f"buffer_load_dwordx4 v{vL16}, s[{sW}:{sW+3}], s{sImp} offen{opt.hs} lds")
                    add(f"buffer_load_dwordx4 v{vL16}, s[{sW}:{sW+3}], s{sImp} offen offset:1024{opt.hs} lds")
                    add("L_ownret:")
                    add(f"s_add_u32 s{sImp}, s{sImp}, 0x4000")
                elif ch == 'L':
                    add("s_mov_b64 exec, 15")
                    add(f"buffer_load_dword v{vPoll}, v{vPa}, s[{sW}:{sW+3}], s{sFl} offen{opt.hp}")
                elif ch == 'S':
                    add(f"s_cmp_eq_u32 s{sIter}, s{sSig}"); add(f"s_cbranch_scc1 L_sig{name}"); add(f"L_sigret{name}:")
                elif ch == 'E':
                    add(f"s_cmp_eq_u32 s{sIter}, s{sJm1}"); add("s_cbranch_scc0 L_noexp")
                    add(f"s_call_b64 s[{sRet}:{sRet+1}], L_exp"); add("L_noexp:")
                elif ch == 'i':
                    it = [f"s_add_u32 s{sIter}, s{sIter}, 1"]
                    add(it[cnt.setdefault('i', 0)]); cnt['i'] += 1
                elif ch == 'a':
                    adv = [f"s_add_u32 s{sM0V}, s{sM0V}, 0x4000", f"s_and_b32 s{sM0V}, s{sM0V}, 0xffff",
                           f"s_add_u32 s{sVoffs}, s{sVoffs}, {CH}"] + wrap_l(sVoffs)
                    add(adv[cnt.setdefault('a', 0)]); cnt['a'] += 1
                elif ch == 'P':
                    add(f"ds_add_u32 v{vFw}, v{vCnt}" if opt.dsadd else f"ds_write_b32 v{vFw}, v{vCnt}", lid=('P', 0, 0))
                    if name == 'A':
                        assert cnt['W'] == 4
                        add(f"v_xor_b32 v{vKw}, 0x8000, v{vKw}")
                else: raise ValueError(ch)
            assert ei == 16, (name, T, ei)
            if T % 2 == 1: assert ki == 2 and vi == 4
        if name == 'A':
            assert cnt == dict(n=4, t=7, g=7, x=3, s=6, m=7, c=14, W=4, X=0, a=5, i=1), cnt
        return ops

    halves = {'A': build_half('A', opt.patA), 'B': build_half('B', opt.patB)}
    def shift(ops):
        out = []
        for t, lid, needs in ops:
            if lid is not None:
                lid = (lid[0], lid[1] - 4, lid[2]) if lid[0] in 'kv' else (lid[0], -1, lid[2])
            out.append((t, lid, []))
        return out
    def resolve(name):
        ops = halves[name]
        res = {}
        for pred in 'AB':
            seq = shift(halves[pred]) + ops
            base = len(seq) - len(ops)
            pos = {lid: i for i, (t, lid, n) in enumerate(seq) if lid is not None}
            waits = [i for i in range(base, len(seq)) if seq[i][0] == "WAIT"]
            covered = -1
            covered = pos[('k', 0, 1)]
            for i in range(base, len(seq)):
                t, lid, needs = seq[i]
                if t == "WAIT":
                    nxt = min([w for w in waits if w > i] + [len(seq)])
                    need = [pos[x] for k in range(i, nxt) for x in seq[k][2] if x in pos]
                    tgt = max(need + [covered])
                    assert tgt < i, ("wait placed before its load", name, seq[tgt][0])
                    n = sum(1 for k in range(tgt + 1, i) if seq[k][1] is not None)
                    res[i - base] = min(res.get(i - base, 15), n)
                    covered = tgt
                for x in needs:
                    if x in pos: assert pos[x] <= covered, ("uncovered", name, t, x)
                    else: assert x[0] == 'v' and x[1] < -2 or x[1] <= -2, x
        out = [(f"s_waitcnt lgkmcnt({res[i]})" if t == "WAIT" else t) for i, (t, lid, n) in enumerate(ops)]
        return [t for t in out if not any(re.search(d, t) for d in opt.drop)]

    L.append(".p2align 3")
    lab("L_A")
    for t in resolve('A'):
        (L.append(t) if t.endswith(":") else e(t))
    lab("L_B")
    for t in resolve('B'):
        (L.append(t) if t.endswith(":") else e(t))
    e(f"s_cmp_lg_u32 s{sIter}, 1")
    e("s_cbranch_scc1 L_B")
    e("s_branch L_A")
    lab("L_tail")
    c("last two tiles; local block 0 goes to the partner wave, local block 1 is finished here")
    e(f"s_lshl_b32 s{sTmp}, s{sWave}, 12")
    e(f"s_add_u32 s{sTmp}, s{sTmp}, {LDS_K}")
    e(f"v_add_u32 v{vT0}, s{sTmp}, v{vL16}")
    e(f"v_xor_b32 v{vT1}, 0x4000, v{vT0}")
    if opt.st_lin:
        e(f"v_add_u32 v{vSS}, s{sM0R}, v{vL16}")
    no = nr = 0
    tv = vread(3, 3)[2:]
    vF = vO + 16
    for T, Tp, Tn, pat in opt.patT:
        ei = 0
        for ch in pat:
            if ch == 'e': e(ex(T, ei)); ei += 1
            elif ch == 'A': e(sm(Tp, 1))
            elif ch == 'B': e(m1(Tn))
            elif ch == 'C': e(m2(Tn))
            elif ch == 'D': assert ei >= 10; e(sm(T, 0))
            elif ch == 'w': e("s_waitcnt lgkmcnt(0)")
            elif ch == 'y': e("s_waitcnt vmcnt(0)")
            elif ch == 'n': e("s_nop 0")
            elif ch == 'K': e("s_waitcnt lgkmcnt(2)")
            elif ch == 'v': e(tv.pop(0))
            elif ch == 'b': e("s_barrier")
            elif ch in '0123':
                if opt.prio: e(f"s_setprio {opt.pmap[int(ch)]}")
            elif ch == 'O':
                e(f"ds_write_b128 v{vT0}, {vr(vO+4*no,4)} offset:{1024*no}"); no += 1
            elif ch == 'R':
                e(f"ds_read_b128 {vr(vD+4*nr,4)}, v{vT1} offset:{1024*nr}"); nr += 1
            elif ch == 'a':
                for j in range(0, 16, 2):
                    e(f"v_pk_add_f32 {vr(vF+j,2)}, {vr(vF+j,2)}, {vr(vD+j,2)}")
            else: raise ValueError(ch)
        assert ei == 16
    assert no == 4 and nr == 4
    e("s_nop 1")
    e(sm(7, 1))
    wst()
    e("s_nop 11")
    e(f"v_mov_b32 v{vT0}, v{vF+12}")
    e(f"v_mov_b32 v{vT1}, v{vF+12}")
    e("s_nop 1")
    e(f"v_permlane32_swap_b32 v{vT0}, v{vT1}")
    e(f"v_rcp_f32 v{vB}, v{vT1}")
    e("s_nop 0")
    if True:
        c("rows -> own staging buffer -> whole lines")
        for j in range(4):
            e(f"v_pk_mul_f32 {vr(vF+4*j,2)}, {vr(vF+4*j,2)}, {vr(vB,2)} op_sel_hi:[1,0]")
            e(f"v_pk_mul_f32 {vr(vF+4*j+2,2)}, {vr(vF+4*j+2,2)}, {vr(vB,2)} op_sel_hi:[1,0]")
            e(f"v_cvt_pk_bf16_f32 v{vP+2*j}, v{vF+4*j}, v{vF+4*j+1}")
            e(f"v_cvt_pk_bf16_f32 v{vP+2*j+1}, v{vF+4*j+2}, v{vF+4*j+3}")
            if j == 3: e("s_mov_b32 exec_hi, 0")
            e(f"ds_write_b64 v{vOoff}, {vr(vP+2*j,2)} offset:{8*j}")
        e("s_mov_b32 exec_hi, -1")
        e(f"ds_read_b128 {vr(vD,4)}, v{vSS}")
        e(f"ds_read_b128 {vr(vD+4,4)}, v{vSS} offset:1024")
        e("s_waitcnt lgkmcnt(1)")
        e(f"buffer_store_dwordx4 {vr(vD,4)}, v{vL16}, s[{sO}:{sO+3}], s{sOoff} offen{opt.st_flags}")
        e("s_mov_b32 exec_hi, 0xffff")
        e("s_waitcnt lgkmcnt(0)")
        e(f"buffer_store_dwordx4 {vr(vD+4,4)}, v{vL16}, s[{sO}:{sO+3}], s{sOoff} offen offset:1024{opt.st_flags}")
    if opt.ws:
        e("s_mov_b64 exec, -1")
        if opt.lazy:
            lst(9)
            e("s_waitcnt lgkmcnt(0)")
            for k in range(10):
                e(f"s_sub_u32 s74, s{80+2*k}, s72")
                e(f"v_writelane_b32 v{vSt}, s74, {k}")
            e(f"v_writelane_b32 v{vSt}, s71, 10")
            e("s_mov_b32 s70, 11")
        wst()
        e("s_waitcnt vmcnt(0)")
        wst()
        e("s_memrealtime s[78:79]")
        e("s_load_dwordx2 s[80:81], s[0:1], 48")
        e("s_waitcnt lgkmcnt(0)")
        e("s_mov_b32 s82, 0x1000000"); e("s_mov_b32 s83, 0x00020000")
        e(f"v_writelane_b32 v{vSt}, s70, 31")
        e(f"v_writelane_b32 v{vSt}, s76, 30")
        e(f"v_writelane_b32 v{vSt}, s78, 29")
        e(f"s_lshl_b32 s3, s2, 3"); e(f"s_add_u32 s3, s3, s{sWave}"); e("s_lshl_b32 s3, s3, 7"); e("s_add_u32 s3, s3, 0x800000")
        e(f"v_lshlrev_b32 v1, 2, v{vLane}")
        e("s_mov_b32 exec_hi, 0")
        e(f"buffer_store_dword v{vSt}, v1, s[80:83], s3 offen")
    if opt.padto:
        e("s_waitcnt vmcnt(0)")
        lab("L_pspin")
        e("s_memrealtime s[78:79]")
        e("s_waitcnt lgkmcnt(0)")
        e("s_sub_u32 s84, s78, s76")
        e(f"s_cmp_lt_u32 s84, {opt.padto}")
        e("s_cbranch_scc1 L_pspin")
    lab("L_end")
    e("s_endpgm")

    for name in 'AB':
        lab(f"L_spin{name}")
        c("some wave has not yet published the next chunk: wait for it")
        if opt.ws:
            e(f"s_lshl_b32 s{sTmp}, s{sIter}, 2")
            e(f"s_lshl_b32 s{sTmp}, 1, s{sTmp}")
            e(f"s_add_u32 s71, s71, s{sTmp}")
        e(f"s_sleep {opt.sleep}")
        e(f"ds_read_b32 v{vFlag}, v{vFr}")
        e("s_waitcnt lgkmcnt(0)")
        e(fcmp)
        e(f"s_cbranch_vccnz L_spin{name}")
        e(f"s_branch L_back{name}")

    for name in 'AB':
        lab(f"L_sig{name}")
        c("every wave of this block has seen its fragment stores complete: tell the other blocks")
        e(f"v_add_u32 v{vT1}, 1, v{vInit}")
        e("s_mov_b64 exec, 16")
        e(f"buffer_store_dword v{vT1}, v{vPa}, s[{sW}:{sW+3}], s{sFl} offen{opt.hp}")
        e("s_mov_b64 exec, -1")
        e(f"s_branch L_sigret{name}")
    lab("L_own")
    c("the other block's fragments are not there yet: normalise these 64 rows here")
    e(f"s_bfe_u32 s{sTmp}, s{sImp}, 0x5000c")
    e(f"s_mulk_i32 s{sTmp}, 3584")
    e(f"s_and_b32 s{sTmp2}, s{sImp}, 0xf000")
    e(f"s_or_b32 s{sTmp2}, s{sTmp2}, {LDS_K}")
    e(f"v_add_u32 v{vKw}, s{sTmp2}, v{vEx}")
    for t in rawdma_l(sK, sTmp): e(t)
    e("s_waitcnt vmcnt(0)")
    e(f"s_call_b64 s[{sRet}:{sRet+1}], L_prep")
    e("s_branch L_ownret")

    lab("L_special")
    e(f"s_cmp_eq_u32 s{sMode}, 0")
    e("s_cbranch_scc1 L_maxpass")
    c("second pass: put -max into the pad slots of the Q fragments (lanes 32..63)")
    e("s_mov_b32 exec_lo, 0")
    e(f"v_mov_b32 v{vQ+10}, v{vPad}")
    e(f"v_mov_b32 v{vQ+11}, v{vPad+1}")
    e(f"v_mov_b32 v{vQ+14}, v{vPad+2}")
    e(f"v_mov_b32 v{vQ+15}, v{vPad+3}")
    e("s_mov_b32 exec_lo, -1")
    e(f"s_mov_b32 s{sAbsT}, 0")
    e("s_nop 7")
    e("s_branch L_fill")
    lab("L_maxpass")
    mx = [vPad, vPad + 2]
    e(f"v_mov_b32 v{mx[0]}, 0xff800000")
    e(f"v_mov_b32 v{mx[1]}, 0xff800000")
    lab("L_mloop")
    c("chunk sIter is in LDS; group (sIter & 1) normalises chunk sIter + 1 (chunk 1 is done, K2 and K3 are staged)")
    e(f"s_add_u32 s{sTmp}, s{sIter}, s{sG}")
    e(f"s_bitcmp1_b32 s{sTmp}, 0")
    e("s_cbranch_scc1 L_mnoprep")
    e(f"s_cmp_eq_u32 s{sIter}, 7")
    e("s_cbranch_scc1 L_mnoprep")
    e(f"s_cmp_eq_u32 s{sIter}, 0")
    e("s_cbranch_scc1 L_mnoprep")
    e(f"s_cmp_lt_u32 s{sIter}, 3")
    e("s_cbranch_scc1 L_mhave")
    for t in rawnext_l(): e(t)
    lab("L_mhave")
    e(f"s_waitcnt vmcnt(0) lgkmcnt(0)")
    e(f"s_call_b64 s[{sRet}:{sRet+1}], L_prep")
    lab("L_mnoprep")
    for j in range(4):
        for s in kread(j, 0): e(s)
        e("s_waitcnt lgkmcnt(0)")
        e(m1(0)); e(m2(0)); e(m1(1)); e(m2(1))
        e("s_nop 15")
        for b in range(2):
            for i in range(0, 16, 2):
                e(f"v_max3_f32 v{mx[b]}, v{vS+16*b+i}, v{vS+16*b+i+1}, v{mx[b]}")
    e("s_barrier")
    e(f"v_xor_b32 v{vKr}, s{sX}, v{vKr}")
    e(f"s_xor_b32 s{sX}, s{sX}, 0x8000")
    e(f"s_add_u32 s{sIter}, s{sIter}, 1")
    e(f"s_cmp_lt_u32 s{sIter}, 8")
    e("s_cbranch_scc1 L_mloop")
    c("combine the two lane halves and the partner wave (whose local blocks are swapped)")
    for b in range(2):
        e(f"v_mov_b32 v{vT0}, v{mx[b]}")
        e("s_nop 1")
        e(f"v_permlane32_swap_b32 v{mx[b]}, v{vT0}")
        e("s_nop 1")
        e(f"v_max_f32 v{mx[b]}, v{mx[b]}, v{vT0}")
    e(f"s_lshl_b32 s{sTmp}, s{sWave}, 12")
    e(f"s_add_u32 s{sTmp}, s{sTmp}, {LDS_K}")
    e(f"v_add_u32 v{vT0}, s{sTmp}, v{vL16}")
    e(f"v_xor_b32 v{vT1}, 0x4000, v{vT0}")
    e("s_waitcnt vmcnt(0) lgkmcnt(0)")
    e(f"ds_write_b32 v{vT0}, v{mx[0]}")
    e(f"ds_write_b32 v{vT0}, v{mx[1]} offset:4")
    e("s_waitcnt lgkmcnt(0)")
    e("s_barrier")
    e(f"ds_read_b64 {vr(vD,2)}, v{vT1}")
    e("s_waitcnt lgkmcnt(0)")
    e("s_barrier")
    e(f"s_mov_b32 s{sTmp}, 0xffff0000")
    for b in range(2):
        m = mx[b]
        e(f"v_max_f32 v{m}, v{m}, v{vD+1-b}")
        c("split -max into three bf16 parts")
        e(f"v_sub_f32 v{m}, 0, v{m}")
        e(f"v_and_b32 v{vT0}, s{sTmp}, v{m}")
        e(f"v_sub_f32 v{m}, v{m}, v{vT0}")
        e(f"v_and_b32 v{vT1}, s{sTmp}, v{m}")
        e(f"v_sub_f32 v{m}, v{m}, v{vT1}")
        e(f"v_lshrrev_b32 v{m+1}, 16, v{m}")
        e(f"v_lshrrev_b32 v{vT0}, 16, v{vT0}")
        e(f"v_or_b32 v{m}, v{vT0}, v{vT1}")
    e(f"s_mov_b32 s{sMode}, 1")
    e("s_branch L_restart")

    txt = HEADER + f"; @launch grid=(256,1,1) block=(512,1,1) lds={LDS_TOTAL}\n"
    txt += """.amdgcn_target "amdgcn-amd-amdhsa--gfx950"
.text
.globl standalone__qk_norm__prompt_kernel
.p2align 8
.type standalone__qk_norm__prompt_kernel,@function
standalone__qk_norm__prompt_kernel:
"""
    txt += "\n".join(L) + "\n"
    txt += f""".section .rodata,"a"
.p2align 6
.amdhsa_kernel standalone__qk_norm__prompt_kernel
  .amdhsa_next_free_vgpr {NV}
  .amdhsa_next_free_sgpr {102 if (opt.ws or opt.padto) else 72}
  .amdhsa_accum_offset {(NV+3)//4*4}
  .amdhsa_group_segment_fixed_size 0
  .amdhsa_kernarg_size 56
  .amdhsa_user_sgpr_count 2
  .amdhsa_user_sgpr_kernarg_segment_ptr 1
  .amdhsa_system_sgpr_workgroup_id_x 1
.end_amdhsa_kernel
"""
    return txt

if __name__ == "__main__":
    opt = Opt()
    out = sys.argv[1]
    for a in sys.argv[2:]:
        k, v = a.split("=", 1)
        assert hasattr(opt, k), k
        setattr(opt, k, eval(v))
    open(out, "w").write(gen(opt))
```

```python
import sys, re

HEADER = """; Kernarg layout for this problem (56 bytes, ptrs only, base s[0:1]):
"""

PAT_B = [
 "eeA3wkeeeeBkeeeeCveeeeDvee",
 "eeAveeeeBzveeeeCeeeeD[XXXX]ee",
 "eeA2wkeeeeBkeeeeCqveeeeDvpeeT",
 "eeA1veeeeBveeeeC0feeeeDjjee",
 "eeA3wFkeeeeBkeeeeCveeeeDvee",
 "eeAzveeeeByveeeeC[V]eeeeD[U]ee",
 "eeA2wkeeeeBakeeeeCaveeeeDaivee",
 "eeA1veeeeBveeeeC0eeeeDPee",
]
PAT_A = [
 "eeA3wkeeeeBkeeeeCveeeeDvee",
 "eeAveeeeBveeeeCYnneeeeDnnee",
 "eeA2wkteeegeBkteeegeCvteeegeDvtee",
 "egeA1vteeegeBvteeegeC0fteeegeDjjee",
 "eeA3wFkexexexeBkesesesesCvesseemeDvee",
 "emeAzveecemeByvececemeC[V]ececemeD[U]ecec",
 "emeA2wkececemeBakWececeeCavWeceecceDaivee",
 "eeA1vWeeeeBvWeeeeC0eeeeDPee",
]
PAT_T = [
 (3, 2, 6, "eeA1Kveeee" "BveeeeC0eeeeDee"),
 (4, 3, 5, "eeA3eeeeBeeeeCeeeeDee"),
 (6, 4, 7, "eeA2weeeeBeeeeCeeeeD1ee"),
 (5, 6, 0, "eeAeeee0eeeeDeeeOeOeOeO"),
 (7, 5, 0, "eeAwbReReReReeeeewaeeDeeee"),
]

class Opt:
    ws = False
    patT = PAT_T
    st_flags = ' sc1'
    st_lin = True
    g1prio = 3
    v1pos = 0
    v1wait = 1
    touch = 0
    k1early = 0
    bpos = 0
    lazy = False
    cpf = 1
    padat = -1
    qdelay = 1
    dry = False
    g1early = 0
    nt0 = ''
    add64 = 0
    dsadd = 1
    ntl = ''
    pf0 = 3
    pf1 = 3
    pat0 = 'eeEaaeeeGaaeeeBkVeeeCkUeewDvveee'
    v0pos = 1
    xpos = 2
    pmid = 3
    drop = ()
    padto = 0
    force_fallback = False
    patA = PAT_A
    patB = PAT_B
    prio = True
    pmap = '0123'
    p_start = 2
    sleep = 1
    stampT = (4,)

def gen(opt):
    L = []
    def e(s): L.append("    " + s)
    def lab(s): L.append(s + ":")
    def c(s): L.append("    ; " + s)

    HB = 114688
    CH = 14336
    LDS_V = 0
    LDS_K = 65536
    LDS_Q = LDS_K + 3*16384
    LDS_R = 131072
    LDS_F = LDS_R + 8*3584
    LDS_TOTAL = LDS_F + 2048
    vLane, vL16, vVoff, vKw, vKr, vVr, vIdx, vT0 = 0, 1, 2, 3, 4, 5, 6, 7
    vNat, vTr, vMa, vMb, vOoff, vT1, vSS, vR = 8, 9, 10, 11, 12, 13, 14, 15
    vQ = 16
    vO = 32
    vS = 64
    vKf = 128
    vVf = 144
    vP = 176
    vTt = 192
    vB = 206
    vD = 208
    vPad = 236
    vSt, vTv, vNq = 240, 241, 242
    vTq = 247
    vFw, vFr, vFlag, vCnt = 243, 244, 245, 246
    NV = 248
    sK, sV, sO, sR = 20, 24, 28, 48
    sWave, sHead, sQb, sG, sQg = 32, 33, 34, 35, 36
    sIter, sKnext, sVoffs, sM0V, sM0R = 37, 38, 39, 40, 41
    sT, sScale, sEps, sOoff = 42, 43, 44, 45
    sTmp, sTmp2 = 46, 47
    sExV = 52
    sRet = 54
    sMode, sAbsT = 56, 57
    sPre, sX = 58, 59
    sAlt = 60
    sD = 14
    sMk = 64

    def vr(b, n): return f"v[{b}:{b+n-1}]"

    def wst_l():
        if not opt.ws: return []
        return ["s_memtime s[74:75]", "s_waitcnt lgkmcnt(0)", "s_sub_u32 s74, s74, s72", "s_mov_b32 m0, s70", "s_nop 0",
                f"v_writelane_b32 v{vSt}, s74, m0", "s_add_u32 s70, s70, 1"]
    def wst():
        if opt.lazy: return
        for s in wst_l(): e(s)
    def lst(k):
        if opt.padto and opt.padat == k: e("s_memrealtime s[76:77]")
        if opt.lazy: e(f"s_memtime s[{80+2*k}:{81+2*k}]")

    def rawdma_l(srd, soff, m0=None, fl=None):
        fl = opt.ntl if fl is None else fl
        r = [f"s_mov_b32 m0, s{sM0R if m0 is None else m0}", "s_nop 0"]
        for i in range(3):
            r.append(f"buffer_load_dwordx4 v{vL16}, s[{srd}:{srd+3}], s{soff} offen offset:{1024*i}{fl} lds")
        r.append("s_mov_b32 exec_hi, 0")
        r.append(f"buffer_load_dwordx4 v{vL16}, s[{srd}:{srd+3}], s{soff} offen offset:3072{fl} lds")
        r.append("s_mov_b32 exec_hi, -1")
        return r
    def rawnext_l(fl=None):
        return rawdma_l(sK, sKnext, fl=fl) + [f"s_add_u32 s{sKnext}, s{sKnext}, {2*CH}"]

    def vdma_l(m0=None, off=None, adv=True, fl=None):
        fl = opt.ntl if fl is None else fl
        m0 = sM0V if m0 is None else m0
        off = sVoffs if off is None else off
        r = [f"s_mov_b32 m0, s{m0}",
             f"s_mov_b64 exec, s[{sExV}:{sExV+1}]",
             f"buffer_load_dwordx4 v{vVoff}, s[{sV}:{sV+3}], s{off} offen{fl} lds",
             f"s_add_u32 m0, s{m0}, 128",
             f"s_add_u32 s{sM0V}, s{sM0V}, 0x4000" if adv else "s_nop 0",
             f"buffer_load_dwordx4 v{vVoff}, s[{sV}:{sV+3}], s{off} offen offset:896{fl} lds",
             f"s_mov_b64 exec, -1"]
        if adv:
            r += [f"s_and_b32 s{sM0V}, s{sM0V}, 0xffff", f"s_add_u32 s{sVoffs}, s{sVoffs}, {CH}"]
        return r

    nat_reads = [f"ds_read2_b64 {vr(vP+4*i,4)}, v{vNat} offset0:{2*i} offset1:{2*i+1}" for i in range(3)] + \
                [f"ds_read_b64 {vr(vP+12,2)}, v{vNat} offset:48"]
    tr_reads = [f"ds_read_b64_tr_b16 {vr(vTt+2*m,2)}, v{vTr} offset:{8*m}" for m in range(7)]
    dots = [f"v_dot2_f32_bf16 v{vSS}, v{vP+i}, v{vP+i}, {'0' if i == 0 else 'v%d' % vSS}" for i in range(14)]
    grams = [f"v_mfma_f32_4x4x4_16b_bf16 {vr(vD,4)}, {vr(vP+2*m,2)}, {vr(vP+2*m,2)}, {'0' if m == 0 else vr(vD,4)}" for m in range(7)]
    sels = [f"v_cndmask_b32 v{vSS}, v{vD if i == 0 else vSS}, v{vD+1+i}, s[{sMk+2*i}:{sMk+2*i+1}]" for i in range(3)]
    norm = [f"v_sqrt_f32 v{vSS}, v{vSS}", f"v_add_f32 v{vSS}, s{sEps}, v{vSS}", f"v_rcp_f32 v{vR}, v{vSS}",
            f"v_cvt_pk_bf16_f32 v{vR}, v{vR}, v{vR}", f"v_and_b32 v{vB}, v{vR}, v{vMa}", f"v_and_b32 v{vB+1}, v{vR}, v{vMb}"]
    smalls = [f"v_mfma_f32_4x4x4_16b_bf16 {vr(vD+4*m,4)}, {vr(vTt+2*m,2)}, {vr(vB,2)}, 0" for m in range(7)]
    cvts = [f"v_cvt_pk_bf16_f32 v{vP+i}, v{vD+2*i}, v{vD+2*i+1}" for i in range(14)]
    writes = [f"ds_write_b128 v{vKw}, {vr(vP+4*i,4)} offset:{512*i}" for i in range(4)]

    e("s_load_dwordx4 s[4:7], s[0:1], 0")
    e("s_load_dwordx4 s[8:11], s[0:1], 16")
    e("s_load_dwordx2 s[12:13], s[0:1], 32")
    e("s_cmp_ge_u32 s2, 256")
    e("s_cbranch_scc1 L_end")
    if opt.ws:
        e("s_memtime s[72:73]"); e("s_memrealtime s[76:77]"); e("s_mov_b32 s70, 0"); e("s_mov_b32 s71, 0")
    if opt.padto: e("s_memrealtime s[76:77]")
    e(f"v_lshrrev_b32 v{vT0}, 6, v0")
    e(f"v_and_b32 v{vLane}, 63, v0")
    e(f"v_readfirstlane_b32 s{sWave}, v{vT0}")
    if opt.cpf:
        c("pull the kernel's own code into L2 while the first data is on its way: one line per wave")
        e("s_getpc_b64 s[14:15]")
        lab("L_pc")
        e(f"s_and_b32 s3, s2, 56")
        e(f"v_add_u32 v{vT1}, s3, v{vT0}")
        e(f"v_min_u32 v{vT1}, (L_special - L_pc) / 128, v{vT1}")
        e(f"v_lshlrev_b32 v{vT1}, 7, v{vT1}")
        e(f"global_load_dword v{vPad}, v{vT1}, s[14:15]")
    c("head = (wg&7)*4 + (wg>>6), qblk = (wg>>3)&7")
    e("s_and_b32 s3, s2, 7")
    e(f"s_lshr_b32 s{sHead}, s2, 6")
    e(f"s_lshl2_add_u32 s{sHead}, s3, s{sHead}")
    e(f"s_mov_b32 s{sMode}, 0")
    e(f"v_lshlrev_b32 v{vL16}, 4, v{vLane}")
    lab("L_restart")
    e(f"s_movk_i32 s{sTmp2}, 3584")
    e(f"s_mov_b32 s{sR+2}, {HB}")
    e(f"s_mov_b32 s{sR+3}, 0x00020000")
    e(f"s_mul_i32 s3, s{sHead}, s{sR+2}")
    e(f"s_mul_i32 s{sM0R}, s{sWave}, s{sTmp2}")
    e(f"s_add_u32 s{sM0R}, s{sM0R}, {LDS_R}")
    e(f"s_and_b32 s{sQg}, s{sWave}, 3")
    e(f"s_mul_i32 s{sKnext}, s{sQg}, s{sTmp2}")
    c("waves 0..3 (group 1) start with K0, waves 4..7 (group 0) with the Q rows qblk*256 + qg*64")
    e(f"s_and_b32 s{sTmp}, s2, 56")
    e(f"s_mulk_i32 s{sTmp}, 1792")
    e(f"s_add_u32 s{sOoff}, s{sTmp}, s{sKnext}")
    e(f"s_and_b32 s{sTmp2}, s{sHead}, 15")
    e(f"s_lshl_b32 s{sTmp2}, s{sTmp2}, 1")
    e(f"v_mov_b32 v{vTv}, s{sTmp2}")
    if opt.touch:
        e(f"s_lshr_b32 s{sPre}, s{sTmp}, 3")
        e(f"s_add_u32 s{sPre}, s{sPre}, {CH}")
        e(f"s_lshl_b32 s{sTmp2}, s{sQg}, 2")
        e(f"v_and_or_b32 v{vT0}, v{vLane}, 3, s{sTmp2}")
        e(f"v_min_u32 v{vT0}, 13, v{vT0}")
        e(f"v_lshlrev_b32 v{vT0}, 7, v{vT0}")
    e(f"s_mov_b32 m0, s{sM0R}")
    e(f"s_cmp_lt_u32 s{sWave}, 4")
    e(f"s_cselect_b32 s{sG}, 1, 0")
    e(f"s_cselect_b32 s{sTmp}, s{sKnext}, s{sOoff}")
    e("s_waitcnt lgkmcnt(0)")
    e(f"s_cselect_b32 s{sR}, s6, s4")
    e(f"s_cselect_b32 s{sR+1}, s7, s5")
    e(f"global_load_ushort v{vTv}, v{vTv}, s[10:11]")
    e(f"s_add_u32 s{sR}, s{sR}, s3")
    e(f"s_addc_u32 s{sR+1}, s{sR+1}, 0")
    def touch():
        c("group 1 touches this block's share of K1: an L2 hit for the head's 8 blocks once it is fetched")
        e(f"s_cmp_eq_u32 s{sG}, 0")
        e("s_cbranch_scc1 L_nt")
        e(f"buffer_load_dword v{vFlag}, v{vT0}, s[{sR}:{sR+3}], s{sPre} offen{opt.nt0 if opt.touch & 2 else ''}")
        lab("L_nt")
    if opt.touch: touch()
    for t in rawdma_l(sR, sTmp, fl=opt.nt0)[2:]: e(t)
    lst(1)
    for srd, p in ((sK, 6), (sV, 8), (sO, 12)):
        e(f"s_add_u32 s{srd}, s{p}, s3")
        e(f"s_addc_u32 s{srd+1}, s{p+1}, 0")
        e(f"s_mov_b32 s{srd+2}, s{sR+2}")
        e(f"s_mov_b32 s{srd+3}, 0x00020000")
    c("output rows of this wave: + G*32")
    e(f"s_mul_i32 s{sTmp}, s{sG}, 1792")
    e(f"s_add_u32 s{sOoff}, s{sOoff}, s{sTmp}")
    e(f"s_mov_b32 s{sExV}, 0x7f7f7f7f")
    e(f"s_mov_b32 s{sExV+1}, s{sExV}")
    e(f"s_lshl_b32 s{sM0V}, s{sWave}, 11")
    c("vVoff = (lane>>3)*112 + (lane&7)*16 = lane*16 - (lane>>3)*16")
    e(f"v_lshrrev_b32 v{vT0}, 3, v{vLane}")
    e(f"v_and_b32 v{vT1}, 15, v{vLane}")
    e(f"v_sub_u32 v{vVoff}, v{vLane}, v{vT0}")
    e(f"v_lshrrev_b32 v{vSS}, 4, v{vLane}")
    e(f"v_lshlrev_b32 v{vVoff}, 4, v{vVoff}")
    c("ones pads in the V ring: lane -> slot lane>>4, pair lane&15")
    e(f"v_lshl_add_u32 v{vT1}, v{vSS}, 7, v{vT1}")
    e(f"v_mov_b32 v{vD}, 0x3f80")
    e(f"v_mov_b32 v{vD+1}, 0")
    e(f"v_lshl_add_u32 v{vT1}, v{vT1}, 7, s{sM0V}")
    e(f"ds_write_b64 v{vT1}, {vr(vD,2)} offset:112")
    c("progress flags: one word per wave")
    if opt.dsadd:
        e(f"s_lshl_b32 s{sTmp}, s{sWave}, 8")
        e(f"s_add_u32 s{sTmp}, s{sTmp}, {LDS_F}")
        e(f"v_lshl_add_u32 v{vFw}, v{vLane}, 2, s{sTmp}")
    else:
        e(f"s_lshl_b32 s{sTmp}, s{sWave}, 2")
        e(f"s_add_u32 s{sTmp}, s{sTmp}, {LDS_F}")
        e(f"v_mov_b32 v{vFw}, s{sTmp}")
    e(f"v_mov_b32 v{vCnt}, 0" if not opt.v1wait else f"v_sub_u32 v{vCnt}, 1, s{sG}")
    e(f"v_and_b32 v{vT0}, 3, v{vLane}")
    e(f"v_bfe_u32 v{vSS}, v{vLane}, 2, 2")
    e(f"ds_write_b32 v{vFw}, v{vCnt}")
    c("staging addresses")
    e(f"v_lshl_add_u32 v{vSS}, v{vT0}, 2, v{vSS}")
    e(f"v_mul_u32_u24 v{vNat}, 56, v{vLane}")
    e(f"v_and_or_b32 v{vSS}, v{vLane}, 48, v{vSS}")
    e(f"v_lshlrev_b32 v{vT0}, 4, v{vT0}")
    e(f"v_mul_u32_u24 v{vTr}, 56, v{vSS}")
    e(f"v_mov_b32 v{vMa}, 0xffff")
    e(f"v_mov_b32 v{vMb}, 0")
    e(f"v_add_u32 v{vNat}, s{sM0R}, v{vNat}")
    e(f"v_add_u32 v{vTr}, s{sM0R}, v{vTr}")
    e(f"v_lshlrev_b64 {vr(vMa,2)}, v{vT0}, {vr(vMa,2)}")
    c("frag write address: (lane>>5)*2048 + (lane&31)*16 + qg*4096 + K slot 0 (group 1) / slot 3 (group 0: Q fragments, later K3)")
    e(f"v_lshrrev_b32 v{vR}, 5, v{vLane}")
    e(f"s_lshl_b32 s{sAlt}, s{sQg}, 12")
    e(f"s_cmp_eq_u32 s{sG}, 0")
    e(f"s_cselect_b32 s{sX}, {LDS_Q - LDS_K}, 0")
    e(f"s_add_u32 s{sAlt}, s{sAlt}, {LDS_K}")
    e(f"s_add_u32 s{sX}, s{sX}, s{sAlt}")
    e(f"v_mul_u32_u24 v{vKw}, 1536, v{vR}")
    e(f"v_mov_b32 v{vP+14}, 0x3f803f80")
    e(f"v_add3_u32 v{vKw}, v{vKw}, v{vL16}, s{sX}")
    e(f"v_mov_b32 v{vP+15}, v{vP+14}")
    e(f"s_mov_b32 s{sEps}, 0x358637bd")
    e(f"s_mov_b32 s{sMk}, 0x22222222")
    e(f"s_mov_b32 s{sMk+1}, s{sMk}")
    e(f"s_lshl_b64 s[{sMk+2}:{sMk+3}], s[{sMk}:{sMk+1}], 1")
    e(f"s_lshl_b64 s[{sMk+4}:{sMk+5}], s[{sMk}:{sMk+1}], 2")
    c("output row offset in the staging buffer: (lane&31)*56 + h*32 = lane*56 - h*1760")
    e(f"v_mul_u32_u24 v{vT0}, 1760, v{vR}")
    c("Q fragment addresses: local block 1 is this wave's own block G")
    e(f"s_lshl_b32 s{sTmp}, s{sG}, 11")
    e(f"s_add_u32 s{sTmp}, s{sTmp}, s{sAlt}")
    e(f"s_add_u32 s{sTmp}, s{sTmp}, {LDS_Q - LDS_K}")
    e(f"v_sub_u32 v{vOoff}, v{vNat}, v{vT0}")
    e(f"v_add_u32 v{vTq}, s{sTmp}, v{vL16}")
    e(f"v_mov_b64 {vr(vVf+28,2)}, 0")
    e(f"v_xor_b32 v{vNq}, 0x800, v{vTq}")
    e(f"v_mov_b64 {vr(vVf+30,2)}, 0")
    c("V transpose-read address: 512*b5 + 128*b3 + 8*sel(b4,b2,b1,b0); sel = pi + 7*b2 with pi = 2*b4 + b1 + 4*b0, 14 (the pad) if pi == 7")
    tab = 0
    for idx in range(16):
        b0, b1, b2, b4 = idx & 1, (idx >> 1) & 1, (idx >> 2) & 1, (idx >> 3) & 1
        pi = 2*b4 + b1 + 4*b0
        tab |= (14 if pi == 7 else pi + 7*b2) << (4*idx)
    e(f"s_mov_b32 s{sTmp}, {hex(tab & 0xffffffff)}")
    e(f"s_mov_b32 s{sTmp2}, {hex(tab >> 32)}")
    e(f"v_mfma_i32_32x32x32_i8 {vr(vO,16)}, {vr(vVf+28,4)}, {vr(vVf+28,4)}, 0")
    e(f"v_and_b32 v{vFr}, 7, v{vLane}")
    e(f"v_lshlrev_b32 v{vT0}, 1, v{vLane}")
    e(f"v_lshlrev_b32 v{vFr}, 2, v{vFr}")
    e(f"v_and_b32 v{vVr}, 40, v{vLane}")
    e(f"v_and_or_b32 v{vT0}, v{vT0}, 32, v{vFr}")
    e(f"v_lshlrev_b32 v{vVr}, 4, v{vVr}")
    e(f"v_lshrrev_b64 {vr(vB,2)}, v{vT0}, s[{sTmp}:{sTmp2}]")
    e(f"v_mfma_i32_32x32x32_i8 {vr(vO+16,16)}, {vr(vVf+28,4)}, {vr(vVf+28,4)}, 0")
    e(f"s_lshl_b32 s{sTmp2}, s{sG}, 13")
    e(f"v_and_b32 v{vB}, 15, v{vB}")
    if opt.dsadd: e(f"v_mul_u32_u24 v{vFr}, 65, v{vFr}")
    e(f"v_add_u32 v{vFr}, {LDS_F}, v{vFr}")
    e(f"v_lshl_add_u32 v{vVr}, v{vB}, 3, v{vVr}")
    e(f"v_mov_b32 v{vCnt}, 1")
    e(f"v_add_u32 v{vVr}, s{sTmp2}, v{vVr}")
    e(f"s_add_u32 s{sTmp2}, s{sTmp2}, {LDS_K}")
    e(f"v_mov_b32 v{vIdx}, 0xdddddddd")
    e(f"v_add_u32 v{vKr}, s{sTmp2}, v{vL16}")
    e(f"s_mov_b32 s{sIter}, 0")
    e(f"s_movk_i32 s{sX}, 0x4000")
    if opt.add64:
        e(f"s_mov_b32 s{sD+2}, 0xffff4000")
        e(f"s_mov_b32 s{sD+3}, 0xffff3fff")
        e(f"s_mov_b32 s{sD+4}, s{sX}")
        e(f"s_mov_b32 s{sD+5}, s{sX}")
    def kread(tile, buf):
        o = tile * 2048
        return [f"ds_read_b128 {vr(vKf+8*buf,4)}, v{vKr} offset:{o}",
                f"ds_read_b128 {vr(vKf+8*buf+4,4)}, v{vKr} offset:{o+1024}"]
    def vread(tile, buf):
        o = tile * 2048
        return [f"ds_read_b64_tr_b16 {vr(vVf+8*buf+4*s+2*u,2)}, v{vVr} offset:{o+s*1024+u*256}" for s in range(2) for u in range(2)]
    def m1(T):
        return f"v_mfma_f32_32x32x16_bf16 {vr(vS+16*(T%4),16)}, {vr(vKf+8*((T//2)%2),4)}, {vr(vQ+4*(T%2),4)}, 0"
    def m2(T):
        return f"v_mfma_f32_32x32x16_bf16 {vr(vS+16*(T%4),16)}, {vr(vKf+8*((T//2)%2)+4,4)}, {vr(vQ+8+4*(T%2),4)}, {vr(vS+16*(T%4),16)}"
    def sm(T, s):
        return f"v_smfmac_f32_32x32x32_bf16 {vr(vO+16*(T%2),16)}, {vr(vVf+8*((T//2)%4)+4*s,4)}, {vr(vS+16*(T%4)+8*s,8)}, v{vIdx}"
    def ex(T, j):
        r = vS + 16*(T%4) + j
        return f"v_exp_f32 v{r}, v{r}"

    def vtwo(chunk):
        for half in range(2):
            e(f"s_lshl_b32 s{sTmp}, s{sQg}, 11")
            e(f"s_mul_i32 s{sTmp2}, s{sQg}, 1792")
            if chunk or half:
                e(f"s_add_u32 s{sTmp}, s{sTmp}, {chunk*16384 + half*8192}")
                e(f"s_add_u32 s{sTmp2}, s{sTmp2}, {chunk*CH + half*7168}")
            for t in vdma_l(m0=sTmp, off=sTmp2, adv=False, fl=opt.nt0): e(t)
    def tproc(q):
        e(f"v_lshlrev_b32 v{vTv}, 16, v{vTv}")
        if q:
            c("c = t*log2e")
            e(f"v_mul_f32 v{vT0}, 0x3fb8aa3b, v{vTv}")
        else: e("s_nop 0")
        e(f"v_readfirstlane_b32 s{sAbsT}, v{vTv}")
        if q:
            e(f"v_readfirstlane_b32 s{sScale}, v{vT0}")
            e(f"v_mov_b32 v{vP+15}, 0")
        else: e("s_nop 1")
        c("the shift |t|*log2e bounds every logit; it is used only while it cannot underflow a row (|t| <= 16)")
        e(f"s_and_b32 s{sAbsT}, s{sAbsT}, 0x7fffffff")
        if q:
            e(f"s_or_b32 s{sTmp2}, s{sScale}, 0x80000000")
            e(f"s_lshr_b32 s{sTmp2}, s{sTmp2}, 16")
        e(f"s_cmp_gt_u32 s{sAbsT}, {'0x41800000' if not opt.force_fallback else '0'}")
        if q: e(f"s_cselect_b32 s{sTmp2}, 0, s{sTmp2}")
        e(f"s_cselect_b32 s{sAbsT}, 1, 0")
        if q: e(f"v_mov_b32 v{vP+14}, s{sTmp2}")
    def qreads():
        e(f"ds_read_b128 {vr(vQ,4)}, v{vNq}")
        e(f"ds_read_b128 {vr(vQ+8,4)}, v{vNq} offset:1024")
        e(f"ds_read_b128 {vr(vQ+4,4)}, v{vTq}")
        e(f"ds_read_b128 {vr(vQ+12,4)}, v{vTq} offset:1024")
    def x3():
        for t in rawnext_l(fl=opt.nt0): e(t)
    v0 = vread(0, 0); v1 = vread(1, 1); k0 = kread(0, 0); k1 = kread(1, 1)
    e(f"s_mul_i32 s{sVoffs}, s{sWave}, 1792")
    e(f"s_add_u32 s{sM0V}, s{sM0V}, 0x8000")
    e(f"s_add_u32 s{sVoffs}, s{sVoffs}, {2*CH}")
    e(f"s_cmp_eq_u32 s{sG}, 0")
    e("s_cbranch_scc1 L_st4")
    c("group 1: K1 rows into this wave's part of the still unused K slot 2; K0, K1; V1 and K2 rows")
    e(f"s_add_u32 s{sAlt}, s{sAlt}, 32768")
    e(f"s_add_u32 s{sTmp}, s{sKnext}, {CH}")
    for t in rawdma_l(sK, sTmp, sAlt, fl=opt.nt0): e(t)
    lst(5)
    e(f"s_add_u32 s{sKnext}, s{sKnext}, {2*CH}")
    e(f"s_sub_u32 s{sAlt}, s{sM0R}, s{sAlt}")
    e(f"s_mov_b32 s{sScale}, 1.0")
    if opt.dry:
        c("run the normalisation once on whatever is staged: brings its code into the instruction cache")
        e(f"s_call_b64 s[{sRet}:{sRet+1}], L_prep")
        e(f"v_xor_b32 v{vKw}, 0x8000, v{vKw}")
    e(f"s_waitcnt vmcnt(4)")
    lst(3)
    e(f"s_call_b64 s[{sRet}:{sRet+1}], L_prep")
    e(f"v_xor_b32 v{vKw}, 0xc000, v{vKw}")
    e(f"v_subrev_u32 v{vNat}, s{sAlt}, v{vNat}")
    e(f"v_subrev_u32 v{vTr}, s{sAlt}, v{vTr}")
    tproc(False)
    e("s_waitcnt lgkmcnt(0)")
    lst(4)
    e("s_barrier")
    for t in k0 + k1: e(t)
    if opt.xpos == 0: x3()
    e(f"s_setprio {opt.g1prio}")
    e(f"s_waitcnt vmcnt({4 if opt.xpos == 0 else 0})")
    lst(0)
    if opt.xpos == 1: x3()
    if opt.bpos == 1:
        lst(6); e("s_barrier"); lst(2)
    e(f"s_call_b64 s[{sRet}:{sRet+1}], L_prep")
    e(f"v_xor_b32 v{vKw}, 0x4000, v{vKw}")
    e(f"v_add_u32 v{vNat}, s{sAlt}, v{vNat}")
    e(f"v_add_u32 v{vTr}, s{sAlt}, v{vTr}")
    if opt.xpos == 2: x3()
    if opt.bpos == 0:
        e("s_waitcnt lgkmcnt(0)")
        lst(6); e("s_barrier"); lst(2)
    qreads()
    e(f"ds_write_b32 v{vFw}, v{vCnt}")
    e("s_waitcnt lgkmcnt(1)")
    lab("L_fill")
    e(m1(0)); e(m2(0))
    e("s_nop 1")
    e("s_branch L_st5")
    lab("L_st4")
    c("group 0: V0; Q rows -> fragments for this wave and its partner")
    vtwo(0)
    if opt.v1pos == 0: vtwo(1)
    n1 = 4 if opt.v1pos == 0 else 0
    lst(5)
    e(f"s_add_u32 s{sKnext}, s{sKnext}, {3*CH}")
    e(f"s_waitcnt vmcnt({8 + n1})")
    tproc(True)
    e("s_waitcnt lgkmcnt(0)")
    lst(3); lst(4)
    e("s_barrier")
    for t in k0 + k1: e(t)
    e(f"s_setprio {opt.p_start}")
    e(f"s_waitcnt vmcnt({4 + n1})")
    lst(0)
    e(f"s_call_b64 s[{sRet}:{sRet+1}], L_prep")
    qreads()
    e(f"v_xor_b32 v{vKw}, 0x8000, v{vKw}")
    e(f"s_mov_b32 s{sScale}, 1.0")
    e("s_waitcnt lgkmcnt(2)")
    e(m1(0)); e(m2(0))
    e(f"v_mov_b32 v{vP+14}, 0x3f803f80")
    e(f"v_mov_b32 v{vP+15}, 0x3f803f80")
    if opt.v1pos == 1: vtwo(1)
    e(f"s_waitcnt vmcnt({0 if opt.v1wait else 4}) lgkmcnt(0)")
    lst(6)
    e("s_barrier")
    lst(2)
    lab("L_st5")
    e(f"s_cmp_lg_u32 s{sAbsT}, 0")
    e("s_cbranch_scc1 L_special")
    lst(7)
    for t in v0: e(t)
    e(f"s_setprio {opt.pf0}")
    e(f"s_cmp_eq_u32 s{sG}, 0")
    e("s_cbranch_scc1 L_pf")
    e(f"s_setprio {opt.pf1}")
    lab("L_pf")
    wst(); lst(8)
    c("first tile: also computes the scores of tile 1")
    k2 = kread(2, 0); v2 = vread(2, 2); vd = vdma_l()
    ei = 0; nl = 0
    for ch in opt.pat0:
        if ch == 'e': e(ex(0, ei)); ei += 1
        elif ch == 'E': e(m1(1))
        elif ch == 'G': e(m2(1))
        elif ch == 'B': e(m1(2))
        elif ch == 'C': e(m2(2))
        elif ch == 'D': e(sm(0, 0))
        elif ch == 'a': e(v1.pop(0)); nl += 1
        elif ch == 'k': assert not v1; e(k2.pop(0)); nl += 1
        elif ch == 'v': assert not k2; e(v2.pop(0)); nl += 1
        elif ch == 'w': e(f"s_waitcnt lgkmcnt({nl})")
        elif ch == 'V':
            for t in vd[0:3] + ["s_mov_b64 exec, -1"]: e(t)
        elif ch == 'U':
            for t in [vd[3], vd[1], vd[5], vd[6], vd[4]] + vd[7:]: e(t)
    assert ei == 16 and len(v2) == 2
    e(f"s_cmp_eq_u32 s{sG}, 0")
    e("s_cbranch_scc1 L_B1")
    e("s_branch L_A1")

    lab("L_prep")
    for m in range(7): e(f"ds_read_b64 {vr(vP+2*m,2)}, v{vNat} offset:{8*m}")
    for s in tr_reads: e(s)
    for m in range(7):
        e(f"s_waitcnt lgkmcnt({13 - m})")
        if m > 0: e("s_nop 0")
        e(grams[m])
    e("s_nop 4")
    for t in sels: e(t)
    e(norm[0]); e("s_nop 0"); e(norm[1]); e(norm[2]); e("s_nop 0")
    e(f"v_mul_f32 v{vR}, s{sScale}, v{vR}")
    for s in norm[3:]: e(s)
    e("s_waitcnt lgkmcnt(0)")
    e("s_nop 0")
    for s in smalls: e(s)
    for i in range(14):
        e(cvts[i])
        if i % 4 == 3: e(writes[i // 4])
    e(writes[3])
    e(f"v_xor_b32 v{vKw}, 0x8000, v{vKw}")
    e(f"s_setpc_b64 s[{sRet}:{sRet+1}]")

    nskip = [0]
    fcmp = f"v_cmp_ge_u32 vcc, s{sIter}, v{vFlag}" if opt.dsadd else f"v_cmp_lt_u32 vcc, v{vFlag}, v{vCnt}"
    def build_half(name, pats):
        ops = []
        q = dict(n=list(nat_reads), t=list(tr_reads), g=list(grams), x=list(sels), s=list(norm), m=list(smalls), c=list(cvts), W=list(writes))
        cnt = dict(n=0, t=0, g=0, x=0, s=0, m=0, c=0, W=0, X=0)
        def add(t, lid=None, needs=()): ops.append((t, lid, list(needs)))
        for T in range(8):
            j = T // 2
            if T == 1: add(f"L_{name}1:")
            if opt.ws and T in opt.stampT:
                for s in wst_l(): add(s)
            if T % 2 == 0:
                rd_k = kread((j + 2) % 4, j % 2); rd_v = vread((j + 2) % 4, (j + 2) % 4)
                ki = vi = 0
            ei = 0
            for ch in pats[T]:
                if ch == 'e': add(ex(T, ei)); ei += 1
                elif ch == 'A':
                    add(sm(T - 1, 1), needs=[('v', ((T-1)//2), 2), ('v', ((T-1)//2), 3)])
                elif ch == 'B': add(m1(T + 2), needs=[('k', j + 1, 0)])
                elif ch == 'C': add(m2(T + 2), needs=[('k', j + 1, 1)])
                elif ch == 'D': add(sm(T, 0), needs=[('v', j, 0), ('v', j, 1)])
                elif ch == 'k': add(rd_k[ki], lid=('k', j + 2, ki)); ki += 1
                elif ch == 'v': add(rd_v[vi], lid=('v', j + 2, vi)); vi += 1
                elif ch == 'w': add("WAIT")
                elif ch == 'n': add(q['n'][cnt['n']], lid=('n', 0, cnt['n'])); cnt['n'] += 1
                elif ch == 't': add(q['t'][cnt['t']], lid=('t', 0, cnt['t'])); cnt['t'] += 1
                elif ch in '0123':
                    if opt.prio: add(f"s_setprio {opt.pmap[int(ch)]}")
                elif ch == 'g': add(q['g'][cnt['g']], needs=[('n', 0, cnt['g'] // 2)]); cnt['g'] += 1
                elif ch == 'x': assert cnt['g'] == 7; add(q['x'][cnt['x']]); cnt['x'] += 1
                elif ch == 's': assert cnt['x'] == 3; add(q['s'][cnt['s']]); cnt['s'] += 1
                elif ch == 'm': assert cnt['s'] == 6; add(q['m'][cnt['m']], needs=[('t', 0, cnt['m'])]); cnt['m'] += 1
                elif ch == 'c': assert cnt['m'] > cnt['c'] // 2; add(q['c'][cnt['c']]); cnt['c'] += 1
                elif ch == 'W':
                    assert cnt['c'] >= min(14, 4*cnt['W'] + 4)
                    add(q['W'][cnt['W']], lid=('W', 0, cnt['W'])); cnt['W'] += 1
                    if cnt['W'] == 4: pending_xor = True
                elif ch == 'X':
                    l = rawnext_l()
                    parts = [l[0:3], l[3:4], l[4:5], l[5:]]
                    for t in parts[cnt['X']]: add(t)
                    cnt['X'] += 1
                elif ch == 'Y': add("s_waitcnt vmcnt(2)")
                elif ch == 'z': add(f"s_cmp_ge_u32 s{sIter}, 5")
                elif ch == '[':
                    nskip[0] += 1; add(f"s_cbranch_scc1 L_skip{nskip[0]}")
                elif ch == ']': add(f"L_skip{nskip[0]}:")
                elif ch == 'V':
                    add(f"s_mov_b32 m0, s{sM0V}")
                    add(f"s_mov_b64 exec, s[{sExV}:{sExV+1}]")
                    add(f"buffer_load_dwordx4 v{vVoff}, s[{sV}:{sV+3}], s{sVoffs} offen{opt.ntl} lds")
                    add(f"s_mov_b64 exec, -1")
                elif ch == 'U':
                    add(f"s_add_u32 m0, s{sM0V}, 128")
                    add(f"s_mov_b64 exec, s[{sExV}:{sExV+1}]")
                    add(f"buffer_load_dwordx4 v{vVoff}, s[{sV}:{sV+3}], s{sVoffs} offen offset:896{opt.ntl} lds")
                    add(f"s_mov_b64 exec, -1")
                elif ch == 'p':
                    if opt.v1wait: continue
                    add("s_waitcnt vmcnt(6)")
                    add(f"ds_write_b32 v{vFw}, v{vCnt}", lid=('p', 0, 0))
                elif ch == 'q': add(f"s_cmp_eq_u32 s{sIter}, 7")
                elif ch == 'T': add("s_cbranch_scc1 L_tail")
                elif ch == 'y': add("s_waitcnt vmcnt(0)")
                elif ch == 'f': add(f"ds_read_b32 v{vFlag}, v{vFr}", lid=('f', 0, 0))
                elif ch == 'F':
                    add(fcmp, needs=[('f', 0, 0)])
                    if opt.add64:
                        add(f"v_lshl_add_u64 {vr(vKr,2)}, {vr(vKr,2)}, 0, s[{sD}:{sD+1}]")
                    else:
                        add(f"v_xor_b32 v{vKr}, s{sX}, v{vKr}")
                        add(f"v_xor_b32 v{vVr}, s{sX}, v{vVr}")
                    add(f"s_cbranch_vccnz L_spin{name}")
                    add(f"L_back{name}:")
                    if not opt.dsadd: add(f"v_add_u32 v{vCnt}, 1, v{vCnt}")
                    if not opt.add64: add(f"s_xor_b32 s{sX}, s{sX}, 0x8000")
                elif ch == 'j':
                    if opt.add64:
                        jj = [f"s_cmp_eq_u32 s{sIter}, 3", f"s_cselect_b64 s[{sD}:{sD+1}], s[{sD+2}:{sD+3}], s[{sD+4}:{sD+5}]"]
                        add(jj[cnt.setdefault('j', 0)])
                    cnt['j'] = cnt.get('j', 0) + 1
                elif ch == 'i':
                    it = [f"s_add_u32 s{sIter}, s{sIter}, 1"]
                    add(it[cnt.setdefault('i', 0)]); cnt['i'] += 1
                elif ch == 'a':
                    adv = [f"s_add_u32 s{sM0V}, s{sM0V}, 0x4000", f"s_and_b32 s{sM0V}, s{sM0V}, 0xffff",
                           f"s_add_u32 s{sVoffs}, s{sVoffs}, {CH}"]
                    add(adv[cnt.setdefault('a', 0)]); cnt['a'] += 1
                elif ch == 'P':
                    add(f"ds_add_u32 v{vFw}, v{vCnt}" if opt.dsadd else f"ds_write_b32 v{vFw}, v{vCnt}", lid=('P', 0, 0))
                    if name == 'A':
                        assert cnt['W'] == 4
                        add(f"v_xor_b32 v{vKw}, 0x8000, v{vKw}")
                else: raise ValueError(ch)
            assert ei == 16, (name, T, ei)
            if T % 2 == 1: assert ki == 2 and vi == 4
        if name == 'A':
            assert cnt == dict(n=4, t=7, g=7, x=3, s=6, m=7, c=14, W=4, X=0, a=3, i=1, j=2), cnt
        return ops

    halves = {'A': build_half('A', opt.patA), 'B': build_half('B', opt.patB)}
    def shift(ops):
        out = []
        for t, lid, needs in ops:
            if lid is not None:
                lid = (lid[0], lid[1] - 4, lid[2]) if lid[0] in 'kv' else (lid[0], -1, lid[2])
            out.append((t, lid, []))
        return out
    def resolve(name):
        ops = halves[name]
        res = {}
        for pred in 'AB':
            seq = shift(halves[pred]) + ops
            base = len(seq) - len(ops)
            pos = {lid: i for i, (t, lid, n) in enumerate(seq) if lid is not None}
            waits = [i for i in range(base, len(seq)) if seq[i][0] == "WAIT"]
            covered = -1
            covered = pos[('k', 0, 1)]
            for i in range(base, len(seq)):
                t, lid, needs = seq[i]
                if t == "WAIT":
                    nxt = min([w for w in waits if w > i] + [len(seq)])
                    need = [pos[x] for k in range(i, nxt) for x in seq[k][2] if x in pos]
                    tgt = max(need + [covered])
                    assert tgt < i, ("wait placed before its load", name, seq[tgt][0])
                    n = sum(1 for k in range(tgt + 1, i) if seq[k][1] is not None)
                    res[i - base] = min(res.get(i - base, 15), n)
                    covered = tgt
                for x in needs:
                    if x in pos: assert pos[x] <= covered, ("uncovered", name, t, x)
                    else: assert x[0] == 'v' and x[1] < -2 or x[1] <= -2, x
        out = [(f"s_waitcnt lgkmcnt({res[i]})" if t == "WAIT" else t) for i, (t, lid, n) in enumerate(ops)]
        return [t for t in out if not any(re.search(d, t) for d in opt.drop)]

    L.append(".p2align 3")
    lab("L_A")
    for t in resolve('A'):
        (L.append(t) if t.endswith(":") else e(t))
    lab("L_B")
    for t in resolve('B'):
        (L.append(t) if t.endswith(":") else e(t))
    e(f"s_cmp_lt_u32 s{sIter}, 6")
    e("s_cbranch_scc1 L_A")
    e("s_branch L_B")
    lab("L_tail")
    c("last two tiles; local block 0 goes to the partner wave, local block 1 is finished here")
    e(f"s_lshl_b32 s{sTmp}, s{sWave}, 12")
    e(f"s_add_u32 s{sTmp}, s{sTmp}, {LDS_K}")
    e(f"v_add_u32 v{vT0}, s{sTmp}, v{vL16}")
    e(f"v_xor_b32 v{vT1}, 0x4000, v{vT0}")
    if opt.st_lin:
        e(f"v_add_u32 v{vSS}, s{sM0R}, v{vL16}")
    no = nr = 0
    tv = vread(3, 3)[2:]
    vF = vO + 16
    for T, Tp, Tn, pat in opt.patT:
        ei = 0
        for ch in pat:
            if ch == 'e': e(ex(T, ei)); ei += 1
            elif ch == 'A': e(sm(Tp, 1))
            elif ch == 'B': e(m1(Tn))
            elif ch == 'C': e(m2(Tn))
            elif ch == 'D': assert ei >= 10; e(sm(T, 0))
            elif ch == 'w': e("s_waitcnt lgkmcnt(0)")
            elif ch == 'y': e("s_waitcnt vmcnt(0)")
            elif ch == 'n': e("s_nop 0")
            elif ch == 'K': e("s_waitcnt lgkmcnt(2)")
            elif ch == 'v': e(tv.pop(0))
            elif ch == 'b': e("s_barrier")
            elif ch in '0123':
                if opt.prio: e(f"s_setprio {opt.pmap[int(ch)]}")
            elif ch == 'O':
                e(f"ds_write_b128 v{vT0}, {vr(vO+4*no,4)} offset:{1024*no}"); no += 1
            elif ch == 'R':
                e(f"ds_read_b128 {vr(vD+4*nr,4)}, v{vT1} offset:{1024*nr}"); nr += 1
            elif ch == 'a':
                for j in range(0, 16, 2):
                    e(f"v_pk_add_f32 {vr(vF+j,2)}, {vr(vF+j,2)}, {vr(vD+j,2)}")
            else: raise ValueError(ch)
        assert ei == 16
    assert no == 4 and nr == 4
    e("s_nop 1")
    e(sm(7, 1))
    wst()
    e("s_nop 11")
    e(f"v_mov_b32 v{vT0}, v{vF+12}")
    e(f"v_mov_b32 v{vT1}, v{vF+12}")
    e("s_nop 1")
    e(f"v_permlane32_swap_b32 v{vT0}, v{vT1}")
    e(f"v_rcp_f32 v{vB}, v{vT1}")
    e("s_nop 0")
    if True:
        c("rows -> own staging buffer -> whole lines")
        for j in range(4):
            e(f"v_pk_mul_f32 {vr(vF+4*j,2)}, {vr(vF+4*j,2)}, {vr(vB,2)} op_sel_hi:[1,0]")
            e(f"v_pk_mul_f32 {vr(vF+4*j+2,2)}, {vr(vF+4*j+2,2)}, {vr(vB,2)} op_sel_hi:[1,0]")
            e(f"v_cvt_pk_bf16_f32 v{vP+2*j}, v{vF+4*j}, v{vF+4*j+1}")
            e(f"v_cvt_pk_bf16_f32 v{vP+2*j+1}, v{vF+4*j+2}, v{vF+4*j+3}")
            if j == 3: e("s_mov_b32 exec_hi, 0")
            e(f"ds_write_b64 v{vOoff}, {vr(vP+2*j,2)} offset:{8*j}")
        e("s_mov_b32 exec_hi, -1")
        e(f"ds_read_b128 {vr(vD,4)}, v{vSS}")
        e(f"ds_read_b128 {vr(vD+4,4)}, v{vSS} offset:1024")
        e("s_waitcnt lgkmcnt(1)")
        e(f"buffer_store_dwordx4 {vr(vD,4)}, v{vL16}, s[{sO}:{sO+3}], s{sOoff} offen{opt.st_flags}")
        e("s_mov_b32 exec_hi, 0xffff")
        e("s_waitcnt lgkmcnt(0)")
        e(f"buffer_store_dwordx4 {vr(vD+4,4)}, v{vL16}, s[{sO}:{sO+3}], s{sOoff} offen offset:1024{opt.st_flags}")
    if opt.ws:
        e("s_mov_b64 exec, -1")
        if opt.lazy:
            lst(9)
            e("s_waitcnt lgkmcnt(0)")
            for k in range(10):
                e(f"s_sub_u32 s74, s{80+2*k}, s72")
                e(f"v_writelane_b32 v{vSt}, s74, {k}")
            e(f"v_writelane_b32 v{vSt}, s71, 10")
            e("s_mov_b32 s70, 11")
        wst()
        e("s_waitcnt vmcnt(0)")
        wst()
        e("s_memrealtime s[78:79]")
        e("s_load_dwordx2 s[80:81], s[0:1], 48")
        e("s_waitcnt lgkmcnt(0)")
        e("s_mov_b32 s82, 0x1000000"); e("s_mov_b32 s83, 0x00020000")
        e(f"v_writelane_b32 v{vSt}, s70, 31")
        e(f"v_writelane_b32 v{vSt}, s76, 30")
        e(f"v_writelane_b32 v{vSt}, s78, 29")
        e(f"s_lshl_b32 s3, s2, 3"); e(f"s_add_u32 s3, s3, s{sWave}"); e("s_lshl_b32 s3, s3, 7")
        e(f"v_lshlrev_b32 v1, 2, v{vLane}")
        e("s_mov_b32 exec_hi, 0")
        e(f"buffer_store_dword v{vSt}, v1, s[80:83], s3 offen")
    if opt.padto:
        e("s_waitcnt vmcnt(0)")
        lab("L_pspin")
        e("s_memrealtime s[78:79]")
        e("s_waitcnt lgkmcnt(0)")
        e("s_sub_u32 s84, s78, s76")
        e(f"s_cmp_lt_u32 s84, {opt.padto}")
        e("s_cbranch_scc1 L_pspin")
    lab("L_end")
    e("s_endpgm")

    for name in 'AB':
        lab(f"L_spin{name}")
        c("some wave has not yet published the next chunk: wait for it")
        if opt.ws:
            e(f"s_lshl_b32 s{sTmp}, s{sIter}, 2")
            e(f"s_lshl_b32 s{sTmp}, 1, s{sTmp}")
            e(f"s_add_u32 s71, s71, s{sTmp}")
        e(f"s_sleep {opt.sleep}")
        e(f"ds_read_b32 v{vFlag}, v{vFr}")
        e("s_waitcnt lgkmcnt(0)")
        e(fcmp)
        e(f"s_cbranch_vccnz L_spin{name}")
        e(f"s_branch L_back{name}")

    lab("L_special")
    e(f"s_cmp_eq_u32 s{sMode}, 0")
    e("s_cbranch_scc1 L_maxpass")
    c("second pass: put -max into the pad slots of the Q fragments (lanes 32..63)")
    e("s_mov_b32 exec_lo, 0")
    e(f"v_mov_b32 v{vQ+10}, v{vPad}")
    e(f"v_mov_b32 v{vQ+11}, v{vPad+1}")
    e(f"v_mov_b32 v{vQ+14}, v{vPad+2}")
    e(f"v_mov_b32 v{vQ+15}, v{vPad+3}")
    e("s_mov_b32 exec_lo, -1")
    e(f"s_mov_b32 s{sAbsT}, 0")
    e("s_nop 7")
    e("s_branch L_fill")
    lab("L_maxpass")
    mx = [vPad, vPad + 2]
    e(f"v_mov_b32 v{mx[0]}, 0xff800000")
    e(f"v_mov_b32 v{mx[1]}, 0xff800000")
    lab("L_mloop")
    c("chunk sIter is in LDS; group (sIter & 1) normalises chunk sIter + 1 (chunk 1 is done, K2 is staged)")
    e(f"s_add_u32 s{sTmp}, s{sIter}, s{sG}")
    e(f"s_bitcmp1_b32 s{sTmp}, 0")
    e("s_cbranch_scc1 L_mnoprep")
    e(f"s_cmp_eq_u32 s{sIter}, 7")
    e("s_cbranch_scc1 L_mnoprep")
    e(f"s_cmp_eq_u32 s{sIter}, 0")
    e("s_cbranch_scc1 L_mnoprep")
    e(f"s_cmp_eq_u32 s{sIter}, 1")
    e("s_cbranch_scc1 L_mhave")
    for t in rawnext_l(): e(t)
    lab("L_mhave")
    e(f"s_waitcnt vmcnt(0) lgkmcnt(0)")
    e(f"s_call_b64 s[{sRet}:{sRet+1}], L_prep")
    lab("L_mnoprep")
    for j in range(4):
        for s in kread(j, 0): e(s)
        e("s_waitcnt lgkmcnt(0)")
        e(m1(0)); e(m2(0)); e(m1(1)); e(m2(1))
        e("s_nop 15")
        for b in range(2):
            for i in range(0, 16, 2):
                e(f"v_max3_f32 v{mx[b]}, v{vS+16*b+i}, v{vS+16*b+i+1}, v{mx[b]}")
    e("s_barrier")
    e(f"v_xor_b32 v{vKr}, s{sX}, v{vKr}")
    e(f"s_xor_b32 s{sX}, s{sX}, 0x8000")
    e(f"s_add_u32 s{sIter}, s{sIter}, 1")
    e(f"s_cmp_lt_u32 s{sIter}, 8")
    e("s_cbranch_scc1 L_mloop")
    c("combine the two lane halves and the partner wave (whose local blocks are swapped)")
    for b in range(2):
        e(f"v_mov_b32 v{vT0}, v{mx[b]}")
        e("s_nop 1")
        e(f"v_permlane32_swap_b32 v{mx[b]}, v{vT0}")
        e("s_nop 1")
        e(f"v_max_f32 v{mx[b]}, v{mx[b]}, v{vT0}")
    e(f"s_lshl_b32 s{sTmp}, s{sWave}, 12")
    e(f"s_add_u32 s{sTmp}, s{sTmp}, {LDS_K}")
    e(f"v_add_u32 v{vT0}, s{sTmp}, v{vL16}")
    e(f"v_xor_b32 v{vT1}, 0x4000, v{vT0}")
    e("s_waitcnt vmcnt(0) lgkmcnt(0)")
    e(f"ds_write_b32 v{vT0}, v{mx[0]}")
    e(f"ds_write_b32 v{vT0}, v{mx[1]} offset:4")
    e("s_waitcnt lgkmcnt(0)")
    e("s_barrier")
    e(f"ds_read_b64 {vr(vD,2)}, v{vT1}")
    e("s_waitcnt lgkmcnt(0)")
    e("s_barrier")
    e(f"s_mov_b32 s{sTmp}, 0xffff0000")
    for b in range(2):
        m = mx[b]
        e(f"v_max_f32 v{m}, v{m}, v{vD+1-b}")
        c("split -max into three bf16 parts")
        e(f"v_sub_f32 v{m}, 0, v{m}")
        e(f"v_and_b32 v{vT0}, s{sTmp}, v{m}")
        e(f"v_sub_f32 v{m}, v{m}, v{vT0}")
        e(f"v_and_b32 v{vT1}, s{sTmp}, v{m}")
        e(f"v_sub_f32 v{m}, v{m}, v{vT1}")
        e(f"v_lshrrev_b32 v{m+1}, 16, v{m}")
        e(f"v_lshrrev_b32 v{vT0}, 16, v{vT0}")
        e(f"v_or_b32 v{m}, v{vT0}, v{vT1}")
    e(f"s_mov_b32 s{sMode}, 1")
    e("s_branch L_restart")

    txt = HEADER + f"; @launch grid=(256,1,1) block=(512,1,1) lds={LDS_TOTAL}\n"
    txt += """.amdgcn_target "amdgcn-amd-amdhsa--gfx950"
.text
.globl standalone__qk_norm__prompt_kernel
.p2align 8
.type standalone__qk_norm__prompt_kernel,@function
standalone__qk_norm__prompt_kernel:
"""
    txt += "\n".join(L) + "\n"
    txt += f""".section .rodata,"a"
.p2align 6
.amdhsa_kernel standalone__qk_norm__prompt_kernel
  .amdhsa_next_free_vgpr {NV}
  .amdhsa_next_free_sgpr {102 if (opt.ws or opt.padto) else 72}
  .amdhsa_accum_offset {(NV+3)//4*4}
  .amdhsa_group_segment_fixed_size 0
  .amdhsa_kernarg_size 56
  .amdhsa_user_sgpr_count 2
  .amdhsa_user_sgpr_kernarg_segment_ptr 1
  .amdhsa_system_sgpr_workgroup_id_x 1
.end_amdhsa_kernel
"""
    return txt

if __name__ == "__main__":
    opt = Opt()
    out = sys.argv[1]
    for a in sys.argv[2:]:
        k, v = a.split("=", 1)
        assert hasattr(opt, k), k
        setattr(opt, k, eval(v))
    open(out, "w").write(gen(opt))
```

```python
import sys, re

HEADER = """; Kernarg layout for this problem (56 bytes, ptrs only, base s[0:1]):
"""

PAT_B = [
 "eeA3wkeeeeBkeeeeCveeeeDvee",
 "eeAveeeeBzveeeeC[XX]eeeeD[XX]ee",
 "eeA2wkeeeeBkeeeeCqveeeeDveeT",
 "eeA1veeeeBveeeeC0feeeeDee",
 "eeA3wFkeeeeBkeeeeCveeeeDvee",
 "eeAzveeeeByveeeeC[V]eeeeD[U]ee",
 "eeA2wkeeeeBakeeeeCaveeeeDaivee",
 "eeA1veeeeBveeeeC0eeeeDPee",
]
PAT_A = [
 "eeA3wkeeeeBkeeeeCveeeeDvee",
 "eeAveeeeBveeeeCYnneeeeDnnee",
 "eeA2wkteeegeBkteeegeCvteeegeDvtee",
 "egeA1vteeegeBvteeegeC0fteeegeDee",
 "eeA3wFkexexexeBkesesesesCvesseemeDvee",
 "emeAzveecemeByvececemeC[V]ececemeD[U]ecec",
 "emeA2wkececemeBakWececeeCavWeceecceDaivee",
 "eeA1vWeeeeBvWeeeeC0eeeeDPee",
]
PAT_T = [
 (3, 2, 6, "eeA1Kveeee" "BveeeeC0eeeeDee"),
 (4, 3, 5, "eeA3eeeeBeeeeCeeeeDee"),
 (6, 4, 7, "eeA2weeeeBeeeeCeeeeD1ee"),
 (5, 6, 0, "eeAeeee0eeeeDeeeOeOeOeO"),
 (7, 5, 0, "eeAwbReReReReeeeewaeeDeeee"),
]

class Opt:
    ws = False
    patT = PAT_T
    st_flags = ' sc1'
    st_lin = True
    g1prio = 2
    prepst = False
    pk1 = 3
    k2pos = 0
    bpos = 1
    lazy = False
    cpf = 1
    padat = -1
    qdelay = 1
    dry = False
    g1early = 0
    nt0 = ' nt'
    ntl = ''
    pf0 = 3
    pf1 = 2
    pat0 = 'eeEaaeeeGaaeeeBkVeeeCkUeewDvveee'
    v0pos = 1
    xpos = 0
    pmid = 3
    drop = ()
    padto = 0
    force_fallback = False
    patA = PAT_A
    patB = PAT_B
    prio = True
    pmap = '0123'
    p_start = 2
    sleep = 1
    stampT = (4,)

def gen(opt):
    L = []
    def e(s): L.append("    " + s)
    def lab(s): L.append(s + ":")
    def c(s): L.append("    ; " + s)

    HB = 114688
    CH = 14336
    LDS_V = 0
    LDS_K = 65536
    LDS_Q = LDS_K + 3*16384
    LDS_R = 131072
    LDS_F = LDS_R + 8*3584
    LDS_TOTAL = LDS_F + 256
    vLane, vL16, vVoff, vKw, vKr, vVr, vIdx, vT0 = 0, 1, 2, 3, 4, 5, 6, 7
    vNat, vTr, vMa, vMb, vOoff, vT1, vSS, vR = 8, 9, 10, 11, 12, 13, 14, 15
    vQ = 16
    vO = 32
    vS = 64
    vKf = 128
    vVf = 144
    vP = 176
    vTt = 192
    vB = 206
    vD = 208
    vPad = 236
    vSt, vTv, vNq = 240, 241, 242
    vTq = 247
    vFw, vFr, vFlag, vCnt = 243, 244, 245, 246
    NV = 248
    sK, sV, sO, sR = 20, 24, 28, 48
    sWave, sHead, sQb, sG, sQg = 32, 33, 34, 35, 36
    sIter, sKnext, sVoffs, sM0V, sM0R = 37, 38, 39, 40, 41
    sT, sScale, sEps, sOoff = 42, 43, 44, 45
    sTmp, sTmp2 = 46, 47
    sExV = 52
    sRet = 54
    sMode, sAbsT = 56, 57
    sPre, sX = 58, 59
    sAlt = 60
    sMk = 64

    def vr(b, n): return f"v[{b}:{b+n-1}]"

    def wst_l():
        if not opt.ws: return []
        return ["s_memtime s[74:75]", "s_waitcnt lgkmcnt(0)", "s_sub_u32 s74, s74, s72", "s_mov_b32 m0, s70", "s_nop 0",
                f"v_writelane_b32 v{vSt}, s74, m0", "s_add_u32 s70, s70, 1"]
    def wst():
        if opt.lazy: return
        for s in wst_l(): e(s)
    def lst(k, inprep=False):
        if opt.prepst and (k in (0, 1, 2, 5, 6, 7, 8)) != inprep: return
        if inprep and not opt.prepst: return
        if opt.padto and opt.padat == k: e("s_memrealtime s[76:77]")
        if opt.lazy: e(f"s_memtime s[{80+2*k}:{81+2*k}]")

    def rawdma_l(srd, soff, m0=None, fl=None):
        fl = opt.ntl if fl is None else fl
        r = [f"s_mov_b32 m0, s{sM0R if m0 is None else m0}", "s_nop 0"]
        for i in range(3):
            r.append(f"buffer_load_dwordx4 v{vL16}, s[{srd}:{srd+3}], s{soff} offen offset:{1024*i}{fl} lds")
        r.append("s_mov_b32 exec_hi, 0")
        r.append(f"buffer_load_dwordx4 v{vL16}, s[{srd}:{srd+3}], s{soff} offen offset:3072{fl} lds")
        r.append("s_mov_b32 exec_hi, -1")
        return r
    def rawnext_l(fl=None):
        return rawdma_l(sK, sKnext, fl=fl) + [f"s_add_u32 s{sKnext}, s{sKnext}, {2*CH}"]

    def vdma_l(m0=None, off=None, adv=True, fl=None):
        fl = opt.ntl if fl is None else fl
        m0 = sM0V if m0 is None else m0
        off = sVoffs if off is None else off
        r = [f"s_mov_b32 m0, s{m0}",
             f"s_mov_b64 exec, s[{sExV}:{sExV+1}]",
             f"buffer_load_dwordx4 v{vVoff}, s[{sV}:{sV+3}], s{off} offen{fl} lds",
             f"s_add_u32 m0, s{m0}, 128",
             f"s_add_u32 s{sM0V}, s{sM0V}, 0x4000" if adv else "s_nop 0",
             f"buffer_load_dwordx4 v{vVoff}, s[{sV}:{sV+3}], s{off} offen offset:896{fl} lds",
             f"s_mov_b64 exec, -1"]
        if adv:
            r += [f"s_and_b32 s{sM0V}, s{sM0V}, 0xffff", f"s_add_u32 s{sVoffs}, s{sVoffs}, {CH}"]
        return r

    nat_reads = [f"ds_read2_b64 {vr(vP+4*i,4)}, v{vNat} offset0:{2*i} offset1:{2*i+1}" for i in range(3)] + \
                [f"ds_read_b64 {vr(vP+12,2)}, v{vNat} offset:48"]
    tr_reads = [f"ds_read_b64_tr_b16 {vr(vTt+2*m,2)}, v{vTr} offset:{8*m}" for m in range(7)]
    dots = [f"v_dot2_f32_bf16 v{vSS}, v{vP+i}, v{vP+i}, {'0' if i == 0 else 'v%d' % vSS}" for i in range(14)]
    grams = [f"v_mfma_f32_4x4x4_16b_bf16 {vr(vD,4)}, {vr(vP+2*m,2)}, {vr(vP+2*m,2)}, {'0' if m == 0 else vr(vD,4)}" for m in range(7)]
    sels = [f"v_cndmask_b32 v{vSS}, v{vD if i == 0 else vSS}, v{vD+1+i}, s[{sMk+2*i}:{sMk+2*i+1}]" for i in range(3)]
    norm = [f"v_sqrt_f32 v{vSS}, v{vSS}", f"v_add_f32 v{vSS}, s{sEps}, v{vSS}", f"v_rcp_f32 v{vR}, v{vSS}",
            f"v_cvt_pk_bf16_f32 v{vR}, v{vR}, v{vR}", f"v_and_b32 v{vB}, v{vR}, v{vMa}", f"v_and_b32 v{vB+1}, v{vR}, v{vMb}"]
    smalls = [f"v_mfma_f32_4x4x4_16b_bf16 {vr(vD+4*m,4)}, {vr(vTt+2*m,2)}, {vr(vB,2)}, 0" for m in range(7)]
    cvts = [f"v_cvt_pk_bf16_f32 v{vP+i}, v{vD+2*i}, v{vD+2*i+1}" for i in range(14)]
    writes = [f"ds_write_b128 v{vKw}, {vr(vP+4*i,4)} offset:{512*i}" for i in range(4)]

    e("s_load_dwordx4 s[4:7], s[0:1], 0")
    e("s_load_dwordx4 s[8:11], s[0:1], 16")
    e("s_load_dwordx2 s[12:13], s[0:1], 32")
    e("s_cmp_ge_u32 s2, 256")
    e("s_cbranch_scc1 L_end")
    if opt.ws:
        e("s_memtime s[72:73]"); e("s_memrealtime s[76:77]"); e("s_mov_b32 s70, 0"); e("s_mov_b32 s71, 0")
    if opt.padto: e("s_memrealtime s[76:77]")
    e(f"v_lshrrev_b32 v{vT0}, 6, v0")
    e(f"v_and_b32 v{vLane}, 63, v0")
    e(f"v_readfirstlane_b32 s{sWave}, v{vT0}")
    if opt.cpf:
        c("pull the kernel's own code into L2 while the first data is on its way: one line per wave")
        e("s_getpc_b64 s[14:15]")
        lab("L_pc")
        e(f"s_and_b32 s3, s2, 56")
        e(f"v_add_u32 v{vT1}, s3, v{vT0}")
        e(f"v_min_u32 v{vT1}, (L_special - L_pc) / 128, v{vT1}")
        e(f"v_lshlrev_b32 v{vT1}, 7, v{vT1}")
        e(f"global_load_dword v{vPad}, v{vT1}, s[14:15]")
    c("head = (wg&7)*4 + (wg>>6), qblk = (wg>>3)&7")
    e("s_and_b32 s3, s2, 7")
    e(f"s_lshr_b32 s{sHead}, s2, 6")
    e(f"s_lshl2_add_u32 s{sHead}, s3, s{sHead}")
    e(f"s_mov_b32 s{sMode}, 0")
    e(f"v_lshlrev_b32 v{vL16}, 4, v{vLane}")
    lab("L_restart")
    e(f"s_movk_i32 s{sTmp2}, 3584")
    e(f"s_mov_b32 s{sR+2}, {HB}")
    e(f"s_mov_b32 s{sR+3}, 0x00020000")
    e(f"s_mul_i32 s3, s{sHead}, s{sR+2}")
    e(f"s_mul_i32 s{sM0R}, s{sWave}, s{sTmp2}")
    e(f"s_add_u32 s{sM0R}, s{sM0R}, {LDS_R}")
    e(f"s_and_b32 s{sQg}, s{sWave}, 3")
    e(f"s_mul_i32 s{sKnext}, s{sQg}, s{sTmp2}")
    c("waves 0..3 (group 1) start with K0, waves 4..7 (group 0) with the Q rows qblk*256 + qg*64")
    e(f"s_and_b32 s{sTmp}, s2, 56")
    e(f"s_mulk_i32 s{sTmp}, 1792")
    e(f"s_add_u32 s{sOoff}, s{sTmp}, s{sKnext}")
    e(f"s_and_b32 s{sTmp2}, s{sHead}, 15")
    e(f"s_lshl_b32 s{sTmp2}, s{sTmp2}, 1")
    e(f"v_mov_b32 v{vTv}, s{sTmp2}")
    c("spare staging in the still unused K slots: slot 3 (group 1: K0 rows), slot 2 (group 0: K1 rows)")
    e(f"s_xor_b32 s{sAlt}, s{sWave}, 4")
    e(f"s_lshl_b32 s{sAlt}, s{sAlt}, 12")
    e(f"s_add_u32 s{sAlt}, s{sAlt}, {LDS_K + 32768}")
    e(f"s_cmp_lt_u32 s{sWave}, 4")
    e(f"s_cselect_b32 m0, s{sAlt}, s{sM0R}")
    e(f"s_cselect_b32 s{sG}, 1, 0")
    e(f"s_cselect_b32 s{sTmp}, s{sKnext}, s{sOoff}")
    e("s_waitcnt lgkmcnt(0)")
    e(f"s_cselect_b32 s{sR}, s6, s4")
    e(f"s_cselect_b32 s{sR+1}, s7, s5")
    e(f"global_load_ushort v{vTv}, v{vTv}, s[10:11]")
    e(f"s_add_u32 s{sR}, s{sR}, s3")
    e(f"s_addc_u32 s{sR+1}, s{sR+1}, 0")
    for t in rawdma_l(sR, sTmp, fl=opt.nt0)[2:]: e(t)
    lst(1)
    for srd, p in ((sK, 6), (sV, 8), (sO, 12)):
        e(f"s_add_u32 s{srd}, s{p}, s3")
        e(f"s_addc_u32 s{srd+1}, s{p+1}, 0")
        e(f"s_mov_b32 s{srd+2}, s{sR+2}")
        e(f"s_mov_b32 s{srd+3}, 0x00020000")
    c("output rows of this wave: + G*32")
    e(f"s_mul_i32 s{sTmp}, s{sG}, 1792")
    e(f"s_add_u32 s{sOoff}, s{sOoff}, s{sTmp}")
    e(f"s_mov_b32 s{sExV}, 0x7f7f7f7f")
    e(f"s_mov_b32 s{sExV+1}, s{sExV}")
    e(f"s_lshl_b32 s{sM0V}, s{sWave}, 11")
    c("vVoff = (lane>>3)*112 + (lane&7)*16 = lane*16 - (lane>>3)*16")
    e(f"v_lshrrev_b32 v{vT0}, 3, v{vLane}")
    e(f"v_and_b32 v{vT1}, 15, v{vLane}")
    e(f"v_sub_u32 v{vVoff}, v{vLane}, v{vT0}")
    e(f"v_lshrrev_b32 v{vSS}, 4, v{vLane}")
    e(f"v_lshlrev_b32 v{vVoff}, 4, v{vVoff}")
    c("ones pads in the V ring: lane -> slot lane>>4, pair lane&15")
    e(f"v_lshl_add_u32 v{vT1}, v{vSS}, 7, v{vT1}")
    e(f"v_mov_b32 v{vD}, 0x3f80")
    e(f"v_mov_b32 v{vD+1}, 0")
    e(f"v_lshl_add_u32 v{vT1}, v{vT1}, 7, s{sM0V}")
    e(f"ds_write_b64 v{vT1}, {vr(vD,2)} offset:112")
    c("progress flags: one word per wave")
    e(f"s_lshl_b32 s{sTmp}, s{sWave}, 2")
    e(f"s_add_u32 s{sTmp}, s{sTmp}, {LDS_F}")
    e(f"v_mov_b32 v{vFw}, s{sTmp}")
    e(f"v_and_b32 v{vT0}, 3, v{vLane}")
    e(f"v_bfe_u32 v{vSS}, v{vLane}, 2, 2")
    c("group 1 owes nothing to chunk 1 after the barriers: it starts at 1")
    e(f"v_mov_b32 v{vCnt}, s{sG}")
    e(f"ds_write_b32 v{vFw}, v{vCnt}")
    c("staging addresses")
    e(f"v_lshl_add_u32 v{vSS}, v{vT0}, 2, v{vSS}")
    e(f"v_mul_u32_u24 v{vNat}, 56, v{vLane}")
    e(f"v_and_or_b32 v{vSS}, v{vLane}, 48, v{vSS}")
    e(f"v_lshlrev_b32 v{vT0}, 4, v{vT0}")
    e(f"v_mul_u32_u24 v{vTr}, 56, v{vSS}")
    e(f"v_mov_b32 v{vMa}, 0xffff")
    e(f"v_mov_b32 v{vMb}, 0")
    e(f"v_add_u32 v{vNat}, s{sM0R}, v{vNat}")
    e(f"v_add_u32 v{vTr}, s{sM0R}, v{vTr}")
    e(f"v_lshlrev_b64 {vr(vMa,2)}, v{vT0}, {vr(vMa,2)}")
    c("frag write address: (lane>>5)*2048 + (lane&31)*16 + qg*4096 + K slot 0 (group 1) / slot 1 (group 0)")
    e(f"v_lshrrev_b32 v{vR}, 5, v{vLane}")
    e(f"s_lshl_b32 s{sX}, s{sWave}, 12")
    e(f"s_add_u32 s{sX}, s{sX}, {LDS_K}")
    e(f"v_mul_u32_u24 v{vKw}, 1536, v{vR}")
    e(f"v_mov_b32 v{vP+14}, 0x3f803f80")
    e(f"v_add3_u32 v{vKw}, v{vKw}, v{vL16}, s{sX}")
    e(f"v_mov_b32 v{vP+15}, v{vP+14}")
    e(f"s_mov_b32 s{sEps}, 0x358637bd")
    e(f"s_mov_b32 s{sMk}, 0x22222222")
    e(f"s_mov_b32 s{sMk+1}, s{sMk}")
    e(f"s_lshl_b64 s[{sMk+2}:{sMk+3}], s[{sMk}:{sMk+1}], 1")
    e(f"s_lshl_b64 s[{sMk+4}:{sMk+5}], s[{sMk}:{sMk+1}], 2")
    c("output row offset in the staging buffer: (lane&31)*56 + h*32 = lane*56 - h*1760")
    e(f"v_mul_u32_u24 v{vT0}, 1760, v{vR}")
    c("Q rows are staged in the buffer of wave 4 + qg; local block 1 is this wave's own block G, so group 0 swaps the lane halves")
    e(f"s_cmp_eq_u32 s{sG}, 0")
    e(f"s_cselect_b32 s{sTmp}, 1, 8")
    e(f"s_mulk_i32 s{sTmp}, 1792")
    e(f"s_cselect_b32 s{sTmp2}, 3584, 0")
    e(f"v_sub_u32 v{vOoff}, v{vNat}, v{vT0}")
    e(f"v_mul_u32_u24 v{vT1}, s{sTmp2}, v{vR}")
    e(f"v_mov_b64 {vr(vVf+28,2)}, 0")
    e(f"v_sub_u32 v{vT1}, s{sTmp}, v{vT1}")
    e(f"v_mov_b64 {vr(vVf+30,2)}, 0")
    e(f"v_add_u32 v{vNq}, v{vNat}, v{vT1}")
    e(f"v_add_u32 v{vTq}, v{vTr}, v{vT1}")
    c("V transpose-read address: 512*b5 + 128*b3 + 8*sel(b4,b2,b1,b0); sel = pi + 7*b2 with pi = 2*b4 + b1 + 4*b0, 14 (the pad) if pi == 7")
    tab = 0
    for idx in range(16):
        b0, b1, b2, b4 = idx & 1, (idx >> 1) & 1, (idx >> 2) & 1, (idx >> 3) & 1
        pi = 2*b4 + b1 + 4*b0
        tab |= (14 if pi == 7 else pi + 7*b2) << (4*idx)
    e(f"s_mov_b32 s{sTmp}, {hex(tab & 0xffffffff)}")
    e(f"s_mov_b32 s{sTmp2}, {hex(tab >> 32)}")
    e(f"v_mfma_i32_32x32x32_i8 {vr(vO,16)}, {vr(vVf+28,4)}, {vr(vVf+28,4)}, 0")
    e(f"v_and_b32 v{vFr}, 7, v{vLane}")
    e(f"v_lshlrev_b32 v{vT0}, 1, v{vLane}")
    e(f"v_lshlrev_b32 v{vFr}, 2, v{vFr}")
    e(f"v_and_b32 v{vVr}, 40, v{vLane}")
    e(f"v_and_or_b32 v{vT0}, v{vT0}, 32, v{vFr}")
    e(f"v_lshlrev_b32 v{vVr}, 4, v{vVr}")
    e(f"v_lshrrev_b64 {vr(vB,2)}, v{vT0}, s[{sTmp}:{sTmp2}]")
    e(f"v_mfma_i32_32x32x32_i8 {vr(vO+16,16)}, {vr(vVf+28,4)}, {vr(vVf+28,4)}, 0")
    e(f"s_lshl_b32 s{sTmp2}, s{sG}, 13")
    e(f"v_and_b32 v{vB}, 15, v{vB}")
    e(f"v_add_u32 v{vFr}, {LDS_F}, v{vFr}")
    e(f"v_lshl_add_u32 v{vVr}, v{vB}, 3, v{vVr}")
    e(f"v_mov_b32 v{vCnt}, 1")
    e(f"v_add_u32 v{vVr}, s{sTmp2}, v{vVr}")
    e(f"s_add_u32 s{sTmp2}, s{sTmp2}, {LDS_K}")
    e(f"v_mov_b32 v{vIdx}, 0xdddddddd")
    e(f"v_add_u32 v{vKr}, s{sTmp2}, v{vL16}")
    e(f"s_mov_b32 s{sIter}, 0")
    e(f"s_movk_i32 s{sX}, 0x4000")
    def kread(tile, buf):
        o = tile * 2048
        return [f"ds_read_b128 {vr(vKf+8*buf,4)}, v{vKr} offset:{o}",
                f"ds_read_b128 {vr(vKf+8*buf+4,4)}, v{vKr} offset:{o+1024}"]
    def vread(tile, buf):
        o = tile * 2048
        return [f"ds_read_b64_tr_b16 {vr(vVf+8*buf+4*s+2*u,2)}, v{vVr} offset:{o+s*1024+u*256}" for s in range(2) for u in range(2)]
    def m1(T):
        return f"v_mfma_f32_32x32x16_bf16 {vr(vS+16*(T%4),16)}, {vr(vKf+8*((T//2)%2),4)}, {vr(vQ+4*(T%2),4)}, 0"
    def m2(T):
        return f"v_mfma_f32_32x32x16_bf16 {vr(vS+16*(T%4),16)}, {vr(vKf+8*((T//2)%2)+4,4)}, {vr(vQ+8+4*(T%2),4)}, {vr(vS+16*(T%4),16)}"
    def sm(T, s):
        return f"v_smfmac_f32_32x32x32_bf16 {vr(vO+16*(T%2),16)}, {vr(vVf+8*((T//2)%4)+4*s,4)}, {vr(vS+16*(T%4)+8*s,8)}, v{vIdx}"
    def ex(T, j):
        r = vS + 16*(T%4) + j
        return f"v_exp_f32 v{r}, v{r}"

    def vtwo(chunk):
        for half in range(2):
            e(f"s_lshl_b32 s{sTmp}, s{sQg}, 11")
            e(f"s_mul_i32 s{sTmp2}, s{sQg}, 1792")
            if chunk or half:
                e(f"s_add_u32 s{sTmp}, s{sTmp}, {chunk*16384 + half*8192}")
                e(f"s_add_u32 s{sTmp2}, s{sTmp2}, {chunk*CH + half*7168}")
            for t in vdma_l(m0=sTmp, off=sTmp2, adv=False, fl=opt.nt0): e(t)
    def tproc():
        c("c = t*log2e")
        e(f"v_lshlrev_b32 v{vTv}, 16, v{vTv}")
        e(f"v_mul_f32 v{vT0}, 0x3fb8aa3b, v{vTv}")
        e(f"v_readfirstlane_b32 s{sAbsT}, v{vTv}")
        e(f"v_readfirstlane_b32 s{sScale}, v{vT0}")
        e(f"v_mov_b32 v{vQ+15}, 0")
        c("the shift |t|*log2e bounds every logit; it is used only while it cannot underflow a row (|t| <= 16)")
        e(f"s_and_b32 s{sAbsT}, s{sAbsT}, 0x7fffffff")
        e(f"s_or_b32 s{sTmp2}, s{sScale}, 0x80000000")
        e(f"s_lshr_b32 s{sTmp2}, s{sTmp2}, 16")
        e(f"s_cmp_gt_u32 s{sAbsT}, {'0x41800000' if not opt.force_fallback else '0'}")
        e(f"s_cselect_b32 s{sTmp2}, 0, s{sTmp2}")
        e(f"s_cselect_b32 s{sAbsT}, 1, 0")
        e(f"v_mov_b32 v{vQ+14}, s{sTmp2}")
    def x3():
        vtwo(1)
        for t in rawnext_l(fl=opt.nt0): e(t)
    v0 = vread(0, 0); v1 = vread(1, 1); k0 = kread(0, 0); k1 = kread(1, 1)
    e(f"s_mul_i32 s{sVoffs}, s{sWave}, 1792")
    e(f"s_add_u32 s{sM0V}, s{sM0V}, 0x8000")
    e(f"s_add_u32 s{sVoffs}, s{sVoffs}, {2*CH}")
    e(f"s_sub_u32 s{sPre}, s{sM0R}, s{sAlt}")
    e(f"v_subrev_u32 v{vNat}, s{sPre}, v{vNat}")
    e(f"v_subrev_u32 v{vTr}, s{sPre}, v{vTr}")
    e(f"s_cmp_eq_u32 s{sG}, 0")
    e("s_cbranch_scc1 L_st4")
    c("group 1: V0, K2 rows; K0 rows -> fragments")
    vtwo(0)
    e(f"s_add_u32 s{sKnext}, s{sKnext}, {2*CH}")
    n2 = 4 if opt.k2pos == 0 else 0
    if opt.k2pos == 0:
        for t in rawnext_l(fl=opt.nt0): e(t)
    lst(5)
    e(f"s_waitcnt vmcnt({8 + n2})")
    tproc()
    e(f"s_waitcnt vmcnt({4 + n2})")
    lst(3)
    e(f"s_call_b64 s[{sRet}:{sRet+1}], L_prep")
    lst(4)
    if opt.k2pos == 1:
        for t in rawnext_l(fl=opt.nt0): e(t)
    e(f"v_add_u32 v{vNat}, s{sPre}, v{vNat}")
    e(f"v_add_u32 v{vTr}, s{sPre}, v{vTr}")
    e(f"s_setprio {opt.g1prio}")
    e("s_branch L_st6")
    lab("L_st4")
    c("group 0: K1 rows, V1")
    e(f"s_add_u32 s{sTmp}, s{sKnext}, {CH}")
    for t in rawdma_l(sK, sTmp, sAlt, fl=opt.nt0): e(t)
    vtwo(1)
    lst(5)
    e(f"s_add_u32 s{sKnext}, s{sKnext}, {3*CH}")
    e("s_waitcnt vmcnt(12)")
    tproc()
    e(f"s_setprio {opt.p_start}")
    e("s_waitcnt vmcnt(8)")
    lst(3); lst(4)
    lab("L_st6")
    e("s_waitcnt lgkmcnt(0)")
    lst(0)
    e("s_barrier")
    lst(2)
    c("normalise and scale the 64 Q rows straight into B fragments")
    for m in range(7): e(f"ds_read_b64 {vr(vP+2*m,2)}, v{vNq} offset:{8*m}")
    for m in range(7): e(f"ds_read_b64_tr_b16 {vr(vTt+2*m,2)}, v{vTq} offset:{8*m}")
    for m in range(7):
        e(f"s_waitcnt lgkmcnt({13 - m})")
        if m > 0: e("s_nop 0")
        e(grams[m])
    for t in k0 + k1: e(t)
    e(f"s_setprio {opt.pmid}")
    for t in sels: e(t)
    e(norm[0]); e("s_nop 0"); e(norm[1]); e(norm[2]); e("s_nop 0")
    e(f"v_mul_f32 v{vR}, s{sScale}, v{vR}")
    for t in norm[3:]: e(t)
    e("s_waitcnt lgkmcnt(4)")
    e("s_nop 0")
    for t in smalls: e(t)
    for i in range(14):
        e(f"v_cvt_pk_bf16_f32 v{vQ+i}, v{vD+2*i}, v{vD+2*i+1}")
    for i in range(4):
        e(f"v_permlane32_swap_b32 v{vQ+i}, v{vQ+4+i}")
    for i in range(4):
        e(f"v_permlane32_swap_b32 v{vQ+8+i}, v{vQ+12+i}")
    e("s_waitcnt lgkmcnt(0)")
    lst(6)
    e(m1(0)); e(m2(0))
    e(f"s_cmp_eq_u32 s{sG}, 0")
    e("s_cbranch_scc1 L_st7")
    c("V0 has landed")
    e(f"s_waitcnt vmcnt(4)")
    e("s_barrier")
    e("s_branch L_st8")
    lab("L_st7")
    e("s_barrier")
    e(f"s_setprio {opt.pk1}")
    e("s_waitcnt vmcnt(4)")
    e(f"s_call_b64 s[{sRet}:{sRet+1}], L_prep")
    e(f"v_add_u32 v{vNat}, s{sPre}, v{vNat}")
    e(f"v_add_u32 v{vTr}, s{sPre}, v{vTr}")
    e("s_waitcnt vmcnt(0)")
    e(f"ds_write_b32 v{vFw}, v{vCnt}")
    lab("L_st8")
    e(f"s_cmp_lg_u32 s{sAbsT}, 0")
    e("s_cbranch_scc1 L_special")
    lab("L_fill")
    lst(7)
    for t in v0: e(t)
    e(f"s_setprio {opt.pf0}")
    e(f"s_cmp_eq_u32 s{sG}, 0")
    e("s_cbranch_scc1 L_pf")
    e(f"s_setprio {opt.pf1}")
    lab("L_pf")
    wst(); lst(8)
    c("first tile: also computes the scores of tile 1")
    k2 = kread(2, 0); v2 = vread(2, 2); vd = vdma_l()
    ei = 0; nl = 0
    for ch in opt.pat0:
        if ch == 'e': e(ex(0, ei)); ei += 1
        elif ch == 'E': e(m1(1))
        elif ch == 'G': e(m2(1))
        elif ch == 'B': e(m1(2))
        elif ch == 'C': e(m2(2))
        elif ch == 'D': e(sm(0, 0))
        elif ch == 'a': e(v1.pop(0)); nl += 1
        elif ch == 'k': assert not v1; e(k2.pop(0)); nl += 1
        elif ch == 'v': assert not k2; e(v2.pop(0)); nl += 1
        elif ch == 'w': e(f"s_waitcnt lgkmcnt({nl})")
        elif ch == 'V':
            for t in vd[0:3] + ["s_mov_b64 exec, -1"]: e(t)
        elif ch == 'U':
            for t in [vd[3], vd[1], vd[5], vd[6], vd[4]] + vd[7:]: e(t)
    assert ei == 16 and len(v2) == 2
    e(f"s_cmp_eq_u32 s{sG}, 0")
    e("s_cbranch_scc1 L_B1")
    e("s_branch L_A1")

    lab("L_prep")
    lst(0, True)
    for m in range(7): e(f"ds_read_b64 {vr(vP+2*m,2)}, v{vNat} offset:{8*m}")
    for s in tr_reads: e(s)
    lst(1, True)
    for m in range(7):
        e(f"s_waitcnt lgkmcnt({13 - m})")
        if m > 0: e("s_nop 0")
        e(grams[m])
        if m == 0: lst(2, True)
    lst(5, True)
    e("s_nop 4")
    for t in sels: e(t)
    e(norm[0]); e("s_nop 0"); e(norm[1]); e(norm[2]); e("s_nop 0")
    for s in norm[3:]: e(s)
    lst(6, True)
    e("s_waitcnt lgkmcnt(0)")
    e("s_nop 0")
    for s in smalls: e(s)
    lst(7, True)
    for i in range(14):
        e(cvts[i])
        if i % 4 == 3: e(writes[i // 4])
    e(writes[3])
    lst(8, True)
    e(f"v_xor_b32 v{vKw}, 0x8000, v{vKw}")
    e(f"s_setpc_b64 s[{sRet}:{sRet+1}]")

    nskip = [0]
    def build_half(name, pats):
        ops = []
        q = dict(n=list(nat_reads), t=list(tr_reads), g=list(grams), x=list(sels), s=list(norm), m=list(smalls), c=list(cvts), W=list(writes))
        cnt = dict(n=0, t=0, g=0, x=0, s=0, m=0, c=0, W=0, X=0)
        def add(t, lid=None, needs=()): ops.append((t, lid, list(needs)))
        for T in range(8):
            j = T // 2
            if T == 1: add(f"L_{name}1:")
            if opt.ws and T in opt.stampT:
                for s in wst_l(): add(s)
            if T % 2 == 0:
                rd_k = kread((j + 2) % 4, j % 2); rd_v = vread((j + 2) % 4, (j + 2) % 4)
                ki = vi = 0
            ei = 0
            for ch in pats[T]:
                if ch == 'e': add(ex(T, ei)); ei += 1
                elif ch == 'A':
                    add(sm(T - 1, 1), needs=[('v', ((T-1)//2), 2), ('v', ((T-1)//2), 3)])
                elif ch == 'B': add(m1(T + 2), needs=[('k', j + 1, 0)])
                elif ch == 'C': add(m2(T + 2), needs=[('k', j + 1, 1)])
                elif ch == 'D': add(sm(T, 0), needs=[('v', j, 0), ('v', j, 1)])
                elif ch == 'k': add(rd_k[ki], lid=('k', j + 2, ki)); ki += 1
                elif ch == 'v': add(rd_v[vi], lid=('v', j + 2, vi)); vi += 1
                elif ch == 'w': add("WAIT")
                elif ch == 'n': add(q['n'][cnt['n']], lid=('n', 0, cnt['n'])); cnt['n'] += 1
                elif ch == 't': add(q['t'][cnt['t']], lid=('t', 0, cnt['t'])); cnt['t'] += 1
                elif ch in '0123':
                    if opt.prio: add(f"s_setprio {opt.pmap[int(ch)]}")
                elif ch == 'g': add(q['g'][cnt['g']], needs=[('n', 0, cnt['g'] // 2)]); cnt['g'] += 1
                elif ch == 'x': assert cnt['g'] == 7; add(q['x'][cnt['x']]); cnt['x'] += 1
                elif ch == 's': assert cnt['x'] == 3; add(q['s'][cnt['s']]); cnt['s'] += 1
                elif ch == 'm': assert cnt['s'] == 6; add(q['m'][cnt['m']], needs=[('t', 0, cnt['m'])]); cnt['m'] += 1
                elif ch == 'c': assert cnt['m'] > cnt['c'] // 2; add(q['c'][cnt['c']]); cnt['c'] += 1
                elif ch == 'W':
                    assert cnt['c'] >= min(14, 4*cnt['W'] + 4)
                    add(q['W'][cnt['W']], lid=('W', 0, cnt['W'])); cnt['W'] += 1
                    if cnt['W'] == 4: pending_xor = True
                elif ch == 'X':
                    l = rawnext_l()
                    parts = [l[0:3], l[3:4], l[4:5], l[5:]]
                    for t in parts[cnt['X']]: add(t)
                    cnt['X'] += 1
                elif ch == 'Y': add("s_waitcnt vmcnt(2)")
                elif ch == 'z': add(f"s_cmp_ge_u32 s{sIter}, 5")
                elif ch == '[':
                    nskip[0] += 1; add(f"s_cbranch_scc1 L_skip{nskip[0]}")
                elif ch == ']': add(f"L_skip{nskip[0]}:")
                elif ch == 'V':
                    add(f"s_mov_b32 m0, s{sM0V}")
                    add(f"s_mov_b64 exec, s[{sExV}:{sExV+1}]")
                    add(f"buffer_load_dwordx4 v{vVoff}, s[{sV}:{sV+3}], s{sVoffs} offen{opt.ntl} lds")
                    add(f"s_mov_b64 exec, -1")
                elif ch == 'U':
                    add(f"s_add_u32 m0, s{sM0V}, 128")
                    add(f"s_mov_b64 exec, s[{sExV}:{sExV+1}]")
                    add(f"buffer_load_dwordx4 v{vVoff}, s[{sV}:{sV+3}], s{sVoffs} offen offset:896{opt.ntl} lds")
                    add(f"s_mov_b64 exec, -1")
                elif ch == 'p':
                    add(f"ds_write_b32 v{vFw}, v{vCnt}", lid=('p', 0, 0))
                elif ch == 'q': add(f"s_cmp_eq_u32 s{sIter}, 7")
                elif ch == 'T': add("s_cbranch_scc1 L_tail")
                elif ch == 'y': add("s_waitcnt vmcnt(0)")
                elif ch == 'f': add(f"ds_read_b32 v{vFlag}, v{vFr}", lid=('f', 0, 0))
                elif ch == 'F':
                    add(f"v_cmp_lt_u32 vcc, v{vFlag}, v{vCnt}", needs=[('f', 0, 0)])
                    add(f"v_xor_b32 v{vKr}, s{sX}, v{vKr}")
                    add(f"v_xor_b32 v{vVr}, s{sX}, v{vVr}")
                    add(f"s_cbranch_vccnz L_spin{name}")
                    add(f"L_back{name}:")
                    add(f"v_add_u32 v{vCnt}, 1, v{vCnt}")
                    add(f"s_xor_b32 s{sX}, s{sX}, 0x8000")
                elif ch == 'i':
                    it = [f"s_add_u32 s{sIter}, s{sIter}, 1"]
                    add(it[cnt.setdefault('i', 0)]); cnt['i'] += 1
                elif ch == 'a':
                    adv = [f"s_add_u32 s{sM0V}, s{sM0V}, 0x4000", f"s_and_b32 s{sM0V}, s{sM0V}, 0xffff",
                           f"s_add_u32 s{sVoffs}, s{sVoffs}, {CH}"]
                    add(adv[cnt.setdefault('a', 0)]); cnt['a'] += 1
                elif ch == 'P':
                    add(f"ds_write_b32 v{vFw}, v{vCnt}", lid=('P', 0, 0))
                    if name == 'A':
                        assert cnt['W'] == 4
                        add(f"v_xor_b32 v{vKw}, 0x8000, v{vKw}")
                else: raise ValueError(ch)
            assert ei == 16, (name, T, ei)
            if T % 2 == 1: assert ki == 2 and vi == 4
        if name == 'A':
            assert cnt == dict(n=4, t=7, g=7, x=3, s=6, m=7, c=14, W=4, X=0, a=3, i=1), cnt
        return ops

    halves = {'A': build_half('A', opt.patA), 'B': build_half('B', opt.patB)}
    def shift(ops):
        out = []
        for t, lid, needs in ops:
            if lid is not None:
                lid = (lid[0], lid[1] - 4, lid[2]) if lid[0] in 'kv' else (lid[0], -1, lid[2])
            out.append((t, lid, []))
        return out
    def resolve(name):
        ops = halves[name]
        res = {}
        for pred in 'AB':
            seq = shift(halves[pred]) + ops
            base = len(seq) - len(ops)
            pos = {lid: i for i, (t, lid, n) in enumerate(seq) if lid is not None}
            waits = [i for i in range(base, len(seq)) if seq[i][0] == "WAIT"]
            covered = -1
            covered = pos[('k', 0, 1)]
            for i in range(base, len(seq)):
                t, lid, needs = seq[i]
                if t == "WAIT":
                    nxt = min([w for w in waits if w > i] + [len(seq)])
                    need = [pos[x] for k in range(i, nxt) for x in seq[k][2] if x in pos]
                    tgt = max(need + [covered])
                    assert tgt < i, ("wait placed before its load", name, seq[tgt][0])
                    n = sum(1 for k in range(tgt + 1, i) if seq[k][1] is not None)
                    res[i - base] = min(res.get(i - base, 15), n)
                    covered = tgt
                for x in needs:
                    if x in pos: assert pos[x] <= covered, ("uncovered", name, t, x)
                    else: assert x[0] == 'v' and x[1] < -2 or x[1] <= -2, x
        out = [(f"s_waitcnt lgkmcnt({res[i]})" if t == "WAIT" else t) for i, (t, lid, n) in enumerate(ops)]
        return [t for t in out if not any(re.search(d, t) for d in opt.drop)]

    L.append(".p2align 3")
    lab("L_A")
    for t in resolve('A'):
        (L.append(t) if t.endswith(":") else e(t))
    lab("L_B")
    for t in resolve('B'):
        (L.append(t) if t.endswith(":") else e(t))
    e(f"s_cmp_lt_u32 s{sIter}, 6")
    e("s_cbranch_scc1 L_A")
    e("s_branch L_B")
    lab("L_tail")
    c("last two tiles; local block 0 goes to the partner wave, local block 1 is finished here")
    e(f"s_lshl_b32 s{sTmp}, s{sWave}, 12")
    e(f"s_add_u32 s{sTmp}, s{sTmp}, {LDS_K}")
    e(f"v_add_u32 v{vT0}, s{sTmp}, v{vL16}")
    e(f"v_xor_b32 v{vT1}, 0x4000, v{vT0}")
    if opt.st_lin:
        e(f"v_add_u32 v{vSS}, s{sM0R}, v{vL16}")
    no = nr = 0
    tv = vread(3, 3)[2:]
    vF = vO + 16
    for T, Tp, Tn, pat in opt.patT:
        ei = 0
        for ch in pat:
            if ch == 'e': e(ex(T, ei)); ei += 1
            elif ch == 'A': e(sm(Tp, 1))
            elif ch == 'B': e(m1(Tn))
            elif ch == 'C': e(m2(Tn))
            elif ch == 'D': assert ei >= 10; e(sm(T, 0))
            elif ch == 'w': e("s_waitcnt lgkmcnt(0)")
            elif ch == 'y': e("s_waitcnt vmcnt(0)")
            elif ch == 'n': e("s_nop 0")
            elif ch == 'K': e("s_waitcnt lgkmcnt(2)")
            elif ch == 'v': e(tv.pop(0))
            elif ch == 'b': e("s_barrier")
            elif ch in '0123':
                if opt.prio: e(f"s_setprio {opt.pmap[int(ch)]}")
            elif ch == 'O':
                e(f"ds_write_b128 v{vT0}, {vr(vO+4*no,4)} offset:{1024*no}"); no += 1
            elif ch == 'R':
                e(f"ds_read_b128 {vr(vD+4*nr,4)}, v{vT1} offset:{1024*nr}"); nr += 1
            elif ch == 'a':
                for j in range(0, 16, 2):
                    e(f"v_pk_add_f32 {vr(vF+j,2)}, {vr(vF+j,2)}, {vr(vD+j,2)}")
            else: raise ValueError(ch)
        assert ei == 16
    assert no == 4 and nr == 4
    e("s_nop 1")
    e(sm(7, 1))
    wst()
    e("s_nop 11")
    e(f"v_mov_b32 v{vT0}, v{vF+12}")
    e(f"v_mov_b32 v{vT1}, v{vF+12}")
    e("s_nop 1")
    e(f"v_permlane32_swap_b32 v{vT0}, v{vT1}")
    e(f"v_rcp_f32 v{vB}, v{vT1}")
    e("s_nop 0")
    if True:
        c("rows -> own staging buffer -> whole lines")
        for j in range(4):
            e(f"v_pk_mul_f32 {vr(vF+4*j,2)}, {vr(vF+4*j,2)}, {vr(vB,2)} op_sel_hi:[1,0]")
            e(f"v_pk_mul_f32 {vr(vF+4*j+2,2)}, {vr(vF+4*j+2,2)}, {vr(vB,2)} op_sel_hi:[1,0]")
            e(f"v_cvt_pk_bf16_f32 v{vP+2*j}, v{vF+4*j}, v{vF+4*j+1}")
            e(f"v_cvt_pk_bf16_f32 v{vP+2*j+1}, v{vF+4*j+2}, v{vF+4*j+3}")
            if j == 3: e("s_mov_b32 exec_hi, 0")
            e(f"ds_write_b64 v{vOoff}, {vr(vP+2*j,2)} offset:{8*j}")
        e("s_mov_b32 exec_hi, -1")
        e(f"ds_read_b128 {vr(vD,4)}, v{vSS}")
        e(f"ds_read_b128 {vr(vD+4,4)}, v{vSS} offset:1024")
        e("s_waitcnt lgkmcnt(1)")
        e(f"buffer_store_dwordx4 {vr(vD,4)}, v{vL16}, s[{sO}:{sO+3}], s{sOoff} offen{opt.st_flags}")
        e("s_mov_b32 exec_hi, 0xffff")
        e("s_waitcnt lgkmcnt(0)")
        e(f"buffer_store_dwordx4 {vr(vD+4,4)}, v{vL16}, s[{sO}:{sO+3}], s{sOoff} offen offset:1024{opt.st_flags}")
    if opt.ws:
        e("s_mov_b64 exec, -1")
        if opt.lazy:
            lst(9)
            e("s_waitcnt lgkmcnt(0)")
            for k in range(10):
                e(f"s_sub_u32 s74, s{80+2*k}, s72")
                e(f"v_writelane_b32 v{vSt}, s74, {k}")
            e(f"v_writelane_b32 v{vSt}, s71, 10")
            e("s_mov_b32 s70, 11")
        wst()
        e("s_waitcnt vmcnt(0)")
        wst()
        e("s_memrealtime s[78:79]")
        e("s_load_dwordx2 s[80:81], s[0:1], 48")
        e("s_waitcnt lgkmcnt(0)")
        e("s_mov_b32 s82, 0x1000000"); e("s_mov_b32 s83, 0x00020000")
        e(f"v_writelane_b32 v{vSt}, s70, 31")
        e(f"v_writelane_b32 v{vSt}, s76, 30")
        e(f"v_writelane_b32 v{vSt}, s78, 29")
        e(f"s_lshl_b32 s3, s2, 3"); e(f"s_add_u32 s3, s3, s{sWave}"); e("s_lshl_b32 s3, s3, 7")
        e(f"v_lshlrev_b32 v1, 2, v{vLane}")
        e("s_mov_b32 exec_hi, 0")
        e(f"buffer_store_dword v{vSt}, v1, s[80:83], s3 offen")
    if opt.padto:
        e("s_waitcnt vmcnt(0)")
        lab("L_pspin")
        e("s_memrealtime s[78:79]")
        e("s_waitcnt lgkmcnt(0)")
        e("s_sub_u32 s84, s78, s76")
        e(f"s_cmp_lt_u32 s84, {opt.padto}")
        e("s_cbranch_scc1 L_pspin")
    lab("L_end")
    e("s_endpgm")

    for name in 'AB':
        lab(f"L_spin{name}")
        c("some wave has not yet published the next chunk: wait for it")
        if opt.ws:
            e(f"s_lshl_b32 s{sTmp}, s{sIter}, 2")
            e(f"s_lshl_b32 s{sTmp}, 1, s{sTmp}")
            e(f"s_add_u32 s71, s71, s{sTmp}")
        e(f"s_sleep {opt.sleep}")
        e(f"ds_read_b32 v{vFlag}, v{vFr}")
        e("s_waitcnt lgkmcnt(0)")
        e(f"v_cmp_lt_u32 vcc, v{vFlag}, v{vCnt}")
        e(f"s_cbranch_vccnz L_spin{name}")
        e(f"s_branch L_back{name}")

    lab("L_special")
    e(f"s_cmp_eq_u32 s{sMode}, 0")
    e("s_cbranch_scc1 L_maxpass")
    c("second pass: put -max into the pad slots of the Q fragments (lanes 32..63)")
    e("s_waitcnt lgkmcnt(0)")
    e("s_mov_b32 exec_lo, 0")
    e(f"v_mov_b32 v{vQ+10}, v{vPad}")
    e(f"v_mov_b32 v{vQ+11}, v{vPad+1}")
    e(f"v_mov_b32 v{vQ+14}, v{vPad+2}")
    e(f"v_mov_b32 v{vQ+15}, v{vPad+3}")
    e("s_mov_b32 exec_lo, -1")
    e("s_nop 7")
    e(m1(0)); e(m2(0))
    e("s_nop 7")
    e("s_branch L_fill")
    lab("L_maxpass")
    mx = [vPad, vPad + 2]
    e(f"v_mov_b32 v{mx[0]}, 0xff800000")
    e(f"v_mov_b32 v{mx[1]}, 0xff800000")
    lab("L_mloop")
    c("chunk sIter is in LDS; group (sIter & 1) normalises chunk sIter + 1 (chunk 1 is done, K2 is staged)")
    e(f"s_add_u32 s{sTmp}, s{sIter}, s{sG}")
    e(f"s_bitcmp1_b32 s{sTmp}, 0")
    e("s_cbranch_scc1 L_mnoprep")
    e(f"s_cmp_eq_u32 s{sIter}, 7")
    e("s_cbranch_scc1 L_mnoprep")
    e(f"s_cmp_eq_u32 s{sIter}, 0")
    e("s_cbranch_scc1 L_mnoprep")
    e(f"s_cmp_eq_u32 s{sIter}, 1")
    e("s_cbranch_scc1 L_mhave")
    for t in rawnext_l(): e(t)
    lab("L_mhave")
    e(f"s_waitcnt vmcnt(0) lgkmcnt(0)")
    e(f"s_call_b64 s[{sRet}:{sRet+1}], L_prep")
    lab("L_mnoprep")
    for j in range(4):
        for s in kread(j, 0): e(s)
        e("s_waitcnt lgkmcnt(0)")
        e(m1(0)); e(m2(0)); e(m1(1)); e(m2(1))
        e("s_nop 15")
        for b in range(2):
            for i in range(0, 16, 2):
                e(f"v_max3_f32 v{mx[b]}, v{vS+16*b+i}, v{vS+16*b+i+1}, v{mx[b]}")
    e("s_barrier")
    e(f"v_xor_b32 v{vKr}, s{sX}, v{vKr}")
    e(f"s_xor_b32 s{sX}, s{sX}, 0x8000")
    e(f"s_add_u32 s{sIter}, s{sIter}, 1")
    e(f"s_cmp_lt_u32 s{sIter}, 8")
    e("s_cbranch_scc1 L_mloop")
    c("combine the two lane halves and the partner wave (whose local blocks are swapped)")
    for b in range(2):
        e(f"v_mov_b32 v{vT0}, v{mx[b]}")
        e("s_nop 1")
        e(f"v_permlane32_swap_b32 v{mx[b]}, v{vT0}")
        e("s_nop 1")
        e(f"v_max_f32 v{mx[b]}, v{mx[b]}, v{vT0}")
    e(f"s_lshl_b32 s{sTmp}, s{sWave}, 12")
    e(f"s_add_u32 s{sTmp}, s{sTmp}, {LDS_K}")
    e(f"v_add_u32 v{vT0}, s{sTmp}, v{vL16}")
    e(f"v_xor_b32 v{vT1}, 0x4000, v{vT0}")
    e("s_waitcnt vmcnt(0) lgkmcnt(0)")
    e(f"ds_write_b32 v{vT0}, v{mx[0]}")
    e(f"ds_write_b32 v{vT0}, v{mx[1]} offset:4")
    e("s_waitcnt lgkmcnt(0)")
    e("s_barrier")
    e(f"ds_read_b64 {vr(vD,2)}, v{vT1}")
    e("s_waitcnt lgkmcnt(0)")
    e("s_barrier")
    e(f"s_mov_b32 s{sTmp}, 0xffff0000")
    for b in range(2):
        m = mx[b]
        e(f"v_max_f32 v{m}, v{m}, v{vD+1-b}")
        c("split -max into three bf16 parts")
        e(f"v_sub_f32 v{m}, 0, v{m}")
        e(f"v_and_b32 v{vT0}, s{sTmp}, v{m}")
        e(f"v_sub_f32 v{m}, v{m}, v{vT0}")
        e(f"v_and_b32 v{vT1}, s{sTmp}, v{m}")
        e(f"v_sub_f32 v{m}, v{m}, v{vT1}")
        e(f"v_lshrrev_b32 v{m+1}, 16, v{m}")
        e(f"v_lshrrev_b32 v{vT0}, 16, v{vT0}")
        e(f"v_or_b32 v{m}, v{vT0}, v{vT1}")
    e(f"s_mov_b32 s{sMode}, 1")
    e("s_branch L_restart")

    txt = HEADER + f"; @launch grid=(256,1,1) block=(512,1,1) lds={LDS_TOTAL}\n"
    txt += """.amdgcn_target "amdgcn-amd-amdhsa--gfx950"
.text
.globl standalone__qk_norm__prompt_kernel
.p2align 8
.type standalone__qk_norm__prompt_kernel,@function
standalone__qk_norm__prompt_kernel:
"""
    txt += "\n".join(L) + "\n"
    txt += f""".section .rodata,"a"
.p2align 6
.amdhsa_kernel standalone__qk_norm__prompt_kernel
  .amdhsa_next_free_vgpr {NV}
  .amdhsa_next_free_sgpr {102 if (opt.ws or opt.padto) else 72}
  .amdhsa_accum_offset {(NV+3)//4*4}
  .amdhsa_group_segment_fixed_size 0
  .amdhsa_kernarg_size 56
  .amdhsa_user_sgpr_count 2
  .amdhsa_user_sgpr_kernarg_segment_ptr 1
  .amdhsa_system_sgpr_workgroup_id_x 1
.end_amdhsa_kernel
"""
    return txt

if __name__ == "__main__":
    opt = Opt()
    out = sys.argv[1]
    for a in sys.argv[2:]:
        k, v = a.split("=", 1)
        assert hasattr(opt, k), k
        setattr(opt, k, eval(v))
    open(out, "w").write(gen(opt))
```

```python
import sys, re

HEADER = """; Kernarg layout for this problem (56 bytes, ptrs only, base s[0:1]):
"""

PAT_B = [
 "eeA3wkeeeeBkeeeeCveeeeDvee",
 "eeAveeeeBzveeeeCeeeeD[XXXX]ee",
 "eeA2wkeeeeBkeeeeCqveeeeDvpeeT",
 "eeA1veeeeBveeeeC0feeeeDjjee",
 "eeA3wFkeeeeBkeeeeCveeeeDvee",
 "eeAzveeeeByveeeeC[V]eeeeD[U]ee",
 "eeA2wkeeeeBakeeeeCaveeeeDaivee",
 "eeA1veeeeBveeeeC0eeeeDPee",
]
PAT_A = [
 "eeA3wkeeeeBkeeeeCveeeeDvee",
 "eeAveeeeBveeeeCYnneeeeDnnee",
 "eeA2wkteeegeBkteeegeCvteeegeDvtee",
 "egeA1vteeegeBvteeegeC0fteeegeDjjee",
 "eeA3wFkexexexeBkesesesesCvesseemeDvee",
 "emeAzveecemeByvececemeC[V]ececemeD[U]ecec",
 "emeA2wkececemeBakWececeeCavWeceecceDaivee",
 "eeA1vWeeeeBvWeeeeC0eeeeDPee",
]
PAT_T = [
 (3, 2, 6, "eeA1Kveeee" "BveeeeC0eeeeDee"),
 (4, 3, 5, "eeA3eeeeBeeeeCeeeeDee"),
 (6, 4, 7, "eeA2weeeeBeeeeCeeeeD1ee"),
 (5, 6, 0, "eeAeeee0eeeeDeeeOeOeOeO"),
 (7, 5, 0, "eeAwbReReReReeeeewaeeDeeee"),
]

class Opt:
    ws = False
    patT = PAT_T
    st_flags = ' sc1'
    st_lin = True
    g1prio = 3
    v1pos = 0
    v1wait = 1
    touch = 0
    k1early = 0
    bpos = 0
    lazy = False
    jit = 0
    cpf = 1
    padat = -1
    qdelay = 1
    dry = False
    g1early = 0
    nt0 = ''
    add64 = 0
    dsadd = 1
    ntl = ''
    pf0 = 3
    pf1 = 3
    pat0 = 'eeEaaeeeGaaeeeBkVeeeCkUeewDvveee'
    v0pos = 1
    xpos = 2
    pmid = 3
    drop = ()
    padto = 0
    force_fallback = False
    patA = PAT_A
    patB = PAT_B
    prio = True
    pmap = '0123'
    p_start = 2
    sleep = 1
    stampT = (4,)

def gen(opt):
    L = []
    def e(s): L.append("    " + s)
    def lab(s): L.append(s + ":")
    def c(s): L.append("    ; " + s)

    HB = 114688
    CH = 14336
    LDS_V = 0
    LDS_K = 65536
    LDS_Q = LDS_K + 3*16384
    LDS_R = 131072
    LDS_F = LDS_R + 8*3584
    LDS_TOTAL = LDS_F + 2048
    vLane, vL16, vVoff, vKw, vKr, vVr, vIdx, vT0 = 0, 1, 2, 3, 4, 5, 6, 7
    vNat, vTr, vMa, vMb, vOoff, vT1, vSS, vR = 8, 9, 10, 11, 12, 13, 14, 15
    vQ = 16
    vO = 32
    vS = 64
    vKf = 128
    vVf = 144
    vP = 176
    vTt = 192
    vB = 206
    vD = 208
    vPad = 236
    vSt, vTv, vNq = 240, 241, 242
    vTq = 247
    vFw, vFr, vFlag, vCnt = 243, 244, 245, 246
    NV = 248
    sK, sV, sO, sR = 20, 24, 28, 48
    sWave, sHead, sQb, sG, sQg = 32, 33, 34, 35, 36
    sIter, sKnext, sVoffs, sM0V, sM0R = 37, 38, 39, 40, 41
    sT, sScale, sEps, sOoff = 42, 43, 44, 45
    sTmp, sTmp2 = 46, 47
    sExV = 52
    sRet = 54
    sMode, sAbsT = 56, 57
    sPre, sX = 58, 59
    sAlt = 60
    sD = 14
    sMk = 64

    def vr(b, n): return f"v[{b}:{b+n-1}]"

    def wst_l():
        if not opt.ws: return []
        return ["s_memtime s[74:75]", "s_waitcnt lgkmcnt(0)", "s_sub_u32 s74, s74, s72", "s_mov_b32 m0, s70", "s_nop 0",
                f"v_writelane_b32 v{vSt}, s74, m0", "s_add_u32 s70, s70, 1"]
    njit = [0]
    def jit_l():
        if not opt.jit: return []
        njit[0] += 1
        return ["s_mul_i32 s63, s63, 0x41c64e6d", "s_add_u32 s63, s63, 12345", "s_bfe_u32 s62, s63, 0x30014", "s_cmp_lg_u32 s62, 0",
                f"s_cbranch_scc1 L_jit{njit[0]}", f"s_sleep {opt.jit}", f"L_jit{njit[0]}:"]
    def jit():
        for t in jit_l(): (L.append(t) if t.endswith(":") else e(t))
    def wst():
        if opt.lazy: return
        for s in wst_l(): e(s)
    def lst(k):
        if k != 1: jit()
        if opt.padto and opt.padat == k: e("s_memrealtime s[76:77]")
        if opt.lazy: e(f"s_memtime s[{80+2*k}:{81+2*k}]")

    def rawdma_l(srd, soff, m0=None, fl=None):
        fl = opt.ntl if fl is None else fl
        r = [f"s_mov_b32 m0, s{sM0R if m0 is None else m0}", "s_nop 0"]
        for i in range(3):
            r.append(f"buffer_load_dwordx4 v{vL16}, s[{srd}:{srd+3}], s{soff} offen offset:{1024*i}{fl} lds")
        r.append("s_mov_b32 exec_hi, 0")
        r.append(f"buffer_load_dwordx4 v{vL16}, s[{srd}:{srd+3}], s{soff} offen offset:3072{fl} lds")
        r.append("s_mov_b32 exec_hi, -1")
        return r
    def rawnext_l(fl=None):
        return rawdma_l(sK, sKnext, fl=fl) + [f"s_add_u32 s{sKnext}, s{sKnext}, {2*CH}"]

    def vdma_l(m0=None, off=None, adv=True, fl=None):
        fl = opt.ntl if fl is None else fl
        m0 = sM0V if m0 is None else m0
        off = sVoffs if off is None else off
        r = [f"s_mov_b32 m0, s{m0}",
             f"s_mov_b64 exec, s[{sExV}:{sExV+1}]",
             f"buffer_load_dwordx4 v{vVoff}, s[{sV}:{sV+3}], s{off} offen{fl} lds",
             f"s_add_u32 m0, s{m0}, 128",
             f"s_add_u32 s{sM0V}, s{sM0V}, 0x4000" if adv else "s_nop 0",
             f"buffer_load_dwordx4 v{vVoff}, s[{sV}:{sV+3}], s{off} offen offset:896{fl} lds",
             f"s_mov_b64 exec, -1"]
        if adv:
            r += [f"s_and_b32 s{sM0V}, s{sM0V}, 0xffff", f"s_add_u32 s{sVoffs}, s{sVoffs}, {CH}"]
        return r

    nat_reads = [f"ds_read2_b64 {vr(vP+4*i,4)}, v{vNat} offset0:{2*i} offset1:{2*i+1}" for i in range(3)] + \
                [f"ds_read_b64 {vr(vP+12,2)}, v{vNat} offset:48"]
    tr_reads = [f"ds_read_b64_tr_b16 {vr(vTt+2*m,2)}, v{vTr} offset:{8*m}" for m in range(7)]
    dots = [f"v_dot2_f32_bf16 v{vSS}, v{vP+i}, v{vP+i}, {'0' if i == 0 else 'v%d' % vSS}" for i in range(14)]
    grams = [f"v_mfma_f32_4x4x4_16b_bf16 {vr(vD,4)}, {vr(vP+2*m,2)}, {vr(vP+2*m,2)}, {'0' if m == 0 else vr(vD,4)}" for m in range(7)]
    sels = [f"v_cndmask_b32 v{vSS}, v{vD if i == 0 else vSS}, v{vD+1+i}, s[{sMk+2*i}:{sMk+2*i+1}]" for i in range(3)]
    norm = [f"v_sqrt_f32 v{vSS}, v{vSS}", f"v_add_f32 v{vSS}, s{sEps}, v{vSS}", f"v_rcp_f32 v{vR}, v{vSS}",
            f"v_cvt_pk_bf16_f32 v{vR}, v{vR}, v{vR}", f"v_and_b32 v{vB}, v{vR}, v{vMa}", f"v_and_b32 v{vB+1}, v{vR}, v{vMb}"]
    smalls = [f"v_mfma_f32_4x4x4_16b_bf16 {vr(vD+4*m,4)}, {vr(vTt+2*m,2)}, {vr(vB,2)}, 0" for m in range(7)]
    cvts = [f"v_cvt_pk_bf16_f32 v{vP+i}, v{vD+2*i}, v{vD+2*i+1}" for i in range(14)]
    writes = [f"ds_write_b128 v{vKw}, {vr(vP+4*i,4)} offset:{512*i}" for i in range(4)]

    e("s_load_dwordx4 s[4:7], s[0:1], 0")
    e("s_load_dwordx4 s[8:11], s[0:1], 16")
    e("s_load_dwordx2 s[12:13], s[0:1], 32")
    e("s_cmp_ge_u32 s2, 256")
    e("s_cbranch_scc1 L_end")
    if opt.ws:
        e("s_memtime s[72:73]"); e("s_memrealtime s[76:77]"); e("s_mov_b32 s70, 0"); e("s_mov_b32 s71, 0")
    if opt.padto: e("s_memrealtime s[76:77]")
    e(f"v_lshrrev_b32 v{vT0}, 6, v0")
    e(f"v_and_b32 v{vLane}, 63, v0")
    e(f"v_readfirstlane_b32 s{sWave}, v{vT0}")
    if opt.cpf:
        c("pull the kernel's own code into L2 while the first data is on its way: one line per wave")
        e("s_getpc_b64 s[14:15]")
        lab("L_pc")
        e(f"s_and_b32 s3, s2, 56")
        e(f"v_add_u32 v{vT1}, s3, v{vT0}")
        e(f"v_min_u32 v{vT1}, (L_special - L_pc) / 128, v{vT1}")
        e(f"v_lshlrev_b32 v{vT1}, 7, v{vT1}")
        e(f"global_load_dword v{vPad}, v{vT1}, s[14:15]")
    if opt.jit:
        e("s_memtime s[62:63]"); e("s_waitcnt lgkmcnt(0)"); e(f"s_mul_i32 s63, s{sWave}, 977"); e("s_add_u32 s63, s63, s62")
    c("head = (wg&7)*4 + (wg>>6), qblk = (wg>>3)&7")
    e("s_and_b32 s3, s2, 7")
    e(f"s_lshr_b32 s{sHead}, s2, 6")
    e(f"s_lshl2_add_u32 s{sHead}, s3, s{sHead}")
    e(f"s_mov_b32 s{sMode}, 0")
    e(f"v_lshlrev_b32 v{vL16}, 4, v{vLane}")
    lab("L_restart")
    e(f"s_movk_i32 s{sTmp2}, 3584")
    e(f"s_mov_b32 s{sR+2}, {HB}")
    e(f"s_mov_b32 s{sR+3}, 0x00020000")
    e(f"s_mul_i32 s3, s{sHead}, s{sR+2}")
    e(f"s_mul_i32 s{sM0R}, s{sWave}, s{sTmp2}")
    e(f"s_add_u32 s{sM0R}, s{sM0R}, {LDS_R}")
    e(f"s_and_b32 s{sQg}, s{sWave}, 3")
    e(f"s_mul_i32 s{sKnext}, s{sQg}, s{sTmp2}")
    c("waves 0..3 (group 1) start with K0, waves 4..7 (group 0) with the Q rows qblk*256 + qg*64")
    e(f"s_and_b32 s{sTmp}, s2, 56")
    e(f"s_mulk_i32 s{sTmp}, 1792")
    e(f"s_add_u32 s{sOoff}, s{sTmp}, s{sKnext}")
    e(f"s_and_b32 s{sTmp2}, s{sHead}, 15")
    e(f"s_lshl_b32 s{sTmp2}, s{sTmp2}, 1")
    e(f"v_mov_b32 v{vTv}, s{sTmp2}")
    if opt.touch:
        e(f"s_lshr_b32 s{sPre}, s{sTmp}, 3")
        e(f"s_add_u32 s{sPre}, s{sPre}, {CH}")
        e(f"s_lshl_b32 s{sTmp2}, s{sQg}, 2")
        e(f"v_and_or_b32 v{vT0}, v{vLane}, 3, s{sTmp2}")
        e(f"v_min_u32 v{vT0}, 13, v{vT0}")
        e(f"v_lshlrev_b32 v{vT0}, 7, v{vT0}")
    e(f"s_mov_b32 m0, s{sM0R}")
    e(f"s_cmp_lt_u32 s{sWave}, 4")
    e(f"s_cselect_b32 s{sG}, 1, 0")
    e(f"s_cselect_b32 s{sTmp}, s{sKnext}, s{sOoff}")
    e("s_waitcnt lgkmcnt(0)")
    e(f"s_cselect_b32 s{sR}, s6, s4")
    e(f"s_cselect_b32 s{sR+1}, s7, s5")
    e(f"global_load_ushort v{vTv}, v{vTv}, s[10:11]")
    e(f"s_add_u32 s{sR}, s{sR}, s3")
    e(f"s_addc_u32 s{sR+1}, s{sR+1}, 0")
    def touch():
        c("group 1 touches this block's share of K1: an L2 hit for the head's 8 blocks once it is fetched")
        e(f"s_cmp_eq_u32 s{sG}, 0")
        e("s_cbranch_scc1 L_nt")
        e(f"buffer_load_dword v{vFlag}, v{vT0}, s[{sR}:{sR+3}], s{sPre} offen{opt.nt0 if opt.touch & 2 else ''}")
        lab("L_nt")
    if opt.touch: touch()
    for t in rawdma_l(sR, sTmp, fl=opt.nt0)[2:]: e(t)
    lst(1)
    for srd, p in ((sK, 6), (sV, 8), (sO, 12)):
        e(f"s_add_u32 s{srd}, s{p}, s3")
        e(f"s_addc_u32 s{srd+1}, s{p+1}, 0")
        e(f"s_mov_b32 s{srd+2}, s{sR+2}")
        e(f"s_mov_b32 s{srd+3}, 0x00020000")
    c("output rows of this wave: + G*32")
    e(f"s_mul_i32 s{sTmp}, s{sG}, 1792")
    e(f"s_add_u32 s{sOoff}, s{sOoff}, s{sTmp}")
    e(f"s_mov_b32 s{sExV}, 0x7f7f7f7f")
    e(f"s_mov_b32 s{sExV+1}, s{sExV}")
    e(f"s_lshl_b32 s{sM0V}, s{sWave}, 11")
    c("vVoff = (lane>>3)*112 + (lane&7)*16 = lane*16 - (lane>>3)*16")
    e(f"v_lshrrev_b32 v{vT0}, 3, v{vLane}")
    e(f"v_and_b32 v{vT1}, 15, v{vLane}")
    e(f"v_sub_u32 v{vVoff}, v{vLane}, v{vT0}")
    e(f"v_lshrrev_b32 v{vSS}, 4, v{vLane}")
    e(f"v_lshlrev_b32 v{vVoff}, 4, v{vVoff}")
    c("ones pads in the V ring: lane -> slot lane>>4, pair lane&15")
    e(f"v_lshl_add_u32 v{vT1}, v{vSS}, 7, v{vT1}")
    e(f"v_mov_b32 v{vD}, 0x3f80")
    e(f"v_mov_b32 v{vD+1}, 0")
    e(f"v_lshl_add_u32 v{vT1}, v{vT1}, 7, s{sM0V}")
    e(f"ds_write_b64 v{vT1}, {vr(vD,2)} offset:112")
    c("progress flags: one word per wave")
    if opt.dsadd:
        e(f"s_lshl_b32 s{sTmp}, s{sWave}, 8")
        e(f"s_add_u32 s{sTmp}, s{sTmp}, {LDS_F}")
        e(f"v_lshl_add_u32 v{vFw}, v{vLane}, 2, s{sTmp}")
    else:
        e(f"s_lshl_b32 s{sTmp}, s{sWave}, 2")
        e(f"s_add_u32 s{sTmp}, s{sTmp}, {LDS_F}")
        e(f"v_mov_b32 v{vFw}, s{sTmp}")
    e(f"v_mov_b32 v{vCnt}, 0" if not opt.v1wait else f"v_sub_u32 v{vCnt}, 1, s{sG}")
    e(f"v_and_b32 v{vT0}, 3, v{vLane}")
    e(f"v_bfe_u32 v{vSS}, v{vLane}, 2, 2")
    e(f"ds_write_b32 v{vFw}, v{vCnt}")
    c("staging addresses")
    e(f"v_lshl_add_u32 v{vSS}, v{vT0}, 2, v{vSS}")
    e(f"v_mul_u32_u24 v{vNat}, 56, v{vLane}")
    e(f"v_and_or_b32 v{vSS}, v{vLane}, 48, v{vSS}")
    e(f"v_lshlrev_b32 v{vT0}, 4, v{vT0}")
    e(f"v_mul_u32_u24 v{vTr}, 56, v{vSS}")
    e(f"v_mov_b32 v{vMa}, 0xffff")
    e(f"v_mov_b32 v{vMb}, 0")
    e(f"v_add_u32 v{vNat}, s{sM0R}, v{vNat}")
    e(f"v_add_u32 v{vTr}, s{sM0R}, v{vTr}")
    e(f"v_lshlrev_b64 {vr(vMa,2)}, v{vT0}, {vr(vMa,2)}")
    c("frag write address: (lane>>5)*2048 + (lane&31)*16 + qg*4096 + K slot 0 (group 1) / slot 3 (group 0: Q fragments, later K3)")
    e(f"v_lshrrev_b32 v{vR}, 5, v{vLane}")
    e(f"s_lshl_b32 s{sAlt}, s{sQg}, 12")
    e(f"s_cmp_eq_u32 s{sG}, 0")
    e(f"s_cselect_b32 s{sX}, {LDS_Q - LDS_K}, 0")
    e(f"s_add_u32 s{sAlt}, s{sAlt}, {LDS_K}")
    e(f"s_add_u32 s{sX}, s{sX}, s{sAlt}")
    e(f"v_mul_u32_u24 v{vKw}, 1536, v{vR}")
    e(f"v_mov_b32 v{vP+14}, 0x3f803f80")
    e(f"v_add3_u32 v{vKw}, v{vKw}, v{vL16}, s{sX}")
    e(f"v_mov_b32 v{vP+15}, v{vP+14}")
    e(f"s_mov_b32 s{sEps}, 0x358637bd")
    e(f"s_mov_b32 s{sMk}, 0x22222222")
    e(f"s_mov_b32 s{sMk+1}, s{sMk}")
    e(f"s_lshl_b64 s[{sMk+2}:{sMk+3}], s[{sMk}:{sMk+1}], 1")
    e(f"s_lshl_b64 s[{sMk+4}:{sMk+5}], s[{sMk}:{sMk+1}], 2")
    c("output row offset in the staging buffer: (lane&31)*56 + h*32 = lane*56 - h*1760")
    e(f"v_mul_u32_u24 v{vT0}, 1760, v{vR}")
    c("Q fragment addresses: local block 1 is this wave's own block G")
    e(f"s_lshl_b32 s{sTmp}, s{sG}, 11")
    e(f"s_add_u32 s{sTmp}, s{sTmp}, s{sAlt}")
    e(f"s_add_u32 s{sTmp}, s{sTmp}, {LDS_Q - LDS_K}")
    e(f"v_sub_u32 v{vOoff}, v{vNat}, v{vT0}")
    e(f"v_add_u32 v{vTq}, s{sTmp}, v{vL16}")
    e(f"v_mov_b64 {vr(vVf+28,2)}, 0")
    e(f"v_xor_b32 v{vNq}, 0x800, v{vTq}")
    e(f"v_mov_b64 {vr(vVf+30,2)}, 0")
    c("V transpose-read address: 512*b5 + 128*b3 + 8*sel(b4,b2,b1,b0); sel = pi + 7*b2 with pi = 2*b4 + b1 + 4*b0, 14 (the pad) if pi == 7")
    tab = 0
    for idx in range(16):
        b0, b1, b2, b4 = idx & 1, (idx >> 1) & 1, (idx >> 2) & 1, (idx >> 3) & 1
        pi = 2*b4 + b1 + 4*b0
        tab |= (14 if pi == 7 else pi + 7*b2) << (4*idx)
    e(f"s_mov_b32 s{sTmp}, {hex(tab & 0xffffffff)}")
    e(f"s_mov_b32 s{sTmp2}, {hex(tab >> 32)}")
    e(f"v_mfma_i32_32x32x32_i8 {vr(vO,16)}, {vr(vVf+28,4)}, {vr(vVf+28,4)}, 0")
    e(f"v_and_b32 v{vFr}, 7, v{vLane}")
    e(f"v_lshlrev_b32 v{vT0}, 1, v{vLane}")
    e(f"v_lshlrev_b32 v{vFr}, 2, v{vFr}")
    e(f"v_and_b32 v{vVr}, 40, v{vLane}")
    e(f"v_and_or_b32 v{vT0}, v{vT0}, 32, v{vFr}")
    e(f"v_lshlrev_b32 v{vVr}, 4, v{vVr}")
    e(f"v_lshrrev_b64 {vr(vB,2)}, v{vT0}, s[{sTmp}:{sTmp2}]")
    e(f"v_mfma_i32_32x32x32_i8 {vr(vO+16,16)}, {vr(vVf+28,4)}, {vr(vVf+28,4)}, 0")
    e(f"s_lshl_b32 s{sTmp2}, s{sG}, 13")
    e(f"v_and_b32 v{vB}, 15, v{vB}")
    if opt.dsadd: e(f"v_mul_u32_u24 v{vFr}, 65, v{vFr}")
    e(f"v_add_u32 v{vFr}, {LDS_F}, v{vFr}")
    e(f"v_lshl_add_u32 v{vVr}, v{vB}, 3, v{vVr}")
    e(f"v_mov_b32 v{vCnt}, 1")
    e(f"v_add_u32 v{vVr}, s{sTmp2}, v{vVr}")
    e(f"s_add_u32 s{sTmp2}, s{sTmp2}, {LDS_K}")
    e(f"v_mov_b32 v{vIdx}, 0xdddddddd")
    e(f"v_add_u32 v{vKr}, s{sTmp2}, v{vL16}")
    e(f"s_mov_b32 s{sIter}, 0")
    e(f"s_movk_i32 s{sX}, 0x4000")
    if opt.add64:
        e(f"s_mov_b32 s{sD+2}, 0xffff4000")
        e(f"s_mov_b32 s{sD+3}, 0xffff3fff")
        e(f"s_mov_b32 s{sD+4}, s{sX}")
        e(f"s_mov_b32 s{sD+5}, s{sX}")
    def kread(tile, buf):
        o = tile * 2048
        return [f"ds_read_b128 {vr(vKf+8*buf,4)}, v{vKr} offset:{o}",
                f"ds_read_b128 {vr(vKf+8*buf+4,4)}, v{vKr} offset:{o+1024}"]
    def vread(tile, buf):
        o = tile * 2048
        return [f"ds_read_b64_tr_b16 {vr(vVf+8*buf+4*s+2*u,2)}, v{vVr} offset:{o+s*1024+u*256}" for s in range(2) for u in range(2)]
    def m1(T):
        return f"v_mfma_f32_32x32x16_bf16 {vr(vS+16*(T%4),16)}, {vr(vKf+8*((T//2)%2),4)}, {vr(vQ+4*(T%2),4)}, 0"
    def m2(T):
        return f"v_mfma_f32_32x32x16_bf16 {vr(vS+16*(T%4),16)}, {vr(vKf+8*((T//2)%2)+4,4)}, {vr(vQ+8+4*(T%2),4)}, {vr(vS+16*(T%4),16)}"
    def sm(T, s):
        return f"v_smfmac_f32_32x32x32_bf16 {vr(vO+16*(T%2),16)}, {vr(vVf+8*((T//2)%4)+4*s,4)}, {vr(vS+16*(T%4)+8*s,8)}, v{vIdx}"
    def ex(T, j):
        r = vS + 16*(T%4) + j
        return f"v_exp_f32 v{r}, v{r}"

    def vtwo(chunk):
        for half in range(2):
            e(f"s_lshl_b32 s{sTmp}, s{sQg}, 11")
            e(f"s_mul_i32 s{sTmp2}, s{sQg}, 1792")
            if chunk or half:
                e(f"s_add_u32 s{sTmp}, s{sTmp}, {chunk*16384 + half*8192}")
                e(f"s_add_u32 s{sTmp2}, s{sTmp2}, {chunk*CH + half*7168}")
            for t in vdma_l(m0=sTmp, off=sTmp2, adv=False, fl=opt.nt0): e(t)
    def tproc(q):
        e(f"v_lshlrev_b32 v{vTv}, 16, v{vTv}")
        if q:
            c("c = t*log2e")
            e(f"v_mul_f32 v{vT0}, 0x3fb8aa3b, v{vTv}")
        else: e("s_nop 0")
        e(f"v_readfirstlane_b32 s{sAbsT}, v{vTv}")
        if q:
            e(f"v_readfirstlane_b32 s{sScale}, v{vT0}")
            e(f"v_mov_b32 v{vP+15}, 0")
        else: e("s_nop 1")
        c("the shift |t|*log2e bounds every logit; it is used only while it cannot underflow a row (|t| <= 16)")
        e(f"s_and_b32 s{sAbsT}, s{sAbsT}, 0x7fffffff")
        if q:
            e(f"s_or_b32 s{sTmp2}, s{sScale}, 0x80000000")
            e(f"s_lshr_b32 s{sTmp2}, s{sTmp2}, 16")
        e(f"s_cmp_gt_u32 s{sAbsT}, {'0x41800000' if not opt.force_fallback else '0'}")
        if q: e(f"s_cselect_b32 s{sTmp2}, 0, s{sTmp2}")
        e(f"s_cselect_b32 s{sAbsT}, 1, 0")
        if q: e(f"v_mov_b32 v{vP+14}, s{sTmp2}")
    def qreads():
        e(f"ds_read_b128 {vr(vQ,4)}, v{vNq}")
        e(f"ds_read_b128 {vr(vQ+8,4)}, v{vNq} offset:1024")
        e(f"ds_read_b128 {vr(vQ+4,4)}, v{vTq}")
        e(f"ds_read_b128 {vr(vQ+12,4)}, v{vTq} offset:1024")
    def x3():
        for t in rawnext_l(fl=opt.nt0): e(t)
    v0 = vread(0, 0); v1 = vread(1, 1); k0 = kread(0, 0); k1 = kread(1, 1)
    e(f"s_mul_i32 s{sVoffs}, s{sWave}, 1792")
    e(f"s_add_u32 s{sM0V}, s{sM0V}, 0x8000")
    e(f"s_add_u32 s{sVoffs}, s{sVoffs}, {2*CH}")
    e(f"s_cmp_eq_u32 s{sG}, 0")
    e("s_cbranch_scc1 L_st4")
    c("group 1: K1 rows into this wave's part of the still unused K slot 2; K0, K1; V1 and K2 rows")
    e(f"s_add_u32 s{sAlt}, s{sAlt}, 32768")
    e(f"s_add_u32 s{sTmp}, s{sKnext}, {CH}")
    for t in rawdma_l(sK, sTmp, sAlt, fl=opt.nt0): e(t)
    lst(5)
    e(f"s_add_u32 s{sKnext}, s{sKnext}, {2*CH}")
    e(f"s_sub_u32 s{sAlt}, s{sM0R}, s{sAlt}")
    e(f"s_mov_b32 s{sScale}, 1.0")
    if opt.dry:
        c("run the normalisation once on whatever is staged: brings its code into the instruction cache")
        e(f"s_call_b64 s[{sRet}:{sRet+1}], L_prep")
        e(f"v_xor_b32 v{vKw}, 0x8000, v{vKw}")
    e(f"s_waitcnt vmcnt(4)")
    lst(3)
    e(f"s_call_b64 s[{sRet}:{sRet+1}], L_prep")
    e(f"v_xor_b32 v{vKw}, 0xc000, v{vKw}")
    e(f"v_subrev_u32 v{vNat}, s{sAlt}, v{vNat}")
    e(f"v_subrev_u32 v{vTr}, s{sAlt}, v{vTr}")
    tproc(False)
    e("s_waitcnt lgkmcnt(0)")
    lst(4)
    e("s_barrier")
    for t in k0 + k1: e(t)
    if opt.xpos == 0: x3()
    e(f"s_setprio {opt.g1prio}")
    e(f"s_waitcnt vmcnt({4 if opt.xpos == 0 else 0})")
    lst(0)
    if opt.xpos == 1: x3()
    if opt.bpos == 1:
        lst(6); e("s_barrier"); lst(2)
    e(f"s_call_b64 s[{sRet}:{sRet+1}], L_prep")
    e(f"v_xor_b32 v{vKw}, 0x4000, v{vKw}")
    e(f"v_add_u32 v{vNat}, s{sAlt}, v{vNat}")
    e(f"v_add_u32 v{vTr}, s{sAlt}, v{vTr}")
    if opt.xpos == 2: x3()
    if opt.bpos == 0:
        e("s_waitcnt lgkmcnt(0)")
        lst(6); e("s_barrier"); lst(2)
    qreads()
    e(f"ds_write_b32 v{vFw}, v{vCnt}")
    e("s_waitcnt lgkmcnt(1)")
    lab("L_fill")
    e(m1(0)); e(m2(0))
    e("s_nop 1")
    e("s_branch L_st5")
    lab("L_st4")
    c("group 0: V0; Q rows -> fragments for this wave and its partner")
    vtwo(0)
    if opt.v1pos == 0: vtwo(1)
    n1 = 4 if opt.v1pos == 0 else 0
    lst(5)
    e(f"s_add_u32 s{sKnext}, s{sKnext}, {3*CH}")
    e(f"s_waitcnt vmcnt({8 + n1})")
    tproc(True)
    e("s_waitcnt lgkmcnt(0)")
    lst(3); lst(4)
    e("s_barrier")
    for t in k0 + k1: e(t)
    e(f"s_setprio {opt.p_start}")
    e(f"s_waitcnt vmcnt({4 + n1})")
    lst(0)
    e(f"s_call_b64 s[{sRet}:{sRet+1}], L_prep")
    qreads()
    e(f"v_xor_b32 v{vKw}, 0x8000, v{vKw}")
    e(f"s_mov_b32 s{sScale}, 1.0")
    e("s_waitcnt lgkmcnt(2)")
    e(m1(0)); e(m2(0))
    e(f"v_mov_b32 v{vP+14}, 0x3f803f80")
    e(f"v_mov_b32 v{vP+15}, 0x3f803f80")
    if opt.v1pos == 1: vtwo(1)
    e(f"s_waitcnt vmcnt({0 if opt.v1wait else 4}) lgkmcnt(0)")
    lst(6)
    e("s_barrier")
    lst(2)
    lab("L_st5")
    e(f"s_cmp_lg_u32 s{sAbsT}, 0")
    e("s_cbranch_scc1 L_special")
    lst(7)
    for t in v0: e(t)
    e(f"s_setprio {opt.pf0}")
    e(f"s_cmp_eq_u32 s{sG}, 0")
    e("s_cbranch_scc1 L_pf")
    e(f"s_setprio {opt.pf1}")
    lab("L_pf")
    wst(); lst(8)
    c("first tile: also computes the scores of tile 1")
    k2 = kread(2, 0); v2 = vread(2, 2); vd = vdma_l()
    ei = 0; nl = 0
    for ch in opt.pat0:
        if ch == 'e': e(ex(0, ei)); ei += 1
        elif ch == 'E': e(m1(1))
        elif ch == 'G': e(m2(1))
        elif ch == 'B': e(m1(2))
        elif ch == 'C': e(m2(2))
        elif ch == 'D': e(sm(0, 0))
        elif ch == 'a': e(v1.pop(0)); nl += 1
        elif ch == 'k': assert not v1; e(k2.pop(0)); nl += 1
        elif ch == 'v': assert not k2; e(v2.pop(0)); nl += 1
        elif ch == 'w': e(f"s_waitcnt lgkmcnt({nl})")
        elif ch == 'V':
            for t in vd[0:3] + ["s_mov_b64 exec, -1"]: e(t)
        elif ch == 'U':
            for t in [vd[3], vd[1], vd[5], vd[6], vd[4]] + vd[7:]: e(t)
    assert ei == 16 and len(v2) == 2
    e(f"s_cmp_eq_u32 s{sG}, 0")
    e("s_cbranch_scc1 L_B1")
    e("s_branch L_A1")

    lab("L_prep")
    for m in range(7): e(f"ds_read_b64 {vr(vP+2*m,2)}, v{vNat} offset:{8*m}")
    for s in tr_reads: e(s)
    for m in range(7):
        e(f"s_waitcnt lgkmcnt({13 - m})")
        if m > 0: e("s_nop 0")
        e(grams[m])
    e("s_nop 4")
    for t in sels: e(t)
    e(norm[0]); e("s_nop 0"); e(norm[1]); e(norm[2]); e("s_nop 0")
    e(f"v_mul_f32 v{vR}, s{sScale}, v{vR}")
    for s in norm[3:]: e(s)
    e("s_waitcnt lgkmcnt(0)")
    e("s_nop 0")
    for s in smalls: e(s)
    for i in range(14):
        e(cvts[i])
        if i % 4 == 3: e(writes[i // 4])
    e(writes[3])
    e(f"v_xor_b32 v{vKw}, 0x8000, v{vKw}")
    e(f"s_setpc_b64 s[{sRet}:{sRet+1}]")

    nskip = [0]
    fcmp = f"v_cmp_ge_u32 vcc, s{sIter}, v{vFlag}" if opt.dsadd else f"v_cmp_lt_u32 vcc, v{vFlag}, v{vCnt}"
    def build_half(name, pats):
        ops = []
        q = dict(n=list(nat_reads), t=list(tr_reads), g=list(grams), x=list(sels), s=list(norm), m=list(smalls), c=list(cvts), W=list(writes))
        cnt = dict(n=0, t=0, g=0, x=0, s=0, m=0, c=0, W=0, X=0)
        def add(t, lid=None, needs=()): ops.append((t, lid, list(needs)))
        for T in range(8):
            j = T // 2
            if T == 1: add(f"L_{name}1:")
            for t in jit_l(): add(t)
            if opt.ws and T in opt.stampT:
                for s in wst_l(): add(s)
            if T % 2 == 0:
                rd_k = kread((j + 2) % 4, j % 2); rd_v = vread((j + 2) % 4, (j + 2) % 4)
                ki = vi = 0
            ei = 0
            for ch in pats[T]:
                if ch == 'e': add(ex(T, ei)); ei += 1
                elif ch == 'A':
                    add(sm(T - 1, 1), needs=[('v', ((T-1)//2), 2), ('v', ((T-1)//2), 3)])
                elif ch == 'B': add(m1(T + 2), needs=[('k', j + 1, 0)])
                elif ch == 'C': add(m2(T + 2), needs=[('k', j + 1, 1)])
                elif ch == 'D': add(sm(T, 0), needs=[('v', j, 0), ('v', j, 1)])
                elif ch == 'k': add(rd_k[ki], lid=('k', j + 2, ki)); ki += 1
                elif ch == 'v': add(rd_v[vi], lid=('v', j + 2, vi)); vi += 1
                elif ch == 'w': add("WAIT")
                elif ch == 'n': add(q['n'][cnt['n']], lid=('n', 0, cnt['n'])); cnt['n'] += 1
                elif ch == 't': add(q['t'][cnt['t']], lid=('t', 0, cnt['t'])); cnt['t'] += 1
                elif ch in '0123':
                    if opt.prio: add(f"s_setprio {opt.pmap[int(ch)]}")
                elif ch == 'g': add(q['g'][cnt['g']], needs=[('n', 0, cnt['g'] // 2)]); cnt['g'] += 1
                elif ch == 'x': assert cnt['g'] == 7; add(q['x'][cnt['x']]); cnt['x'] += 1
                elif ch == 's': assert cnt['x'] == 3; add(q['s'][cnt['s']]); cnt['s'] += 1
                elif ch == 'm': assert cnt['s'] == 6; add(q['m'][cnt['m']], needs=[('t', 0, cnt['m'])]); cnt['m'] += 1
                elif ch == 'c': assert cnt['m'] > cnt['c'] // 2; add(q['c'][cnt['c']]); cnt['c'] += 1
                elif ch == 'W':
                    assert cnt['c'] >= min(14, 4*cnt['W'] + 4)
                    add(q['W'][cnt['W']], lid=('W', 0, cnt['W'])); cnt['W'] += 1
                    if cnt['W'] == 4: pending_xor = True
                elif ch == 'X':
                    l = rawnext_l()
                    parts = [l[0:3], l[3:4], l[4:5], l[5:]]
                    for t in parts[cnt['X']]: add(t)
                    cnt['X'] += 1
                elif ch == 'Y': add("s_waitcnt vmcnt(2)")
                elif ch == 'z': add(f"s_cmp_ge_u32 s{sIter}, 5")
                elif ch == '[':
                    nskip[0] += 1; add(f"s_cbranch_scc1 L_skip{nskip[0]}")
                elif ch == ']': add(f"L_skip{nskip[0]}:")
                elif ch == 'V':
                    add(f"s_mov_b32 m0, s{sM0V}")
                    add(f"s_mov_b64 exec, s[{sExV}:{sExV+1}]")
                    add(f"buffer_load_dwordx4 v{vVoff}, s[{sV}:{sV+3}], s{sVoffs} offen{opt.ntl} lds")
                    add(f"s_mov_b64 exec, -1")
                elif ch == 'U':
                    add(f"s_add_u32 m0, s{sM0V}, 128")
                    add(f"s_mov_b64 exec, s[{sExV}:{sExV+1}]")
                    add(f"buffer_load_dwordx4 v{vVoff}, s[{sV}:{sV+3}], s{sVoffs} offen offset:896{opt.ntl} lds")
                    add(f"s_mov_b64 exec, -1")
                elif ch == 'p':
                    if opt.v1wait: continue
                    add("s_waitcnt vmcnt(6)")
                    add(f"ds_write_b32 v{vFw}, v{vCnt}", lid=('p', 0, 0))
                elif ch == 'q': add(f"s_cmp_eq_u32 s{sIter}, 7")
                elif ch == 'T': add("s_cbranch_scc1 L_tail")
                elif ch == 'y': add("s_waitcnt vmcnt(0)")
                elif ch == 'f': add(f"ds_read_b32 v{vFlag}, v{vFr}", lid=('f', 0, 0))
                elif ch == 'F':
                    add(fcmp, needs=[('f', 0, 0)])
                    if opt.add64:
                        add(f"v_lshl_add_u64 {vr(vKr,2)}, {vr(vKr,2)}, 0, s[{sD}:{sD+1}]")
                    else:
                        add(f"v_xor_b32 v{vKr}, s{sX}, v{vKr}")
                        add(f"v_xor_b32 v{vVr}, s{sX}, v{vVr}")
                    add(f"s_cbranch_vccnz L_spin{name}")
                    add(f"L_back{name}:")
                    if not opt.dsadd: add(f"v_add_u32 v{vCnt}, 1, v{vCnt}")
                    if not opt.add64: add(f"s_xor_b32 s{sX}, s{sX}, 0x8000")
                elif ch == 'j':
                    if opt.add64:
                        jj = [f"s_cmp_eq_u32 s{sIter}, 3", f"s_cselect_b64 s[{sD}:{sD+1}], s[{sD+2}:{sD+3}], s[{sD+4}:{sD+5}]"]
                        add(jj[cnt.setdefault('j', 0)])
                    cnt['j'] = cnt.get('j', 0) + 1
                elif ch == 'i':
                    it = [f"s_add_u32 s{sIter}, s{sIter}, 1"]
                    add(it[cnt.setdefault('i', 0)]); cnt['i'] += 1
                elif ch == 'a':
                    adv = [f"s_add_u32 s{sM0V}, s{sM0V}, 0x4000", f"s_and_b32 s{sM0V}, s{sM0V}, 0xffff",
                           f"s_add_u32 s{sVoffs}, s{sVoffs}, {CH}"]
                    add(adv[cnt.setdefault('a', 0)]); cnt['a'] += 1
                elif ch == 'P':
                    add(f"ds_add_u32 v{vFw}, v{vCnt}" if opt.dsadd else f"ds_write_b32 v{vFw}, v{vCnt}", lid=('P', 0, 0))
                    if name == 'A':
                        assert cnt['W'] == 4
                        add(f"v_xor_b32 v{vKw}, 0x8000, v{vKw}")
                else: raise ValueError(ch)
            assert ei == 16, (name, T, ei)
            if T % 2 == 1: assert ki == 2 and vi == 4
        if name == 'A':
            assert cnt == dict(n=4, t=7, g=7, x=3, s=6, m=7, c=14, W=4, X=0, a=3, i=1, j=2), cnt
        return ops

    halves = {'A': build_half('A', opt.patA), 'B': build_half('B', opt.patB)}
    def shift(ops):
        out = []
        for t, lid, needs in ops:
            if lid is not None:
                lid = (lid[0], lid[1] - 4, lid[2]) if lid[0] in 'kv' else (lid[0], -1, lid[2])
            out.append((t, lid, []))
        return out
    def resolve(name):
        ops = halves[name]
        res = {}
        for pred in 'AB':
            seq = shift(halves[pred]) + ops
            base = len(seq) - len(ops)
            pos = {lid: i for i, (t, lid, n) in enumerate(seq) if lid is not None}
            waits = [i for i in range(base, len(seq)) if seq[i][0] == "WAIT"]
            covered = -1
            covered = pos[('k', 0, 1)]
            for i in range(base, len(seq)):
                t, lid, needs = seq[i]
                if t == "WAIT":
                    nxt = min([w for w in waits if w > i] + [len(seq)])
                    need = [pos[x] for k in range(i, nxt) for x in seq[k][2] if x in pos]
                    tgt = max(need + [covered])
                    assert tgt < i, ("wait placed before its load", name, seq[tgt][0])
                    n = sum(1 for k in range(tgt + 1, i) if seq[k][1] is not None)
                    res[i - base] = min(res.get(i - base, 15), n)
                    covered = tgt
                for x in needs:
                    if x in pos: assert pos[x] <= covered, ("uncovered", name, t, x)
                    else: assert x[0] == 'v' and x[1] < -2 or x[1] <= -2, x
        out = [(f"s_waitcnt lgkmcnt({res[i]})" if t == "WAIT" else t) for i, (t, lid, n) in enumerate(ops)]
        return [t for t in out if not any(re.search(d, t) for d in opt.drop)]

    L.append(".p2align 3")
    lab("L_A")
    for t in resolve('A'):
        (L.append(t) if t.endswith(":") else e(t))
    lab("L_B")
    for t in resolve('B'):
        (L.append(t) if t.endswith(":") else e(t))
    e(f"s_cmp_lt_u32 s{sIter}, 6")
    e("s_cbranch_scc1 L_A")
    e("s_branch L_B")
    lab("L_tail")
    c("last two tiles; local block 0 goes to the partner wave, local block 1 is finished here")
    e(f"s_lshl_b32 s{sTmp}, s{sWave}, 12")
    e(f"s_add_u32 s{sTmp}, s{sTmp}, {LDS_K}")
    e(f"v_add_u32 v{vT0}, s{sTmp}, v{vL16}")
    e(f"v_xor_b32 v{vT1}, 0x4000, v{vT0}")
    if opt.st_lin:
        e(f"v_add_u32 v{vSS}, s{sM0R}, v{vL16}")
    no = nr = 0
    tv = vread(3, 3)[2:]
    vF = vO + 16
    for T, Tp, Tn, pat in opt.patT:
        jit()
        ei = 0
        for ch in pat:
            if ch == 'e': e(ex(T, ei)); ei += 1
            elif ch == 'A': e(sm(Tp, 1))
            elif ch == 'B': e(m1(Tn))
            elif ch == 'C': e(m2(Tn))
            elif ch == 'D': assert ei >= 10; e(sm(T, 0))
            elif ch == 'w': e("s_waitcnt lgkmcnt(0)")
            elif ch == 'y': e("s_waitcnt vmcnt(0)")
            elif ch == 'n': e("s_nop 0")
            elif ch == 'K': e("s_waitcnt lgkmcnt(2)")
            elif ch == 'v': e(tv.pop(0))
            elif ch == 'b': e("s_barrier")
            elif ch in '0123':
                if opt.prio: e(f"s_setprio {opt.pmap[int(ch)]}")
            elif ch == 'O':
                e(f"ds_write_b128 v{vT0}, {vr(vO+4*no,4)} offset:{1024*no}"); no += 1
            elif ch == 'R':
                e(f"ds_read_b128 {vr(vD+4*nr,4)}, v{vT1} offset:{1024*nr}"); nr += 1
            elif ch == 'a':
                for j in range(0, 16, 2):
                    e(f"v_pk_add_f32 {vr(vF+j,2)}, {vr(vF+j,2)}, {vr(vD+j,2)}")
            else: raise ValueError(ch)
        assert ei == 16
    assert no == 4 and nr == 4
    e("s_nop 1")
    e(sm(7, 1))
    wst()
    e("s_nop 11")
    e(f"v_mov_b32 v{vT0}, v{vF+12}")
    e(f"v_mov_b32 v{vT1}, v{vF+12}")
    e("s_nop 1")
    e(f"v_permlane32_swap_b32 v{vT0}, v{vT1}")
    e(f"v_rcp_f32 v{vB}, v{vT1}")
    e("s_nop 0")
    if True:
        c("rows -> own staging buffer -> whole lines")
        for j in range(4):
            e(f"v_pk_mul_f32 {vr(vF+4*j,2)}, {vr(vF+4*j,2)}, {vr(vB,2)} op_sel_hi:[1,0]")
            e(f"v_pk_mul_f32 {vr(vF+4*j+2,2)}, {vr(vF+4*j+2,2)}, {vr(vB,2)} op_sel_hi:[1,0]")
            e(f"v_cvt_pk_bf16_f32 v{vP+2*j}, v{vF+4*j}, v{vF+4*j+1}")
            e(f"v_cvt_pk_bf16_f32 v{vP+2*j+1}, v{vF+4*j+2}, v{vF+4*j+3}")
            if j == 3: e("s_mov_b32 exec_hi, 0")
            e(f"ds_write_b64 v{vOoff}, {vr(vP+2*j,2)} offset:{8*j}")
        e("s_mov_b32 exec_hi, -1")
        e(f"ds_read_b128 {vr(vD,4)}, v{vSS}")
        e(f"ds_read_b128 {vr(vD+4,4)}, v{vSS} offset:1024")
        e("s_waitcnt lgkmcnt(1)")
        e(f"buffer_store_dwordx4 {vr(vD,4)}, v{vL16}, s[{sO}:{sO+3}], s{sOoff} offen{opt.st_flags}")
        e("s_mov_b32 exec_hi, 0xffff")
        e("s_waitcnt lgkmcnt(0)")
        e(f"buffer_store_dwordx4 {vr(vD+4,4)}, v{vL16}, s[{sO}:{sO+3}], s{sOoff} offen offset:1024{opt.st_flags}")
    if opt.ws:
        e("s_mov_b64 exec, -1")
        if opt.lazy:
            lst(9)
            e("s_waitcnt lgkmcnt(0)")
            for k in range(10):
                e(f"s_sub_u32 s74, s{80+2*k}, s72")
                e(f"v_writelane_b32 v{vSt}, s74, {k}")
            e(f"v_writelane_b32 v{vSt}, s71, 10")
            e("s_mov_b32 s70, 11")
        wst()
        e("s_waitcnt vmcnt(0)")
        wst()
        e("s_memrealtime s[78:79]")
        e("s_load_dwordx2 s[80:81], s[0:1], 48")
        e("s_waitcnt lgkmcnt(0)")
        e("s_mov_b32 s82, 0x1000000"); e("s_mov_b32 s83, 0x00020000")
        e(f"v_writelane_b32 v{vSt}, s70, 31")
        e(f"v_writelane_b32 v{vSt}, s76, 30")
        e(f"v_writelane_b32 v{vSt}, s78, 29")
        e(f"s_lshl_b32 s3, s2, 3"); e(f"s_add_u32 s3, s3, s{sWave}"); e("s_lshl_b32 s3, s3, 7")
        e(f"v_lshlrev_b32 v1, 2, v{vLane}")
        e("s_mov_b32 exec_hi, 0")
        e(f"buffer_store_dword v{vSt}, v1, s[80:83], s3 offen")
    if opt.padto:
        e("s_waitcnt vmcnt(0)")
        lab("L_pspin")
        e("s_memrealtime s[78:79]")
        e("s_waitcnt lgkmcnt(0)")
        e("s_sub_u32 s84, s78, s76")
        e(f"s_cmp_lt_u32 s84, {opt.padto}")
        e("s_cbranch_scc1 L_pspin")
    lab("L_end")
    e("s_endpgm")

    for name in 'AB':
        lab(f"L_spin{name}")
        c("some wave has not yet published the next chunk: wait for it")
        if opt.ws:
            e(f"s_lshl_b32 s{sTmp}, s{sIter}, 2")
            e(f"s_lshl_b32 s{sTmp}, 1, s{sTmp}")
            e(f"s_add_u32 s71, s71, s{sTmp}")
        e(f"s_sleep {opt.sleep}")
        e(f"ds_read_b32 v{vFlag}, v{vFr}")
        e("s_waitcnt lgkmcnt(0)")
        e(fcmp)
        e(f"s_cbranch_vccnz L_spin{name}")
        e(f"s_branch L_back{name}")

    lab("L_special")
    e(f"s_cmp_eq_u32 s{sMode}, 0")
    e("s_cbranch_scc1 L_maxpass")
    c("second pass: put -max into the pad slots of the Q fragments (lanes 32..63)")
    e("s_mov_b32 exec_lo, 0")
    e(f"v_mov_b32 v{vQ+10}, v{vPad}")
    e(f"v_mov_b32 v{vQ+11}, v{vPad+1}")
    e(f"v_mov_b32 v{vQ+14}, v{vPad+2}")
    e(f"v_mov_b32 v{vQ+15}, v{vPad+3}")
    e("s_mov_b32 exec_lo, -1")
    e(f"s_mov_b32 s{sAbsT}, 0")
    e("s_nop 7")
    e("s_branch L_fill")
    lab("L_maxpass")
    mx = [vPad, vPad + 2]
    e(f"v_mov_b32 v{mx[0]}, 0xff800000")
    e(f"v_mov_b32 v{mx[1]}, 0xff800000")
    lab("L_mloop")
    c("chunk sIter is in LDS; group (sIter & 1) normalises chunk sIter + 1 (chunk 1 is done, K2 is staged)")
    e(f"s_add_u32 s{sTmp}, s{sIter}, s{sG}")
    e(f"s_bitcmp1_b32 s{sTmp}, 0")
    e("s_cbranch_scc1 L_mnoprep")
    e(f"s_cmp_eq_u32 s{sIter}, 7")
    e("s_cbranch_scc1 L_mnoprep")
    e(f"s_cmp_eq_u32 s{sIter}, 0")
    e("s_cbranch_scc1 L_mnoprep")
    e(f"s_cmp_eq_u32 s{sIter}, 1")
    e("s_cbranch_scc1 L_mhave")
    for t in rawnext_l(): e(t)
    lab("L_mhave")
    e(f"s_waitcnt vmcnt(0) lgkmcnt(0)")
    e(f"s_call_b64 s[{sRet}:{sRet+1}], L_prep")
    lab("L_mnoprep")
    for j in range(4):
        for s in kread(j, 0): e(s)
        e("s_waitcnt lgkmcnt(0)")
        e(m1(0)); e(m2(0)); e(m1(1)); e(m2(1))
        e("s_nop 15")
        for b in range(2):
            for i in range(0, 16, 2):
                e(f"v_max3_f32 v{mx[b]}, v{vS+16*b+i}, v{vS+16*b+i+1}, v{mx[b]}")
    e("s_barrier")
    e(f"v_xor_b32 v{vKr}, s{sX}, v{vKr}")
    e(f"s_xor_b32 s{sX}, s{sX}, 0x8000")
    e(f"s_add_u32 s{sIter}, s{sIter}, 1")
    e(f"s_cmp_lt_u32 s{sIter}, 8")
    e("s_cbranch_scc1 L_mloop")
    c("combine the two lane halves and the partner wave (whose local blocks are swapped)")
    for b in range(2):
        e(f"v_mov_b32 v{vT0}, v{mx[b]}")
        e("s_nop 1")
        e(f"v_permlane32_swap_b32 v{mx[b]}, v{vT0}")
        e("s_nop 1")
        e(f"v_max_f32 v{mx[b]}, v{mx[b]}, v{vT0}")
    e(f"s_lshl_b32 s{sTmp}, s{sWave}, 12")
    e(f"s_add_u32 s{sTmp}, s{sTmp}, {LDS_K}")
    e(f"v_add_u32 v{vT0}, s{sTmp}, v{vL16}")
    e(f"v_xor_b32 v{vT1}, 0x4000, v{vT0}")
    e("s_waitcnt vmcnt(0) lgkmcnt(0)")
    e(f"ds_write_b32 v{vT0}, v{mx[0]}")
    e(f"ds_write_b32 v{vT0}, v{mx[1]} offset:4")
    e("s_waitcnt lgkmcnt(0)")
    e("s_barrier")
    e(f"ds_read_b64 {vr(vD,2)}, v{vT1}")
    e("s_waitcnt lgkmcnt(0)")
    e("s_barrier")
    e(f"s_mov_b32 s{sTmp}, 0xffff0000")
    for b in range(2):
        m = mx[b]
        e(f"v_max_f32 v{m}, v{m}, v{vD+1-b}")
        c("split -max into three bf16 parts")
        e(f"v_sub_f32 v{m}, 0, v{m}")
        e(f"v_and_b32 v{vT0}, s{sTmp}, v{m}")
        e(f"v_sub_f32 v{m}, v{m}, v{vT0}")
        e(f"v_and_b32 v{vT1}, s{sTmp}, v{m}")
        e(f"v_sub_f32 v{m}, v{m}, v{vT1}")
        e(f"v_lshrrev_b32 v{m+1}, 16, v{m}")
        e(f"v_lshrrev_b32 v{vT0}, 16, v{vT0}")
        e(f"v_or_b32 v{m}, v{vT0}, v{vT1}")
    e(f"s_mov_b32 s{sMode}, 1")
    e("s_branch L_restart")

    txt = HEADER + f"; @launch grid=(256,1,1) block=(512,1,1) lds={LDS_TOTAL}\n"
    txt += """.amdgcn_target "amdgcn-amd-amdhsa--gfx950"
.text
.globl standalone__qk_norm__prompt_kernel
.p2align 8
.type standalone__qk_norm__prompt_kernel,@function
standalone__qk_norm__prompt_kernel:
"""
    txt += "\n".join(L) + "\n"
    txt += f""".section .rodata,"a"
.p2align 6
.amdhsa_kernel standalone__qk_norm__prompt_kernel
  .amdhsa_next_free_vgpr {NV}
  .amdhsa_next_free_sgpr {102 if (opt.ws or opt.padto) else 72}
  .amdhsa_accum_offset {(NV+3)//4*4}
  .amdhsa_group_segment_fixed_size 0
  .amdhsa_kernarg_size 56
  .amdhsa_user_sgpr_count 2
  .amdhsa_user_sgpr_kernarg_segment_ptr 1
  .amdhsa_system_sgpr_workgroup_id_x 1
.end_amdhsa_kernel
"""
    return txt

if __name__ == "__main__":
    opt = Opt()
    out = sys.argv[1]
    for a in sys.argv[2:]:
        k, v = a.split("=", 1)
        assert hasattr(opt, k), k
        setattr(opt, k, eval(v))
    open(out, "w").write(gen(opt))
```

```python
import sys, re

HEADER = """; Kernarg layout for this problem (56 bytes, ptrs only, base s[0:1]):
"""

PAT_B = [
 "eeA3wkeeeeBkeeeeCveeeeDvee",
 "eeAveeeeBzveeeeCeeeeD[XXXX]ee",
 "eeA2wkeeeeBkeeeeCqveeeeDvpeeT",
 "eeA1veeeeBveeeeC0feeeeDjjee",
 "eeA3wFkeeeeBkeeeeCveeeeDvee",
 "eeAzveeeeByveeeeC[V]eeeeD[U]ee",
 "eeA2wkeeeeBakeeeeCaveeeeDaivee",
 "eeA1veeeeBveeeeC0eeeeDPee",
]
PAT_A = [
 "eeA3wkeeeeBkeeeeCveeeeDvee",
 "eeAveeeeBveeeeCYnneeeeDnnee",
 "eeA2wkteeegeBkteeegeCvteeegeDvtee",
 "egeA1vteeegeBvteeegeC0fteeegeDjjee",
 "eeA3wFkexexexeBkesesesesCvesseemeDvee",
 "emeAzveecemeByvececemeC[V]ececemeD[U]ecec",
 "emeA2wkececemeBakWececeeCavWeceecceDaivee",
 "eeA1vWeeeeBvWeeeeC0eeeeDPee",
]
PAT_T = [
 (3, 2, 6, "eeA1Kveeee" "BveeeeC0eeeeDee"),
 (4, 3, 5, "eeA3eeeeBeeeeCeeeeDee"),
 (6, 4, 7, "eeA2weeeeBeeeeCeeeeD1ee"),
 (5, 6, 0, "eeAeeee0eeeeDeeeOeOeOeO"),
 (7, 5, 0, "eeAwbReReReReeeeewaeeDeeee"),
]

class Opt:
    ws = False
    patT = PAT_T
    st_flags = ' sc1'
    st_lin = True
    g1prio = 3
    v1pos = 0
    v1wait = 1
    touch = 0
    k1early = 0
    bpos = 0
    lazy = False
    jit = 0
    otouch = 0
    cpf = 1
    padat = -1
    qdelay = 1
    dry = False
    g1early = 0
    nt0 = ''
    add64 = 0
    dsadd = 1
    ntl = ''
    pf0 = 3
    pf1 = 3
    pat0 = 'eeEaaeeeGaaeeeBkVeeeCkUeewDvveee'
    v0pos = 1
    xpos = 2
    pmid = 3
    drop = ()
    padto = 0
    force_fallback = False
    patA = PAT_A
    patB = PAT_B
    prio = True
    pmap = '0123'
    p_start = 2
    sleep = 1
    stampT = (4,)

def gen(opt):
    L = []
    def e(s): L.append("    " + s)
    def lab(s): L.append(s + ":")
    def c(s): L.append("    ; " + s)

    HB = 114688
    CH = 14336
    LDS_V = 0
    LDS_K = 65536
    LDS_Q = LDS_K + 3*16384
    LDS_R = 131072
    LDS_F = LDS_R + 8*3584
    LDS_TOTAL = LDS_F + 2048
    vLane, vL16, vVoff, vKw, vKr, vVr, vIdx, vT0 = 0, 1, 2, 3, 4, 5, 6, 7
    vNat, vTr, vMa, vMb, vOoff, vT1, vSS, vR = 8, 9, 10, 11, 12, 13, 14, 15
    vQ = 16
    vO = 32
    vS = 64
    vKf = 128
    vVf = 144
    vP = 176
    vTt = 192
    vB = 206
    vD = 208
    vPad = 236
    vSt, vTv, vNq = 240, 241, 242
    vTq = 247
    vFw, vFr, vFlag, vCnt = 243, 244, 245, 246
    NV = 248
    sK, sV, sO, sR = 20, 24, 28, 48
    sWave, sHead, sQb, sG, sQg = 32, 33, 34, 35, 36
    sIter, sKnext, sVoffs, sM0V, sM0R = 37, 38, 39, 40, 41
    sT, sScale, sEps, sOoff = 42, 43, 44, 45
    sTmp, sTmp2 = 46, 47
    sExV = 52
    sRet = 54
    sMode, sAbsT = 56, 57
    sPre, sX = 58, 59
    sAlt = 60
    sD = 14
    sMk = 64

    def vr(b, n): return f"v[{b}:{b+n-1}]"

    def wst_l():
        if not opt.ws: return []
        return ["s_memtime s[74:75]", "s_waitcnt lgkmcnt(0)", "s_sub_u32 s74, s74, s72", "s_mov_b32 m0, s70", "s_nop 0",
                f"v_writelane_b32 v{vSt}, s74, m0", "s_add_u32 s70, s70, 1"]
    njit = [0]
    def jit_l():
        if not opt.jit: return []
        njit[0] += 1
        return ["s_mul_i32 s63, s63, 0x41c64e6d", "s_add_u32 s63, s63, 12345", "s_bfe_u32 s62, s63, 0x30014", "s_cmp_lg_u32 s62, 0",
                f"s_cbranch_scc1 L_jit{njit[0]}", f"s_sleep {opt.jit}", f"L_jit{njit[0]}:"]
    def jit():
        for t in jit_l(): (L.append(t) if t.endswith(":") else e(t))
    def wst():
        if opt.lazy: return
        for s in wst_l(): e(s)
    def lst(k):
        if k != 1: jit()
        if opt.padto and opt.padat == k: e("s_memrealtime s[76:77]")
        if opt.lazy: e(f"s_memtime s[{80+2*k}:{81+2*k}]")

    def rawdma_l(srd, soff, m0=None, fl=None):
        fl = opt.ntl if fl is None else fl
        r = [f"s_mov_b32 m0, s{sM0R if m0 is None else m0}", "s_nop 0"]
        for i in range(3):
            r.append(f"buffer_load_dwordx4 v{vL16}, s[{srd}:{srd+3}], s{soff} offen offset:{1024*i}{fl} lds")
        r.append("s_mov_b32 exec_hi, 0")
        r.append(f"buffer_load_dwordx4 v{vL16}, s[{srd}:{srd+3}], s{soff} offen offset:3072{fl} lds")
        r.append("s_mov_b32 exec_hi, -1")
        return r
    def rawnext_l(fl=None):
        return rawdma_l(sK, sKnext, fl=fl) + [f"s_add_u32 s{sKnext}, s{sKnext}, {2*CH}"]

    def vdma_l(m0=None, off=None, adv=True, fl=None):
        fl = opt.ntl if fl is None else fl
        m0 = sM0V if m0 is None else m0
        off = sVoffs if off is None else off
        r = [f"s_mov_b32 m0, s{m0}",
             f"s_mov_b64 exec, s[{sExV}:{sExV+1}]",
             f"buffer_load_dwordx4 v{vVoff}, s[{sV}:{sV+3}], s{off} offen{fl} lds",
             f"s_add_u32 m0, s{m0}, 128",
             f"s_add_u32 s{sM0V}, s{sM0V}, 0x4000" if adv else "s_nop 0",
             f"buffer_load_dwordx4 v{vVoff}, s[{sV}:{sV+3}], s{off} offen offset:896{fl} lds",
             f"s_mov_b64 exec, -1"]
        if adv:
            r += [f"s_and_b32 s{sM0V}, s{sM0V}, 0xffff", f"s_add_u32 s{sVoffs}, s{sVoffs}, {CH}"]
        return r

    nat_reads = [f"ds_read2_b64 {vr(vP+4*i,4)}, v{vNat} offset0:{2*i} offset1:{2*i+1}" for i in range(3)] + \
                [f"ds_read_b64 {vr(vP+12,2)}, v{vNat} offset:48"]
    tr_reads = [f"ds_read_b64_tr_b16 {vr(vTt+2*m,2)}, v{vTr} offset:{8*m}" for m in range(7)]
    dots = [f"v_dot2_f32_bf16 v{vSS}, v{vP+i}, v{vP+i}, {'0' if i == 0 else 'v%d' % vSS}" for i in range(14)]
    grams = [f"v_mfma_f32_4x4x4_16b_bf16 {vr(vD,4)}, {vr(vP+2*m,2)}, {vr(vP+2*m,2)}, {'0' if m == 0 else vr(vD,4)}" for m in range(7)]
    sels = [f"v_cndmask_b32 v{vSS}, v{vD if i == 0 else vSS}, v{vD+1+i}, s[{sMk+2*i}:{sMk+2*i+1}]" for i in range(3)]
    norm = [f"v_sqrt_f32 v{vSS}, v{vSS}", f"v_add_f32 v{vSS}, s{sEps}, v{vSS}", f"v_rcp_f32 v{vR}, v{vSS}",
            f"v_cvt_pk_bf16_f32 v{vR}, v{vR}, v{vR}", f"v_and_b32 v{vB}, v{vR}, v{vMa}", f"v_and_b32 v{vB+1}, v{vR}, v{vMb}"]
    smalls = [f"v_mfma_f32_4x4x4_16b_bf16 {vr(vD+4*m,4)}, {vr(vTt+2*m,2)}, {vr(vB,2)}, 0" for m in range(7)]
    cvts = [f"v_cvt_pk_bf16_f32 v{vP+i}, v{vD+2*i}, v{vD+2*i+1}" for i in range(14)]
    writes = [f"ds_write_b128 v{vKw}, {vr(vP+4*i,4)} offset:{512*i}" for i in range(4)]

    e("s_load_dwordx4 s[4:7], s[0:1], 0")
    e("s_load_dwordx4 s[8:11], s[0:1], 16")
    e("s_load_dwordx2 s[12:13], s[0:1], 32")
    e("s_cmp_ge_u32 s2, 256")
    e("s_cbranch_scc1 L_end")
    if opt.ws:
        e("s_memtime s[72:73]"); e("s_memrealtime s[76:77]"); e("s_mov_b32 s70, 0"); e("s_mov_b32 s71, 0")
    if opt.padto: e("s_memrealtime s[76:77]")
    e(f"v_lshrrev_b32 v{vT0}, 6, v0")
    e(f"v_and_b32 v{vLane}, 63, v0")
    e(f"v_readfirstlane_b32 s{sWave}, v{vT0}")
    if opt.cpf:
        c("pull the kernel's own code into L2 while the first data is on its way: one line per wave")
        e("s_getpc_b64 s[14:15]")
        lab("L_pc")
        e(f"s_and_b32 s3, s2, 56")
        e(f"v_add_u32 v{vT1}, s3, v{vT0}")
        e(f"v_min_u32 v{vT1}, (L_special - L_pc) / 128, v{vT1}")
        e(f"v_lshlrev_b32 v{vT1}, 7, v{vT1}")
        e(f"global_load_dword v{vPad}, v{vT1}, s[14:15]")
    if opt.jit:
        e("s_memtime s[62:63]"); e("s_waitcnt lgkmcnt(0)"); e(f"s_mul_i32 s63, s{sWave}, 977"); e("s_add_u32 s63, s63, s62")
    c("head = (wg&7)*4 + (wg>>6), qblk = (wg>>3)&7")
    e("s_and_b32 s3, s2, 7")
    e(f"s_lshr_b32 s{sHead}, s2, 6")
    e(f"s_lshl2_add_u32 s{sHead}, s3, s{sHead}")
    e(f"s_mov_b32 s{sMode}, 0")
    e(f"v_lshlrev_b32 v{vL16}, 4, v{vLane}")
    lab("L_restart")
    e(f"s_movk_i32 s{sTmp2}, 3584")
    e(f"s_mov_b32 s{sR+2}, {HB}")
    e(f"s_mov_b32 s{sR+3}, 0x00020000")
    e(f"s_mul_i32 s3, s{sHead}, s{sR+2}")
    e(f"s_mul_i32 s{sM0R}, s{sWave}, s{sTmp2}")
    e(f"s_add_u32 s{sM0R}, s{sM0R}, {LDS_R}")
    e(f"s_and_b32 s{sQg}, s{sWave}, 3")
    e(f"s_mul_i32 s{sKnext}, s{sQg}, s{sTmp2}")
    c("waves 0..3 (group 1) start with K0, waves 4..7 (group 0) with the Q rows qblk*256 + qg*64")
    e(f"s_and_b32 s{sTmp}, s2, 56")
    e(f"s_mulk_i32 s{sTmp}, 1792")
    e(f"s_add_u32 s{sOoff}, s{sTmp}, s{sKnext}")
    e(f"s_and_b32 s{sTmp2}, s{sHead}, 15")
    e(f"s_lshl_b32 s{sTmp2}, s{sTmp2}, 1")
    e(f"v_mov_b32 v{vTv}, s{sTmp2}")
    if opt.touch:
        e(f"s_lshr_b32 s{sPre}, s{sTmp}, 3")
        e(f"s_add_u32 s{sPre}, s{sPre}, {CH}")
        e(f"s_lshl_b32 s{sTmp2}, s{sQg}, 2")
        e(f"v_and_or_b32 v{vT0}, v{vLane}, 3, s{sTmp2}")
        e(f"v_min_u32 v{vT0}, 13, v{vT0}")
        e(f"v_lshlrev_b32 v{vT0}, 7, v{vT0}")
    e(f"s_mov_b32 m0, s{sM0R}")
    e(f"s_cmp_lt_u32 s{sWave}, 4")
    e(f"s_cselect_b32 s{sG}, 1, 0")
    e(f"s_cselect_b32 s{sTmp}, s{sKnext}, s{sOoff}")
    e("s_waitcnt lgkmcnt(0)")
    e(f"s_cselect_b32 s{sR}, s6, s4")
    e(f"s_cselect_b32 s{sR+1}, s7, s5")
    e(f"global_load_ushort v{vTv}, v{vTv}, s[10:11]")
    e(f"s_add_u32 s{sR}, s{sR}, s3")
    e(f"s_addc_u32 s{sR+1}, s{sR+1}, 0")
    def touch():
        c("group 1 touches this block's share of K1: an L2 hit for the head's 8 blocks once it is fetched")
        e(f"s_cmp_eq_u32 s{sG}, 0")
        e("s_cbranch_scc1 L_nt")
        e(f"buffer_load_dword v{vFlag}, v{vT0}, s[{sR}:{sR+3}], s{sPre} offen{opt.nt0 if opt.touch & 2 else ''}")
        lab("L_nt")
    if opt.touch: touch()
    for t in rawdma_l(sR, sTmp, fl=opt.nt0)[2:]: e(t)
    lst(1)
    for srd, p in ((sK, 6), (sV, 8), (sO, 12)):
        e(f"s_add_u32 s{srd}, s{p}, s3")
        e(f"s_addc_u32 s{srd+1}, s{p+1}, 0")
        e(f"s_mov_b32 s{srd+2}, s{sR+2}")
        e(f"s_mov_b32 s{srd+3}, 0x00020000")
    c("output rows of this wave: + G*32")
    e(f"s_mul_i32 s{sTmp}, s{sG}, 1792")
    e(f"s_add_u32 s{sOoff}, s{sOoff}, s{sTmp}")
    e(f"s_mov_b32 s{sExV}, 0x7f7f7f7f")
    e(f"s_mov_b32 s{sExV+1}, s{sExV}")
    e(f"s_lshl_b32 s{sM0V}, s{sWave}, 11")
    c("vVoff = (lane>>3)*112 + (lane&7)*16 = lane*16 - (lane>>3)*16")
    e(f"v_lshrrev_b32 v{vT0}, 3, v{vLane}")
    e(f"v_and_b32 v{vT1}, 15, v{vLane}")
    e(f"v_sub_u32 v{vVoff}, v{vLane}, v{vT0}")
    e(f"v_lshrrev_b32 v{vSS}, 4, v{vLane}")
    e(f"v_lshlrev_b32 v{vVoff}, 4, v{vVoff}")
    c("ones pads in the V ring: lane -> slot lane>>4, pair lane&15")
    e(f"v_lshl_add_u32 v{vT1}, v{vSS}, 7, v{vT1}")
    e(f"v_mov_b32 v{vD}, 0x3f80")
    e(f"v_mov_b32 v{vD+1}, 0")
    e(f"v_lshl_add_u32 v{vT1}, v{vT1}, 7, s{sM0V}")
    e(f"ds_write_b64 v{vT1}, {vr(vD,2)} offset:112")
    c("progress flags: one word per wave")
    if opt.dsadd:
        e(f"s_lshl_b32 s{sTmp}, s{sWave}, 8")
        e(f"s_add_u32 s{sTmp}, s{sTmp}, {LDS_F}")
        e(f"v_lshl_add_u32 v{vFw}, v{vLane}, 2, s{sTmp}")
    else:
        e(f"s_lshl_b32 s{sTmp}, s{sWave}, 2")
        e(f"s_add_u32 s{sTmp}, s{sTmp}, {LDS_F}")
        e(f"v_mov_b32 v{vFw}, s{sTmp}")
    e(f"v_mov_b32 v{vCnt}, 0" if not opt.v1wait else f"v_sub_u32 v{vCnt}, 1, s{sG}")
    e(f"v_and_b32 v{vT0}, 3, v{vLane}")
    e(f"v_bfe_u32 v{vSS}, v{vLane}, 2, 2")
    e(f"ds_write_b32 v{vFw}, v{vCnt}")
    c("staging addresses")
    e(f"v_lshl_add_u32 v{vSS}, v{vT0}, 2, v{vSS}")
    e(f"v_mul_u32_u24 v{vNat}, 56, v{vLane}")
    e(f"v_and_or_b32 v{vSS}, v{vLane}, 48, v{vSS}")
    e(f"v_lshlrev_b32 v{vT0}, 4, v{vT0}")
    e(f"v_mul_u32_u24 v{vTr}, 56, v{vSS}")
    e(f"v_mov_b32 v{vMa}, 0xffff")
    e(f"v_mov_b32 v{vMb}, 0")
    e(f"v_add_u32 v{vNat}, s{sM0R}, v{vNat}")
    e(f"v_add_u32 v{vTr}, s{sM0R}, v{vTr}")
    e(f"v_lshlrev_b64 {vr(vMa,2)}, v{vT0}, {vr(vMa,2)}")
    c("frag write address: (lane>>5)*2048 + (lane&31)*16 + qg*4096 + K slot 0 (group 1) / slot 3 (group 0: Q fragments, later K3)")
    e(f"v_lshrrev_b32 v{vR}, 5, v{vLane}")
    e(f"s_lshl_b32 s{sAlt}, s{sQg}, 12")
    e(f"s_cmp_eq_u32 s{sG}, 0")
    e(f"s_cselect_b32 s{sX}, {LDS_Q - LDS_K}, 0")
    e(f"s_add_u32 s{sAlt}, s{sAlt}, {LDS_K}")
    e(f"s_add_u32 s{sX}, s{sX}, s{sAlt}")
    e(f"v_mul_u32_u24 v{vKw}, 1536, v{vR}")
    e(f"v_mov_b32 v{vP+14}, 0x3f803f80")
    e(f"v_add3_u32 v{vKw}, v{vKw}, v{vL16}, s{sX}")
    e(f"v_mov_b32 v{vP+15}, v{vP+14}")
    e(f"s_mov_b32 s{sEps}, 0x358637bd")
    e(f"s_mov_b32 s{sMk}, 0x22222222")
    e(f"s_mov_b32 s{sMk+1}, s{sMk}")
    e(f"s_lshl_b64 s[{sMk+2}:{sMk+3}], s[{sMk}:{sMk+1}], 1")
    e(f"s_lshl_b64 s[{sMk+4}:{sMk+5}], s[{sMk}:{sMk+1}], 2")
    c("output row offset in the staging buffer: (lane&31)*56 + h*32 = lane*56 - h*1760")
    e(f"v_mul_u32_u24 v{vT0}, 1760, v{vR}")
    c("Q fragment addresses: local block 1 is this wave's own block G")
    e(f"s_lshl_b32 s{sTmp}, s{sG}, 11")
    e(f"s_add_u32 s{sTmp}, s{sTmp}, s{sAlt}")
    e(f"s_add_u32 s{sTmp}, s{sTmp}, {LDS_Q - LDS_K}")
    e(f"v_sub_u32 v{vOoff}, v{vNat}, v{vT0}")
    e(f"v_add_u32 v{vTq}, s{sTmp}, v{vL16}")
    e(f"v_mov_b64 {vr(vVf+28,2)}, 0")
    e(f"v_xor_b32 v{vNq}, 0x800, v{vTq}")
    e(f"v_mov_b64 {vr(vVf+30,2)}, 0")
    c("V transpose-read address: 512*b5 + 128*b3 + 8*sel(b4,b2,b1,b0); sel = pi + 7*b2 with pi = 2*b4 + b1 + 4*b0, 14 (the pad) if pi == 7")
    tab = 0
    for idx in range(16):
        b0, b1, b2, b4 = idx & 1, (idx >> 1) & 1, (idx >> 2) & 1, (idx >> 3) & 1
        pi = 2*b4 + b1 + 4*b0
        tab |= (14 if pi == 7 else pi + 7*b2) << (4*idx)
    e(f"s_mov_b32 s{sTmp}, {hex(tab & 0xffffffff)}")
    e(f"s_mov_b32 s{sTmp2}, {hex(tab >> 32)}")
    e(f"v_mfma_i32_32x32x32_i8 {vr(vO,16)}, {vr(vVf+28,4)}, {vr(vVf+28,4)}, 0")
    e(f"v_and_b32 v{vFr}, 7, v{vLane}")
    e(f"v_lshlrev_b32 v{vT0}, 1, v{vLane}")
    e(f"v_lshlrev_b32 v{vFr}, 2, v{vFr}")
    e(f"v_and_b32 v{vVr}, 40, v{vLane}")
    e(f"v_and_or_b32 v{vT0}, v{vT0}, 32, v{vFr}")
    e(f"v_lshlrev_b32 v{vVr}, 4, v{vVr}")
    e(f"v_lshrrev_b64 {vr(vB,2)}, v{vT0}, s[{sTmp}:{sTmp2}]")
    e(f"v_mfma_i32_32x32x32_i8 {vr(vO+16,16)}, {vr(vVf+28,4)}, {vr(vVf+28,4)}, 0")
    e(f"s_lshl_b32 s{sTmp2}, s{sG}, 13")
    e(f"v_and_b32 v{vB}, 15, v{vB}")
    if opt.dsadd: e(f"v_mul_u32_u24 v{vFr}, 65, v{vFr}")
    e(f"v_add_u32 v{vFr}, {LDS_F}, v{vFr}")
    e(f"v_lshl_add_u32 v{vVr}, v{vB}, 3, v{vVr}")
    e(f"v_mov_b32 v{vCnt}, 1")
    e(f"v_add_u32 v{vVr}, s{sTmp2}, v{vVr}")
    e(f"s_add_u32 s{sTmp2}, s{sTmp2}, {LDS_K}")
    e(f"v_mov_b32 v{vIdx}, 0xdddddddd")
    e(f"v_add_u32 v{vKr}, s{sTmp2}, v{vL16}")
    e(f"s_mov_b32 s{sIter}, 0")
    e(f"s_movk_i32 s{sX}, 0x4000")
    if opt.add64:
        e(f"s_mov_b32 s{sD+2}, 0xffff4000")
        e(f"s_mov_b32 s{sD+3}, 0xffff3fff")
        e(f"s_mov_b32 s{sD+4}, s{sX}")
        e(f"s_mov_b32 s{sD+5}, s{sX}")
    def kread(tile, buf):
        o = tile * 2048
        return [f"ds_read_b128 {vr(vKf+8*buf,4)}, v{vKr} offset:{o}",
                f"ds_read_b128 {vr(vKf+8*buf+4,4)}, v{vKr} offset:{o+1024}"]
    def vread(tile, buf):
        o = tile * 2048
        return [f"ds_read_b64_tr_b16 {vr(vVf+8*buf+4*s+2*u,2)}, v{vVr} offset:{o+s*1024+u*256}" for s in range(2) for u in range(2)]
    def m1(T):
        return f"v_mfma_f32_32x32x16_bf16 {vr(vS+16*(T%4),16)}, {vr(vKf+8*((T//2)%2),4)}, {vr(vQ+4*(T%2),4)}, 0"
    def m2(T):
        return f"v_mfma_f32_32x32x16_bf16 {vr(vS+16*(T%4),16)}, {vr(vKf+8*((T//2)%2)+4,4)}, {vr(vQ+8+4*(T%2),4)}, {vr(vS+16*(T%4),16)}"
    def sm(T, s):
        return f"v_smfmac_f32_32x32x32_bf16 {vr(vO+16*(T%2),16)}, {vr(vVf+8*((T//2)%4)+4*s,4)}, {vr(vS+16*(T%4)+8*s,8)}, v{vIdx}"
    def ex(T, j):
        r = vS + 16*(T%4) + j
        return f"v_exp_f32 v{r}, v{r}"

    def vtwo(chunk):
        for half in range(2):
            e(f"s_lshl_b32 s{sTmp}, s{sQg}, 11")
            e(f"s_mul_i32 s{sTmp2}, s{sQg}, 1792")
            if chunk or half:
                e(f"s_add_u32 s{sTmp}, s{sTmp}, {chunk*16384 + half*8192}")
                e(f"s_add_u32 s{sTmp2}, s{sTmp2}, {chunk*CH + half*7168}")
            for t in vdma_l(m0=sTmp, off=sTmp2, adv=False, fl=opt.nt0): e(t)
    def tproc(q):
        e(f"v_lshlrev_b32 v{vTv}, 16, v{vTv}")
        if q:
            c("c = t*log2e")
            e(f"v_mul_f32 v{vT0}, 0x3fb8aa3b, v{vTv}")
        else: e("s_nop 0")
        e(f"v_readfirstlane_b32 s{sAbsT}, v{vTv}")
        if q:
            e(f"v_readfirstlane_b32 s{sScale}, v{vT0}")
            e(f"v_mov_b32 v{vP+15}, 0")
        else: e("s_nop 1")
        c("the shift |t|*log2e bounds every logit; it is used only while it cannot underflow a row (|t| <= 16)")
        e(f"s_and_b32 s{sAbsT}, s{sAbsT}, 0x7fffffff")
        if q:
            e(f"s_or_b32 s{sTmp2}, s{sScale}, 0x80000000")
            e(f"s_lshr_b32 s{sTmp2}, s{sTmp2}, 16")
        e(f"s_cmp_gt_u32 s{sAbsT}, {'0x41800000' if not opt.force_fallback else '0'}")
        if q: e(f"s_cselect_b32 s{sTmp2}, 0, s{sTmp2}")
        e(f"s_cselect_b32 s{sAbsT}, 1, 0")
        if q: e(f"v_mov_b32 v{vP+14}, s{sTmp2}")
    def qreads():
        e(f"ds_read_b128 {vr(vQ,4)}, v{vNq}")
        e(f"ds_read_b128 {vr(vQ+8,4)}, v{vNq} offset:1024")
        e(f"ds_read_b128 {vr(vQ+4,4)}, v{vTq}")
        e(f"ds_read_b128 {vr(vQ+12,4)}, v{vTq} offset:1024")
    def x3():
        for t in rawnext_l(fl=opt.nt0): e(t)
    v0 = vread(0, 0); v1 = vread(1, 1); k0 = kread(0, 0); k1 = kread(1, 1)
    e(f"s_mul_i32 s{sVoffs}, s{sWave}, 1792")
    e(f"s_add_u32 s{sM0V}, s{sM0V}, 0x8000")
    e(f"s_add_u32 s{sVoffs}, s{sVoffs}, {2*CH}")
    e(f"s_cmp_eq_u32 s{sG}, 0")
    e("s_cbranch_scc1 L_st4")
    c("group 1: K1 rows into this wave's part of the still unused K slot 2; K0, K1; V1 and K2 rows")
    e(f"s_add_u32 s{sAlt}, s{sAlt}, 32768")
    e(f"s_add_u32 s{sTmp}, s{sKnext}, {CH}")
    for t in rawdma_l(sK, sTmp, sAlt, fl=opt.nt0): e(t)
    lst(5)
    e(f"s_add_u32 s{sKnext}, s{sKnext}, {2*CH}")
    e(f"s_sub_u32 s{sAlt}, s{sM0R}, s{sAlt}")
    e(f"s_mov_b32 s{sScale}, 1.0")
    if opt.dry:
        c("run the normalisation once on whatever is staged: brings its code into the instruction cache")
        e(f"s_call_b64 s[{sRet}:{sRet+1}], L_prep")
        e(f"v_xor_b32 v{vKw}, 0x8000, v{vKw}")
    e(f"s_waitcnt vmcnt(4)")
    lst(3)
    e(f"s_call_b64 s[{sRet}:{sRet+1}], L_prep")
    e(f"v_xor_b32 v{vKw}, 0xc000, v{vKw}")
    e(f"v_subrev_u32 v{vNat}, s{sAlt}, v{vNat}")
    e(f"v_subrev_u32 v{vTr}, s{sAlt}, v{vTr}")
    tproc(False)
    e("s_waitcnt lgkmcnt(0)")
    lst(4)
    e("s_barrier")
    for t in k0 + k1: e(t)
    if opt.xpos == 0: x3()
    e(f"s_setprio {opt.g1prio}")
    e(f"s_waitcnt vmcnt({4 if opt.xpos == 0 else 0})")
    lst(0)
    if opt.xpos == 1: x3()
    if opt.bpos == 1:
        lst(6); e("s_barrier"); lst(2)
    e(f"s_call_b64 s[{sRet}:{sRet+1}], L_prep")
    e(f"v_xor_b32 v{vKw}, 0x4000, v{vKw}")
    e(f"v_add_u32 v{vNat}, s{sAlt}, v{vNat}")
    e(f"v_add_u32 v{vTr}, s{sAlt}, v{vTr}")
    if opt.xpos == 2: x3()
    if opt.bpos == 0:
        e("s_waitcnt lgkmcnt(0)")
        lst(6); e("s_barrier"); lst(2)
    qreads()
    e(f"ds_write_b32 v{vFw}, v{vCnt}")
    e("s_waitcnt lgkmcnt(1)")
    lab("L_fill")
    e(m1(0)); e(m2(0))
    e("s_nop 1")
    e("s_branch L_st5")
    lab("L_st4")
    c("group 0: V0; Q rows -> fragments for this wave and its partner")
    vtwo(0)
    if opt.v1pos == 0: vtwo(1)
    n1 = 4 if opt.v1pos == 0 else 0
    lst(5)
    e(f"s_add_u32 s{sKnext}, s{sKnext}, {3*CH}")
    e(f"s_waitcnt vmcnt({8 + n1})")
    tproc(True)
    e("s_waitcnt lgkmcnt(0)")
    lst(3); lst(4)
    e("s_barrier")
    for t in k0 + k1: e(t)
    e(f"s_setprio {opt.p_start}")
    e(f"s_waitcnt vmcnt({4 + n1})")
    lst(0)
    e(f"s_call_b64 s[{sRet}:{sRet+1}], L_prep")
    qreads()
    e(f"v_xor_b32 v{vKw}, 0x8000, v{vKw}")
    e(f"s_mov_b32 s{sScale}, 1.0")
    e("s_waitcnt lgkmcnt(2)")
    e(m1(0)); e(m2(0))
    e(f"v_mov_b32 v{vP+14}, 0x3f803f80")
    e(f"v_mov_b32 v{vP+15}, 0x3f803f80")
    if opt.v1pos == 1: vtwo(1)
    e(f"s_waitcnt vmcnt({0 if opt.v1wait else 4}) lgkmcnt(0)")
    lst(6)
    e("s_barrier")
    lst(2)
    lab("L_st5")
    e(f"s_cmp_lg_u32 s{sAbsT}, 0")
    e("s_cbranch_scc1 L_special")
    lst(7)
    for t in v0: e(t)
    e(f"s_setprio {opt.pf0}")
    e(f"s_cmp_eq_u32 s{sG}, 0")
    e("s_cbranch_scc1 L_pf")
    e(f"s_setprio {opt.pf1}")
    lab("L_pf")
    wst(); lst(8)
    c("first tile: also computes the scores of tile 1")
    k2 = kread(2, 0); v2 = vread(2, 2); vd = vdma_l()
    ei = 0; nl = 0
    for ch in opt.pat0:
        if ch == 'e': e(ex(0, ei)); ei += 1
        elif ch == 'E': e(m1(1))
        elif ch == 'G': e(m2(1))
        elif ch == 'B': e(m1(2))
        elif ch == 'C': e(m2(2))
        elif ch == 'D': e(sm(0, 0))
        elif ch == 'a': e(v1.pop(0)); nl += 1
        elif ch == 'k': assert not v1; e(k2.pop(0)); nl += 1
        elif ch == 'v': assert not k2; e(v2.pop(0)); nl += 1
        elif ch == 'w': e(f"s_waitcnt lgkmcnt({nl})")
        elif ch == 'V':
            for t in vd[0:3] + ["s_mov_b64 exec, -1"]: e(t)
        elif ch == 'U':
            for t in [vd[3], vd[1], vd[5], vd[6], vd[4]] + vd[7:]: e(t)
    assert ei == 16 and len(v2) == 2
    e(f"s_cmp_eq_u32 s{sG}, 0")
    e("s_cbranch_scc1 L_B1")
    e("s_branch L_A1")

    lab("L_prep")
    for m in range(7): e(f"ds_read_b64 {vr(vP+2*m,2)}, v{vNat} offset:{8*m}")
    for s in tr_reads: e(s)
    for m in range(7):
        e(f"s_waitcnt lgkmcnt({13 - m})")
        if m > 0: e("s_nop 0")
        e(grams[m])
    e("s_nop 4")
    for t in sels: e(t)
    e(norm[0]); e("s_nop 0"); e(norm[1]); e(norm[2]); e("s_nop 0")
    e(f"v_mul_f32 v{vR}, s{sScale}, v{vR}")
    for s in norm[3:]: e(s)
    e("s_waitcnt lgkmcnt(0)")
    e("s_nop 0")
    for s in smalls: e(s)
    for i in range(14):
        e(cvts[i])
        if i % 4 == 3: e(writes[i // 4])
    e(writes[3])
    e(f"v_xor_b32 v{vKw}, 0x8000, v{vKw}")
    e(f"s_setpc_b64 s[{sRet}:{sRet+1}]")

    nskip = [0]
    fcmp = f"v_cmp_ge_u32 vcc, s{sIter}, v{vFlag}" if opt.dsadd else f"v_cmp_lt_u32 vcc, v{vFlag}, v{vCnt}"
    def build_half(name, pats):
        ops = []
        q = dict(n=list(nat_reads), t=list(tr_reads), g=list(grams), x=list(sels), s=list(norm), m=list(smalls), c=list(cvts), W=list(writes))
        cnt = dict(n=0, t=0, g=0, x=0, s=0, m=0, c=0, W=0, X=0)
        def add(t, lid=None, needs=()): ops.append((t, lid, list(needs)))
        for T in range(8):
            j = T // 2
            if T == 1: add(f"L_{name}1:")
            for t in jit_l(): add(t)
            if opt.ws and T in opt.stampT:
                for s in wst_l(): add(s)
            if T % 2 == 0:
                rd_k = kread((j + 2) % 4, j % 2); rd_v = vread((j + 2) % 4, (j + 2) % 4)
                ki = vi = 0
            ei = 0
            for ch in pats[T]:
                if ch == 'e': add(ex(T, ei)); ei += 1
                elif ch == 'A':
                    add(sm(T - 1, 1), needs=[('v', ((T-1)//2), 2), ('v', ((T-1)//2), 3)])
                elif ch == 'B': add(m1(T + 2), needs=[('k', j + 1, 0)])
                elif ch == 'C': add(m2(T + 2), needs=[('k', j + 1, 1)])
                elif ch == 'D': add(sm(T, 0), needs=[('v', j, 0), ('v', j, 1)])
                elif ch == 'k': add(rd_k[ki], lid=('k', j + 2, ki)); ki += 1
                elif ch == 'v': add(rd_v[vi], lid=('v', j + 2, vi)); vi += 1
                elif ch == 'w': add("WAIT")
                elif ch == 'n': add(q['n'][cnt['n']], lid=('n', 0, cnt['n'])); cnt['n'] += 1
                elif ch == 't': add(q['t'][cnt['t']], lid=('t', 0, cnt['t'])); cnt['t'] += 1
                elif ch in '0123':
                    if opt.prio: add(f"s_setprio {opt.pmap[int(ch)]}")
                elif ch == 'g': add(q['g'][cnt['g']], needs=[('n', 0, cnt['g'] // 2)]); cnt['g'] += 1
                elif ch == 'x': assert cnt['g'] == 7; add(q['x'][cnt['x']]); cnt['x'] += 1
                elif ch == 's': assert cnt['x'] == 3; add(q['s'][cnt['s']]); cnt['s'] += 1
                elif ch == 'm': assert cnt['s'] == 6; add(q['m'][cnt['m']], needs=[('t', 0, cnt['m'])]); cnt['m'] += 1
                elif ch == 'c': assert cnt['m'] > cnt['c'] // 2; add(q['c'][cnt['c']]); cnt['c'] += 1
                elif ch == 'W':
                    assert cnt['c'] >= min(14, 4*cnt['W'] + 4)
                    add(q['W'][cnt['W']], lid=('W', 0, cnt['W'])); cnt['W'] += 1
                    if cnt['W'] == 4: pending_xor = True
                elif ch == 'X':
                    l = rawnext_l()
                    parts = [l[0:3], l[3:4], l[4:5], l[5:]]
                    for t in parts[cnt['X']]: add(t)
                    cnt['X'] += 1
                elif ch == 'Y': add("s_waitcnt vmcnt(2)")
                elif ch == 'z': add(f"s_cmp_ge_u32 s{sIter}, 5")
                elif ch == '[':
                    nskip[0] += 1; add(f"s_cbranch_scc1 L_skip{nskip[0]}")
                elif ch == ']': add(f"L_skip{nskip[0]}:")
                elif ch == 'V':
                    add(f"s_mov_b32 m0, s{sM0V}")
                    add(f"s_mov_b64 exec, s[{sExV}:{sExV+1}]")
                    add(f"buffer_load_dwordx4 v{vVoff}, s[{sV}:{sV+3}], s{sVoffs} offen{opt.ntl} lds")
                    add(f"s_mov_b64 exec, -1")
                elif ch == 'U':
                    add(f"s_add_u32 m0, s{sM0V}, 128")
                    add(f"s_mov_b64 exec, s[{sExV}:{sExV+1}]")
                    add(f"buffer_load_dwordx4 v{vVoff}, s[{sV}:{sV+3}], s{sVoffs} offen offset:896{opt.ntl} lds")
                    add(f"s_mov_b64 exec, -1")
                elif ch == 'p':
                    if opt.v1wait: continue
                    add("s_waitcnt vmcnt(6)")
                    add(f"ds_write_b32 v{vFw}, v{vCnt}", lid=('p', 0, 0))
                elif ch == 'q': add(f"s_cmp_eq_u32 s{sIter}, 7")
                elif ch == 'T': add("s_cbranch_scc1 L_tail")
                elif ch == 'y': add("s_waitcnt vmcnt(0)")
                elif ch == 'f': add(f"ds_read_b32 v{vFlag}, v{vFr}", lid=('f', 0, 0))
                elif ch == 'F':
                    add(fcmp, needs=[('f', 0, 0)])
                    if opt.add64:
                        add(f"v_lshl_add_u64 {vr(vKr,2)}, {vr(vKr,2)}, 0, s[{sD}:{sD+1}]")
                    else:
                        add(f"v_xor_b32 v{vKr}, s{sX}, v{vKr}")
                        add(f"v_xor_b32 v{vVr}, s{sX}, v{vVr}")
                    add(f"s_cbranch_vccnz L_spin{name}")
                    add(f"L_back{name}:")
                    if not opt.dsadd: add(f"v_add_u32 v{vCnt}, 1, v{vCnt}")
                    if not opt.add64: add(f"s_xor_b32 s{sX}, s{sX}, 0x8000")
                elif ch == 'j':
                    if opt.add64:
                        jj = [f"s_cmp_eq_u32 s{sIter}, 3", f"s_cselect_b64 s[{sD}:{sD+1}], s[{sD+2}:{sD+3}], s[{sD+4}:{sD+5}]"]
                        add(jj[cnt.setdefault('j', 0)])
                    cnt['j'] = cnt.get('j', 0) + 1
                elif ch == 'i':
                    it = [f"s_add_u32 s{sIter}, s{sIter}, 1"]
                    add(it[cnt.setdefault('i', 0)]); cnt['i'] += 1
                elif ch == 'a':
                    adv = [f"s_add_u32 s{sM0V}, s{sM0V}, 0x4000", f"s_and_b32 s{sM0V}, s{sM0V}, 0xffff",
                           f"s_add_u32 s{sVoffs}, s{sVoffs}, {CH}"]
                    add(adv[cnt.setdefault('a', 0)]); cnt['a'] += 1
                elif ch == 'P':
                    add(f"ds_add_u32 v{vFw}, v{vCnt}" if opt.dsadd else f"ds_write_b32 v{vFw}, v{vCnt}", lid=('P', 0, 0))
                    if name == 'A':
                        assert cnt['W'] == 4
                        add(f"v_xor_b32 v{vKw}, 0x8000, v{vKw}")
                else: raise ValueError(ch)
            assert ei == 16, (name, T, ei)
            if T % 2 == 1: assert ki == 2 and vi == 4
        if name == 'A':
            assert cnt == dict(n=4, t=7, g=7, x=3, s=6, m=7, c=14, W=4, X=0, a=3, i=1, j=2), cnt
        return ops

    halves = {'A': build_half('A', opt.patA), 'B': build_half('B', opt.patB)}
    def shift(ops):
        out = []
        for t, lid, needs in ops:
            if lid is not None:
                lid = (lid[0], lid[1] - 4, lid[2]) if lid[0] in 'kv' else (lid[0], -1, lid[2])
            out.append((t, lid, []))
        return out
    def resolve(name):
        ops = halves[name]
        res = {}
        for pred in 'AB':
            seq = shift(halves[pred]) + ops
            base = len(seq) - len(ops)
            pos = {lid: i for i, (t, lid, n) in enumerate(seq) if lid is not None}
            waits = [i for i in range(base, len(seq)) if seq[i][0] == "WAIT"]
            covered = -1
            covered = pos[('k', 0, 1)]
            for i in range(base, len(seq)):
                t, lid, needs = seq[i]
                if t == "WAIT":
                    nxt = min([w for w in waits if w > i] + [len(seq)])
                    need = [pos[x] for k in range(i, nxt) for x in seq[k][2] if x in pos]
                    tgt = max(need + [covered])
                    assert tgt < i, ("wait placed before its load", name, seq[tgt][0])
                    n = sum(1 for k in range(tgt + 1, i) if seq[k][1] is not None)
                    res[i - base] = min(res.get(i - base, 15), n)
                    covered = tgt
                for x in needs:
                    if x in pos: assert pos[x] <= covered, ("uncovered", name, t, x)
                    else: assert x[0] == 'v' and x[1] < -2 or x[1] <= -2, x
        out = [(f"s_waitcnt lgkmcnt({res[i]})" if t == "WAIT" else t) for i, (t, lid, n) in enumerate(ops)]
        return [t for t in out if not any(re.search(d, t) for d in opt.drop)]

    L.append(".p2align 3")
    lab("L_A")
    for t in resolve('A'):
        (L.append(t) if t.endswith(":") else e(t))
    lab("L_B")
    for t in resolve('B'):
        (L.append(t) if t.endswith(":") else e(t))
    e(f"s_cmp_lt_u32 s{sIter}, 6")
    e("s_cbranch_scc1 L_A")
    e("s_branch L_B")
    lab("L_tail")
    c("last two tiles; local block 0 goes to the partner wave, local block 1 is finished here")
    e(f"s_lshl_b32 s{sTmp}, s{sWave}, 12")
    e(f"s_add_u32 s{sTmp}, s{sTmp}, {LDS_K}")
    e(f"v_add_u32 v{vT0}, s{sTmp}, v{vL16}")
    e(f"v_xor_b32 v{vT1}, 0x4000, v{vT0}")
    if opt.st_lin:
        e(f"v_add_u32 v{vSS}, s{sM0R}, v{vL16}")
    if opt.otouch:
        c("start the address translation of the output rows; the value is not used")
        e("s_mov_b64 exec, 1")
        e(f"buffer_load_dword v{vFlag}, v{vL16}, s[{sO}:{sO+3}], s{sOoff} offen{' sc1' if opt.otouch == 2 else ''}")
        e("s_mov_b64 exec, -1")
    no = nr = 0
    tv = vread(3, 3)[2:]
    vF = vO + 16
    for T, Tp, Tn, pat in opt.patT:
        jit()
        ei = 0
        for ch in pat:
            if ch == 'e': e(ex(T, ei)); ei += 1
            elif ch == 'A': e(sm(Tp, 1))
            elif ch == 'B': e(m1(Tn))
            elif ch == 'C': e(m2(Tn))
            elif ch == 'D': assert ei >= 10; e(sm(T, 0))
            elif ch == 'w': e("s_waitcnt lgkmcnt(0)")
            elif ch == 'y': e("s_waitcnt vmcnt(0)")
            elif ch == 'n': e("s_nop 0")
            elif ch == 'K': e("s_waitcnt lgkmcnt(2)")
            elif ch == 'v': e(tv.pop(0))
            elif ch == 'b': e("s_barrier")
            elif ch in '0123':
                if opt.prio: e(f"s_setprio {opt.pmap[int(ch)]}")
            elif ch == 'O':
                e(f"ds_write_b128 v{vT0}, {vr(vO+4*no,4)} offset:{1024*no}"); no += 1
            elif ch == 'R':
                e(f"ds_read_b128 {vr(vD+4*nr,4)}, v{vT1} offset:{1024*nr}"); nr += 1
            elif ch == 'a':
                for j in range(0, 16, 2):
                    e(f"v_pk_add_f32 {vr(vF+j,2)}, {vr(vF+j,2)}, {vr(vD+j,2)}")
            else: raise ValueError(ch)
        assert ei == 16
    assert no == 4 and nr == 4
    e("s_nop 1")
    e(sm(7, 1))
    wst()
    e("s_nop 11")
    e(f"v_mov_b32 v{vT0}, v{vF+12}")
    e(f"v_mov_b32 v{vT1}, v{vF+12}")
    e("s_nop 1")
    e(f"v_permlane32_swap_b32 v{vT0}, v{vT1}")
    e(f"v_rcp_f32 v{vB}, v{vT1}")
    e("s_nop 0")
    if True:
        c("rows -> own staging buffer -> whole lines")
        for j in range(4):
            e(f"v_pk_mul_f32 {vr(vF+4*j,2)}, {vr(vF+4*j,2)}, {vr(vB,2)} op_sel_hi:[1,0]")
            e(f"v_pk_mul_f32 {vr(vF+4*j+2,2)}, {vr(vF+4*j+2,2)}, {vr(vB,2)} op_sel_hi:[1,0]")
            e(f"v_cvt_pk_bf16_f32 v{vP+2*j}, v{vF+4*j}, v{vF+4*j+1}")
            e(f"v_cvt_pk_bf16_f32 v{vP+2*j+1}, v{vF+4*j+2}, v{vF+4*j+3}")
            if j == 3: e("s_mov_b32 exec_hi, 0")
            e(f"ds_write_b64 v{vOoff}, {vr(vP+2*j,2)} offset:{8*j}")
        e("s_mov_b32 exec_hi, -1")
        e(f"ds_read_b128 {vr(vD,4)}, v{vSS}")
        e(f"ds_read_b128 {vr(vD+4,4)}, v{vSS} offset:1024")
        e("s_waitcnt lgkmcnt(1)")
        e(f"buffer_store_dwordx4 {vr(vD,4)}, v{vL16}, s[{sO}:{sO+3}], s{sOoff} offen{opt.st_flags}")
        e("s_mov_b32 exec_hi, 0xffff")
        e("s_waitcnt lgkmcnt(0)")
        e(f"buffer_store_dwordx4 {vr(vD+4,4)}, v{vL16}, s[{sO}:{sO+3}], s{sOoff} offen offset:1024{opt.st_flags}")
    if opt.ws:
        e("s_mov_b64 exec, -1")
        if opt.lazy:
            lst(9)
            e("s_waitcnt lgkmcnt(0)")
            for k in range(10):
                e(f"s_sub_u32 s74, s{80+2*k}, s72")
                e(f"v_writelane_b32 v{vSt}, s74, {k}")
            e(f"v_writelane_b32 v{vSt}, s71, 10")
            e("s_mov_b32 s70, 11")
        wst()
        e("s_waitcnt vmcnt(0)")
        wst()
        e("s_memrealtime s[78:79]")
        e("s_load_dwordx2 s[80:81], s[0:1], 48")
        e("s_waitcnt lgkmcnt(0)")
        e("s_mov_b32 s82, 0x1000000"); e("s_mov_b32 s83, 0x00020000")
        e(f"v_writelane_b32 v{vSt}, s70, 31")
        e(f"v_writelane_b32 v{vSt}, s76, 30")
        e(f"v_writelane_b32 v{vSt}, s78, 29")
        e(f"s_lshl_b32 s3, s2, 3"); e(f"s_add_u32 s3, s3, s{sWave}"); e("s_lshl_b32 s3, s3, 7")
        e(f"v_lshlrev_b32 v1, 2, v{vLane}")
        e("s_mov_b32 exec_hi, 0")
        e(f"buffer_store_dword v{vSt}, v1, s[80:83], s3 offen")
    if opt.padto:
        e("s_waitcnt vmcnt(0)")
        lab("L_pspin")
        e("s_memrealtime s[78:79]")
        e("s_waitcnt lgkmcnt(0)")
        e("s_sub_u32 s84, s78, s76")
        e(f"s_cmp_lt_u32 s84, {opt.padto}")
        e("s_cbranch_scc1 L_pspin")
    lab("L_end")
    e("s_endpgm")

    for name in 'AB':
        lab(f"L_spin{name}")
        c("some wave has not yet published the next chunk: wait for it")
        if opt.ws:
            e(f"s_lshl_b32 s{sTmp}, s{sIter}, 2")
            e(f"s_lshl_b32 s{sTmp}, 1, s{sTmp}")
            e(f"s_add_u32 s71, s71, s{sTmp}")
        e(f"s_sleep {opt.sleep}")
        e(f"ds_read_b32 v{vFlag}, v{vFr}")
        e("s_waitcnt lgkmcnt(0)")
        e(fcmp)
        e(f"s_cbranch_vccnz L_spin{name}")
        e(f"s_branch L_back{name}")

    lab("L_special")
    e(f"s_cmp_eq_u32 s{sMode}, 0")
    e("s_cbranch_scc1 L_maxpass")
    c("second pass: put -max into the pad slots of the Q fragments (lanes 32..63)")
    e("s_mov_b32 exec_lo, 0")
    e(f"v_mov_b32 v{vQ+10}, v{vPad}")
    e(f"v_mov_b32 v{vQ+11}, v{vPad+1}")
    e(f"v_mov_b32 v{vQ+14}, v{vPad+2}")
    e(f"v_mov_b32 v{vQ+15}, v{vPad+3}")
    e("s_mov_b32 exec_lo, -1")
    e(f"s_mov_b32 s{sAbsT}, 0")
    e("s_nop 7")
    e("s_branch L_fill")
    lab("L_maxpass")
    mx = [vPad, vPad + 2]
    e(f"v_mov_b32 v{mx[0]}, 0xff800000")
    e(f"v_mov_b32 v{mx[1]}, 0xff800000")
    lab("L_mloop")
    c("chunk sIter is in LDS; group (sIter & 1) normalises chunk sIter + 1 (chunk 1 is done, K2 is staged)")
    e(f"s_add_u32 s{sTmp}, s{sIter}, s{sG}")
    e(f"s_bitcmp1_b32 s{sTmp}, 0")
    e("s_cbranch_scc1 L_mnoprep")
    e(f"s_cmp_eq_u32 s{sIter}, 7")
    e("s_cbranch_scc1 L_mnoprep")
    e(f"s_cmp_eq_u32 s{sIter}, 0")
    e("s_cbranch_scc1 L_mnoprep")
    e(f"s_cmp_eq_u32 s{sIter}, 1")
    e("s_cbranch_scc1 L_mhave")
    for t in rawnext_l(): e(t)
    lab("L_mhave")
    e(f"s_waitcnt vmcnt(0) lgkmcnt(0)")
    e(f"s_call_b64 s[{sRet}:{sRet+1}], L_prep")
    lab("L_mnoprep")
    for j in range(4):
        for s in kread(j, 0): e(s)
        e("s_waitcnt lgkmcnt(0)")
        e(m1(0)); e(m2(0)); e(m1(1)); e(m2(1))
        e("s_nop 15")
        for b in range(2):
            for i in range(0, 16, 2):
                e(f"v_max3_f32 v{mx[b]}, v{vS+16*b+i}, v{vS+16*b+i+1}, v{mx[b]}")
    e("s_barrier")
    e(f"v_xor_b32 v{vKr}, s{sX}, v{vKr}")
    e(f"s_xor_b32 s{sX}, s{sX}, 0x8000")
    e(f"s_add_u32 s{sIter}, s{sIter}, 1")
    e(f"s_cmp_lt_u32 s{sIter}, 8")
    e("s_cbranch_scc1 L_mloop")
    c("combine the two lane halves and the partner wave (whose local blocks are swapped)")
    for b in range(2):
        e(f"v_mov_b32 v{vT0}, v{mx[b]}")
        e("s_nop 1")
        e(f"v_permlane32_swap_b32 v{mx[b]}, v{vT0}")
        e("s_nop 1")
        e(f"v_max_f32 v{mx[b]}, v{mx[b]}, v{vT0}")
    e(f"s_lshl_b32 s{sTmp}, s{sWave}, 12")
    e(f"s_add_u32 s{sTmp}, s{sTmp}, {LDS_K}")
    e(f"v_add_u32 v{vT0}, s{sTmp}, v{vL16}")
    e(f"v_xor_b32 v{vT1}, 0x4000, v{vT0}")
    e("s_waitcnt vmcnt(0) lgkmcnt(0)")
    e(f"ds_write_b32 v{vT0}, v{mx[0]}")
    e(f"ds_write_b32 v{vT0}, v{mx[1]} offset:4")
    e("s_waitcnt lgkmcnt(0)")
    e("s_barrier")
    e(f"ds_read_b64 {vr(vD,2)}, v{vT1}")
    e("s_waitcnt lgkmcnt(0)")
    e("s_barrier")
    e(f"s_mov_b32 s{sTmp}, 0xffff0000")
    for b in range(2):
        m = mx[b]
        e(f"v_max_f32 v{m}, v{m}, v{vD+1-b}")
        c("split -max into three bf16 parts")
        e(f"v_sub_f32 v{m}, 0, v{m}")
        e(f"v_and_b32 v{vT0}, s{sTmp}, v{m}")
        e(f"v_sub_f32 v{m}, v{m}, v{vT0}")
        e(f"v_and_b32 v{vT1}, s{sTmp}, v{m}")
        e(f"v_sub_f32 v{m}, v{m}, v{vT1}")
        e(f"v_lshrrev_b32 v{m+1}, 16, v{m}")
        e(f"v_lshrrev_b32 v{vT0}, 16, v{vT0}")
        e(f"v_or_b32 v{m}, v{vT0}, v{vT1}")
    e(f"s_mov_b32 s{sMode}, 1")
    e("s_branch L_restart")

    txt = HEADER + f"; @launch grid=(256,1,1) block=(512,1,1) lds={LDS_TOTAL}\n"
    txt += """.amdgcn_target "amdgcn-amd-amdhsa--gfx950"
.text
.globl standalone__qk_norm__prompt_kernel
.p2align 8
.type standalone__qk_norm__prompt_kernel,@function
standalone__qk_norm__prompt_kernel:
"""
    txt += "\n".join(L) + "\n"
    txt += f""".section .rodata,"a"
.p2align 6
.amdhsa_kernel standalone__qk_norm__prompt_kernel
  .amdhsa_next_free_vgpr {NV}
  .amdhsa_next_free_sgpr {102 if (opt.ws or opt.padto) else 72}
  .amdhsa_accum_offset {(NV+3)//4*4}
  .amdhsa_group_segment_fixed_size 0
  .amdhsa_kernarg_size 56
  .amdhsa_user_sgpr_count 2
  .amdhsa_user_sgpr_kernarg_segment_ptr 1
  .amdhsa_system_sgpr_workgroup_id_x 1
.end_amdhsa_kernel
"""
    return txt

if __name__ == "__main__":
    opt = Opt()
    out = sys.argv[1]
    for a in sys.argv[2:]:
        k, v = a.split("=", 1)
        assert hasattr(opt, k), k
        setattr(opt, k, eval(v))
    open(out, "w").write(gen(opt))
```

```python
import sys, re

HEADER = """; Kernarg layout for this problem (56 bytes, ptrs only, base s[0:1]):
"""


DOC = """;
"""

PAT_B = [
 "eeA3wkeeeeBkeeeeCveeeeDvee",
 "eeAveeeeBzveeeeCeeeeD[XXXX]ee",
 "eeA2wkeeeeBkeeeeCqveeeeDvpeeT",
 "eeA1veeeeBveeeeC0feeeeDjjee",
 "eeA3wFkeeeeBkeeeeCveeeeDvee",
 "eeAzveeeeByveeeeC[V]eeeeD[U]ee",
 "eeA2wkeeeeBakeeeeCaveeeeDaivee",
 "eeA1veeeeBveeeeC0eeeeDPee",
]
PAT_A = [
 "eeA3wkeeeeBkeeeeCveeeeDvee",
 "eeAYnveeeeBnveeeeCneeeeDnee",
 "eeA2wkteeegeBkteeegeCvteeegeDvtee",
 "egeA1vteeegeBvteeegeC0fteeegeDjjee",
 "eeA3wFkexexexeBkesesesesCvesseemeDvee",
 "emeAzveecemeByvececemeC[V]ececemeD[U]ecec",
 "emeA2wkececemeBakWececeeCavWeceecceDaivee",
 "eeA1vWeeeeBvWeeeeC0eeeeDPee",
]
PAT_T = [
 (3, 2, 6, "eeA1Kveeee" "BveeeeC0eeeeDee"),
 (4, 3, 5, "eeA3eeeeBeeeeCeeeeDee"),
 (6, 4, 7, "eeA2weeeeBeeeeCeeeeD1ee"),
 (5, 6, 0, "eeAeeee0eeeeDnnOOeOeOeeee"),
 (7, 5, 0, "eeAwbReReReReeeeewaeeDeeee"),
]

class Opt:
    ws = False
    patT = PAT_T
    st_flags = ' sc1'
    st_lin = True
    g1prio = 3
    v1pos = 0
    v1wait = 1
    touch = 0
    k1early = 0
    bpos = 0
    lazy = False
    jit = 0
    otouch = 0
    qfirst = 0
    k0prio = 0
    cpf = 1
    padat = -1
    qdelay = 1
    dry = False
    g1early = 0
    nt0 = ''
    add64 = 0
    dsadd = 1
    ntl = ''
    pf0 = 3
    pf1 = 3
    pat0 = 'eeEaaeeeGaaeeeBkVeeeCkUeewDvveee'
    v0pos = 1
    xpos = 2
    pmid = 3
    drop = ()
    padto = 0
    force_fallback = False
    patA = PAT_A
    patB = PAT_B
    prio = True
    pmap = '0123'
    p_start = 2
    sleep = 1
    stampT = (4,)

def gen(opt):
    L = []
    def e(s): L.append("    " + s)
    def lab(s): L.append(s + ":")
    def c(s): L.append("    ; " + s)

    HB = 114688
    CH = 14336
    LDS_V = 0
    LDS_K = 65536
    LDS_Q = LDS_K + 3*16384
    LDS_R = 131072
    LDS_F = LDS_R + 8*3584
    LDS_TOTAL = LDS_F + 2048
    vLane, vL16, vVoff, vKw, vKr, vVr, vIdx, vT0 = 0, 1, 2, 3, 4, 5, 6, 7
    vNat, vTr, vMa, vMb, vOoff, vT1, vSS, vR = 8, 9, 10, 11, 12, 13, 14, 15
    vQ = 16
    vO = 32
    vS = 64
    vKf = 128
    vVf = 144
    vP = 176
    vTt = 192
    vB = 206
    vD = 208
    vPad = 236
    vSt, vTv, vNq = 240, 241, 242
    vTq = 247
    vFw, vFr, vFlag, vCnt = 243, 244, 245, 246
    NV = 248
    sK, sV, sO, sR = 20, 24, 28, 48
    sWave, sHead, sQb, sG, sQg = 32, 33, 34, 35, 36
    sIter, sKnext, sVoffs, sM0V, sM0R = 37, 38, 39, 40, 41
    sT, sScale, sEps, sOoff = 42, 43, 44, 45
    sTmp, sTmp2 = 46, 47
    sExV = 52
    sRet = 54
    sMode, sAbsT = 56, 57
    sPre, sX = 58, 59
    sAlt = 60
    sD = 14
    sMk = 64

    def vr(b, n): return f"v[{b}:{b+n-1}]"

    def wst_l():
        if not opt.ws: return []
        return ["s_memtime s[74:75]", "s_waitcnt lgkmcnt(0)", "s_sub_u32 s74, s74, s72", "s_mov_b32 m0, s70", "s_nop 0",
                f"v_writelane_b32 v{vSt}, s74, m0", "s_add_u32 s70, s70, 1"]
    njit = [0]
    def jit_l():
        if not opt.jit: return []
        njit[0] += 1
        return ["s_mul_i32 s63, s63, 0x41c64e6d", "s_add_u32 s63, s63, 12345", "s_bfe_u32 s62, s63, 0x30014", "s_cmp_lg_u32 s62, 0",
                f"s_cbranch_scc1 L_jit{njit[0]}", f"s_sleep {opt.jit}", f"L_jit{njit[0]}:"]
    def jit():
        for t in jit_l(): (L.append(t) if t.endswith(":") else e(t))
    def wst():
        if opt.lazy: return
        for s in wst_l(): e(s)
    def lst(k):
        if k != 1: jit()
        if opt.padto and opt.padat == k: e("s_memrealtime s[76:77]")
        if opt.lazy: e(f"s_memtime s[{80+2*k}:{81+2*k}]")

    def rawdma_l(srd, soff, m0=None, fl=None):
        fl = opt.ntl if fl is None else fl
        r = [f"s_mov_b32 m0, s{sM0R if m0 is None else m0}", "s_nop 0"]
        for i in range(3):
            r.append(f"buffer_load_dwordx4 v{vL16}, s[{srd}:{srd+3}], s{soff} offen offset:{1024*i}{fl} lds")
        r.append("s_mov_b32 exec_hi, 0")
        r.append(f"buffer_load_dwordx4 v{vL16}, s[{srd}:{srd+3}], s{soff} offen offset:3072{fl} lds")
        r.append("s_mov_b32 exec_hi, -1")
        return r
    def rawnext_l(fl=None):
        return rawdma_l(sK, sKnext, fl=fl) + [f"s_add_u32 s{sKnext}, s{sKnext}, {2*CH}"]

    def vdma_l(m0=None, off=None, adv=True, fl=None):
        fl = opt.ntl if fl is None else fl
        m0 = sM0V if m0 is None else m0
        off = sVoffs if off is None else off
        r = [f"s_mov_b32 m0, s{m0}",
             f"s_mov_b64 exec, s[{sExV}:{sExV+1}]",
             f"buffer_load_dwordx4 v{vVoff}, s[{sV}:{sV+3}], s{off} offen{fl} lds",
             f"s_add_u32 m0, s{m0}, 128",
             f"s_add_u32 s{sM0V}, s{sM0V}, 0x4000" if adv else "s_nop 0",
             f"buffer_load_dwordx4 v{vVoff}, s[{sV}:{sV+3}], s{off} offen offset:896{fl} lds",
             f"s_mov_b64 exec, -1"]
        if adv:
            r += [f"s_and_b32 s{sM0V}, s{sM0V}, 0xffff", f"s_add_u32 s{sVoffs}, s{sVoffs}, {CH}"]
        return r

    nat_reads = [f"ds_read2_b64 {vr(vP+4*i,4)}, v{vNat} offset0:{2*i} offset1:{2*i+1}" for i in range(3)] + \
                [f"ds_read_b64 {vr(vP+12,2)}, v{vNat} offset:48"]
    tr_reads = [f"ds_read_b64_tr_b16 {vr(vTt+2*m,2)}, v{vTr} offset:{8*m}" for m in range(7)]
    dots = [f"v_dot2_f32_bf16 v{vSS}, v{vP+i}, v{vP+i}, {'0' if i == 0 else 'v%d' % vSS}" for i in range(14)]
    grams = [f"v_mfma_f32_4x4x4_16b_bf16 {vr(vD,4)}, {vr(vP+2*m,2)}, {vr(vP+2*m,2)}, {'0' if m == 0 else vr(vD,4)}" for m in range(7)]
    sels = [f"v_cndmask_b32 v{vSS}, v{vD if i == 0 else vSS}, v{vD+1+i}, s[{sMk+2*i}:{sMk+2*i+1}]" for i in range(3)]
    norm = [f"v_sqrt_f32 v{vSS}, v{vSS}", f"v_add_f32 v{vSS}, s{sEps}, v{vSS}", f"v_rcp_f32 v{vR}, v{vSS}",
            f"v_cvt_pk_bf16_f32 v{vR}, v{vR}, v{vR}", f"v_and_b32 v{vB}, v{vR}, v{vMa}", f"v_and_b32 v{vB+1}, v{vR}, v{vMb}"]
    smalls = [f"v_mfma_f32_4x4x4_16b_bf16 {vr(vD+4*m,4)}, {vr(vTt+2*m,2)}, {vr(vB,2)}, 0" for m in range(7)]
    cvts = [f"v_cvt_pk_bf16_f32 v{vP+i}, v{vD+2*i}, v{vD+2*i+1}" for i in range(14)]
    writes = [f"ds_write_b128 v{vKw}, {vr(vP+4*i,4)} offset:{512*i}" for i in range(4)]

    e("s_load_dwordx4 s[4:7], s[0:1], 0")
    e("s_load_dwordx4 s[8:11], s[0:1], 16")
    e("s_load_dwordx2 s[12:13], s[0:1], 32")
    e("s_cmp_ge_u32 s2, 256")
    e("s_cbranch_scc1 L_end")
    if opt.ws:
        e("s_memtime s[72:73]"); e("s_memrealtime s[76:77]"); e("s_mov_b32 s70, 0"); e("s_mov_b32 s71, 0")
    if opt.padto: e("s_memrealtime s[76:77]")
    e(f"v_lshrrev_b32 v{vT0}, 6, v0")
    e(f"v_and_b32 v{vLane}, 63, v0")
    e(f"v_readfirstlane_b32 s{sWave}, v{vT0}")
    if opt.cpf:
        c("pull the kernel's own code into L2 while the first data is on its way: one line per wave")
        e("s_getpc_b64 s[14:15]")
        lab("L_pc")
        e(f"s_and_b32 s3, s2, 56")
        e(f"v_add_u32 v{vT1}, s3, v{vT0}")
        e(f"v_min_u32 v{vT1}, (L_special - L_pc) / 128, v{vT1}")
        e(f"v_lshlrev_b32 v{vT1}, 7, v{vT1}")
        e(f"global_load_dword v{vPad}, v{vT1}, s[14:15]")
    if opt.jit:
        e("s_memtime s[62:63]"); e("s_waitcnt lgkmcnt(0)"); e(f"s_mul_i32 s63, s{sWave}, 977"); e("s_add_u32 s63, s63, s62")
    c("head = (wg&7)*4 + (wg>>6), qblk = (wg>>3)&7")
    e("s_and_b32 s3, s2, 7")
    e(f"s_lshr_b32 s{sHead}, s2, 6")
    e(f"s_lshl2_add_u32 s{sHead}, s3, s{sHead}")
    e(f"s_mov_b32 s{sMode}, 0")
    e(f"v_lshlrev_b32 v{vL16}, 4, v{vLane}")
    lab("L_restart")
    e(f"s_movk_i32 s{sTmp2}, 3584")
    e(f"s_mov_b32 s{sR+2}, {HB}")
    e(f"s_mov_b32 s{sR+3}, 0x00020000")
    e(f"s_mul_i32 s3, s{sHead}, s{sR+2}")
    e(f"s_mul_i32 s{sM0R}, s{sWave}, s{sTmp2}")
    e(f"s_add_u32 s{sM0R}, s{sM0R}, {LDS_R}")
    e(f"s_and_b32 s{sQg}, s{sWave}, 3")
    e(f"s_mul_i32 s{sKnext}, s{sQg}, s{sTmp2}")
    c("waves 0..3 (group 1) start with K0, waves 4..7 (group 0) with the Q rows qblk*256 + qg*64")
    e(f"s_and_b32 s{sTmp}, s2, 56")
    e(f"s_mulk_i32 s{sTmp}, 1792")
    e(f"s_add_u32 s{sOoff}, s{sTmp}, s{sKnext}")
    e(f"s_and_b32 s{sTmp2}, s{sHead}, 15")
    e(f"s_lshl_b32 s{sTmp2}, s{sTmp2}, 1")
    e(f"v_mov_b32 v{vTv}, s{sTmp2}")
    if opt.touch:
        e(f"s_lshr_b32 s{sPre}, s{sTmp}, 3")
        e(f"s_add_u32 s{sPre}, s{sPre}, {CH}")
        e(f"s_lshl_b32 s{sTmp2}, s{sQg}, 2")
        e(f"v_and_or_b32 v{vT0}, v{vLane}, 3, s{sTmp2}")
        e(f"v_min_u32 v{vT0}, 13, v{vT0}")
        e(f"v_lshlrev_b32 v{vT0}, 7, v{vT0}")
    e(f"s_mov_b32 m0, s{sM0R}")
    e(f"s_cmp_lt_u32 s{sWave}, 4")
    e(f"s_cselect_b32 s{sG}, 1, 0")
    e(f"s_cselect_b32 s{sTmp}, s{sKnext}, s{sOoff}")
    e("s_waitcnt lgkmcnt(0)")
    e(f"s_cselect_b32 s{sR}, s6, s4")
    e(f"s_cselect_b32 s{sR+1}, s7, s5")
    e(f"global_load_ushort v{vTv}, v{vTv}, s[10:11]")
    e(f"s_add_u32 s{sR}, s{sR}, s3")
    e(f"s_addc_u32 s{sR+1}, s{sR+1}, 0")
    def touch():
        c("group 1 touches this block's share of K1: an L2 hit for the head's 8 blocks once it is fetched")
        e(f"s_cmp_eq_u32 s{sG}, 0")
        e("s_cbranch_scc1 L_nt")
        e(f"buffer_load_dword v{vFlag}, v{vT0}, s[{sR}:{sR+3}], s{sPre} offen{opt.nt0 if opt.touch & 2 else ''}")
        lab("L_nt")
    if opt.touch: touch()
    for t in rawdma_l(sR, sTmp, fl=opt.nt0)[2:]: e(t)
    lst(1)
    for srd, p in ((sK, 6), (sV, 8), (sO, 12)):
        e(f"s_add_u32 s{srd}, s{p}, s3")
        e(f"s_addc_u32 s{srd+1}, s{p+1}, 0")
        e(f"s_mov_b32 s{srd+2}, s{sR+2}")
        e(f"s_mov_b32 s{srd+3}, 0x00020000")
    c("output rows of this wave: + G*32")
    e(f"s_mul_i32 s{sTmp}, s{sG}, 1792")
    e(f"s_add_u32 s{sOoff}, s{sOoff}, s{sTmp}")
    e(f"s_mov_b32 s{sExV}, 0x7f7f7f7f")
    e(f"s_mov_b32 s{sExV+1}, s{sExV}")
    e(f"s_lshl_b32 s{sM0V}, s{sWave}, 11")
    c("vVoff = (lane>>3)*112 + (lane&7)*16 = lane*16 - (lane>>3)*16")
    e(f"v_lshrrev_b32 v{vT0}, 3, v{vLane}")
    e(f"v_and_b32 v{vT1}, 15, v{vLane}")
    e(f"v_sub_u32 v{vVoff}, v{vLane}, v{vT0}")
    e(f"v_lshrrev_b32 v{vSS}, 4, v{vLane}")
    e(f"v_lshlrev_b32 v{vVoff}, 4, v{vVoff}")
    c("ones pads in the V ring: lane -> slot lane>>4, pair lane&15")
    e(f"v_lshl_add_u32 v{vT1}, v{vSS}, 7, v{vT1}")
    e(f"v_mov_b32 v{vD}, 0x3f80")
    e(f"v_mov_b32 v{vD+1}, 0")
    e(f"v_lshl_add_u32 v{vT1}, v{vT1}, 7, s{sM0V}")
    e(f"ds_write_b64 v{vT1}, {vr(vD,2)} offset:112")
    c("progress flags: one word per wave")
    if opt.dsadd:
        e(f"s_lshl_b32 s{sTmp}, s{sWave}, 8")
        e(f"s_add_u32 s{sTmp}, s{sTmp}, {LDS_F}")
        e(f"v_lshl_add_u32 v{vFw}, v{vLane}, 2, s{sTmp}")
    else:
        e(f"s_lshl_b32 s{sTmp}, s{sWave}, 2")
        e(f"s_add_u32 s{sTmp}, s{sTmp}, {LDS_F}")
        e(f"v_mov_b32 v{vFw}, s{sTmp}")
    e(f"v_mov_b32 v{vCnt}, 0" if not opt.v1wait else f"v_sub_u32 v{vCnt}, 1, s{sG}")
    e(f"v_and_b32 v{vT0}, 3, v{vLane}")
    e(f"v_bfe_u32 v{vSS}, v{vLane}, 2, 2")
    e(f"ds_write_b32 v{vFw}, v{vCnt}")
    c("staging addresses")
    e(f"v_lshl_add_u32 v{vSS}, v{vT0}, 2, v{vSS}")
    e(f"v_mul_u32_u24 v{vNat}, 56, v{vLane}")
    e(f"v_and_or_b32 v{vSS}, v{vLane}, 48, v{vSS}")
    e(f"v_lshlrev_b32 v{vT0}, 4, v{vT0}")
    e(f"v_mul_u32_u24 v{vTr}, 56, v{vSS}")
    e(f"v_mov_b32 v{vMa}, 0xffff")
    e(f"v_mov_b32 v{vMb}, 0")
    e(f"v_add_u32 v{vNat}, s{sM0R}, v{vNat}")
    e(f"v_add_u32 v{vTr}, s{sM0R}, v{vTr}")
    e(f"v_lshlrev_b64 {vr(vMa,2)}, v{vT0}, {vr(vMa,2)}")
    c("frag write address: (lane>>5)*2048 + (lane&31)*16 + qg*4096 + K slot 0 (group 1) / slot 3 (group 0: Q fragments, later K3)")
    e(f"v_lshrrev_b32 v{vR}, 5, v{vLane}")
    e(f"s_lshl_b32 s{sAlt}, s{sQg}, 12")
    e(f"s_cmp_eq_u32 s{sG}, 0")
    e(f"s_cselect_b32 s{sX}, {LDS_Q - LDS_K}, 0")
    e(f"s_add_u32 s{sAlt}, s{sAlt}, {LDS_K}")
    e(f"s_add_u32 s{sX}, s{sX}, s{sAlt}")
    e(f"v_mul_u32_u24 v{vKw}, 1536, v{vR}")
    e(f"v_mov_b32 v{vP+14}, 0x3f803f80")
    e(f"v_add3_u32 v{vKw}, v{vKw}, v{vL16}, s{sX}")
    e(f"v_mov_b32 v{vP+15}, v{vP+14}")
    e(f"s_mov_b32 s{sEps}, 0x358637bd")
    e(f"s_mov_b32 s{sMk}, 0x22222222")
    e(f"s_mov_b32 s{sMk+1}, s{sMk}")
    e(f"s_lshl_b64 s[{sMk+2}:{sMk+3}], s[{sMk}:{sMk+1}], 1")
    e(f"s_lshl_b64 s[{sMk+4}:{sMk+5}], s[{sMk}:{sMk+1}], 2")
    c("output row offset in the staging buffer: (lane&31)*56 + h*32 = lane*56 - h*1760")
    e(f"v_mul_u32_u24 v{vT0}, 1760, v{vR}")
    c("Q fragment addresses: local block 1 is this wave's own block G")
    e(f"s_lshl_b32 s{sTmp}, s{sG}, 11")
    e(f"s_add_u32 s{sTmp}, s{sTmp}, s{sAlt}")
    e(f"s_add_u32 s{sTmp}, s{sTmp}, {LDS_Q - LDS_K}")
    e(f"v_sub_u32 v{vOoff}, v{vNat}, v{vT0}")
    e(f"v_add_u32 v{vTq}, s{sTmp}, v{vL16}")
    e(f"v_mov_b64 {vr(vVf+28,2)}, 0")
    e(f"v_xor_b32 v{vNq}, 0x800, v{vTq}")
    e(f"v_mov_b64 {vr(vVf+30,2)}, 0")
    c("V transpose-read address: 512*b5 + 128*b3 + 8*sel(b4,b2,b1,b0); sel = pi + 7*b2 with pi = 2*b4 + b1 + 4*b0, 14 (the pad) if pi == 7")
    tab = 0
    for idx in range(16):
        b0, b1, b2, b4 = idx & 1, (idx >> 1) & 1, (idx >> 2) & 1, (idx >> 3) & 1
        pi = 2*b4 + b1 + 4*b0
        tab |= (14 if pi == 7 else pi + 7*b2) << (4*idx)
    e(f"s_mov_b32 s{sTmp}, {hex(tab & 0xffffffff)}")
    e(f"s_mov_b32 s{sTmp2}, {hex(tab >> 32)}")
    e(f"v_mfma_i32_32x32x32_i8 {vr(vO,16)}, {vr(vVf+28,4)}, {vr(vVf+28,4)}, 0")
    e(f"v_and_b32 v{vFr}, 7, v{vLane}")
    e(f"v_lshlrev_b32 v{vT0}, 1, v{vLane}")
    e(f"v_lshlrev_b32 v{vFr}, 2, v{vFr}")
    e(f"v_and_b32 v{vVr}, 40, v{vLane}")
    e(f"v_and_or_b32 v{vT0}, v{vT0}, 32, v{vFr}")
    e(f"v_lshlrev_b32 v{vVr}, 4, v{vVr}")
    e(f"v_lshrrev_b64 {vr(vB,2)}, v{vT0}, s[{sTmp}:{sTmp2}]")
    e(f"v_mfma_i32_32x32x32_i8 {vr(vO+16,16)}, {vr(vVf+28,4)}, {vr(vVf+28,4)}, 0")
    e(f"s_lshl_b32 s{sTmp2}, s{sG}, 13")
    e(f"v_and_b32 v{vB}, 15, v{vB}")
    if opt.dsadd: e(f"v_mul_u32_u24 v{vFr}, 65, v{vFr}")
    e(f"v_add_u32 v{vFr}, {LDS_F}, v{vFr}")
    e(f"v_lshl_add_u32 v{vVr}, v{vB}, 3, v{vVr}")
    e(f"v_mov_b32 v{vCnt}, 1")
    e(f"v_add_u32 v{vVr}, s{sTmp2}, v{vVr}")
    e(f"s_add_u32 s{sTmp2}, s{sTmp2}, {LDS_K}")
    e(f"v_mov_b32 v{vIdx}, 0xdddddddd")
    e(f"v_add_u32 v{vKr}, s{sTmp2}, v{vL16}")
    e(f"s_mov_b32 s{sIter}, 0")
    e(f"s_movk_i32 s{sX}, 0x4000")
    if opt.add64:
        e(f"s_mov_b32 s{sD+2}, 0xffff4000")
        e(f"s_mov_b32 s{sD+3}, 0xffff3fff")
        e(f"s_mov_b32 s{sD+4}, s{sX}")
        e(f"s_mov_b32 s{sD+5}, s{sX}")
    def kread(tile, buf):
        o = tile * 2048
        return [f"ds_read_b128 {vr(vKf+8*buf,4)}, v{vKr} offset:{o}",
                f"ds_read_b128 {vr(vKf+8*buf+4,4)}, v{vKr} offset:{o+1024}"]
    def vread(tile, buf):
        o = tile * 2048
        return [f"ds_read_b64_tr_b16 {vr(vVf+8*buf+4*s+2*u,2)}, v{vVr} offset:{o+s*1024+u*256}" for s in range(2) for u in range(2)]
    def m1(T):
        return f"v_mfma_f32_32x32x16_bf16 {vr(vS+16*(T%4),16)}, {vr(vKf+8*((T//2)%2),4)}, {vr(vQ+4*(T%2),4)}, 0"
    def m2(T):
        return f"v_mfma_f32_32x32x16_bf16 {vr(vS+16*(T%4),16)}, {vr(vKf+8*((T//2)%2)+4,4)}, {vr(vQ+8+4*(T%2),4)}, {vr(vS+16*(T%4),16)}"
    def sm(T, s):
        return f"v_smfmac_f32_32x32x32_bf16 {vr(vO+16*(T%2),16)}, {vr(vVf+8*((T//2)%4)+4*s,4)}, {vr(vS+16*(T%4)+8*s,8)}, v{vIdx}"
    def ex(T, j):
        r = vS + 16*(T%4) + j
        return f"v_exp_f32 v{r}, v{r}"

    def vtwo(chunk):
        for half in range(2):
            e(f"s_lshl_b32 s{sTmp}, s{sQg}, 11")
            e(f"s_mul_i32 s{sTmp2}, s{sQg}, 1792")
            if chunk or half:
                e(f"s_add_u32 s{sTmp}, s{sTmp}, {chunk*16384 + half*8192}")
                e(f"s_add_u32 s{sTmp2}, s{sTmp2}, {chunk*CH + half*7168}")
            for t in vdma_l(m0=sTmp, off=sTmp2, adv=False, fl=opt.nt0): e(t)
    def tproc(q):
        e(f"v_lshlrev_b32 v{vTv}, 16, v{vTv}")
        if q:
            c("c = t*log2e")
            e(f"v_mul_f32 v{vT0}, 0x3fb8aa3b, v{vTv}")
        else: e("s_nop 0")
        e(f"v_readfirstlane_b32 s{sAbsT}, v{vTv}")
        if q:
            e(f"v_readfirstlane_b32 s{sScale}, v{vT0}")
            e(f"v_mov_b32 v{vP+15}, 0")
        else: e("s_nop 1")
        c("the shift |t|*log2e bounds every logit; it is used only while it cannot underflow a row (|t| <= 16)")
        e(f"s_and_b32 s{sAbsT}, s{sAbsT}, 0x7fffffff")
        if q:
            e(f"s_or_b32 s{sTmp2}, s{sScale}, 0x80000000")
            e(f"s_lshr_b32 s{sTmp2}, s{sTmp2}, 16")
        e(f"s_cmp_gt_u32 s{sAbsT}, {'0x41800000' if not opt.force_fallback else '0'}")
        if q: e(f"s_cselect_b32 s{sTmp2}, 0, s{sTmp2}")
        e(f"s_cselect_b32 s{sAbsT}, 1, 0")
        if q: e(f"v_mov_b32 v{vP+14}, s{sTmp2}")
    def qreads():
        e(f"ds_read_b128 {vr(vQ,4)}, v{vNq}")
        e(f"ds_read_b128 {vr(vQ+8,4)}, v{vNq} offset:1024")
        e(f"ds_read_b128 {vr(vQ+4,4)}, v{vTq}")
        e(f"ds_read_b128 {vr(vQ+12,4)}, v{vTq} offset:1024")
    def x3():
        for t in rawnext_l(fl=opt.nt0): e(t)
    v0 = vread(0, 0); v1 = vread(1, 1); k0 = kread(0, 0); k1 = kread(1, 1)
    e(f"s_mul_i32 s{sVoffs}, s{sWave}, 1792")
    e(f"s_add_u32 s{sM0V}, s{sM0V}, 0x8000")
    e(f"s_add_u32 s{sVoffs}, s{sVoffs}, {2*CH}")
    e(f"s_cmp_eq_u32 s{sG}, 0")
    e("s_cbranch_scc1 L_st4")
    c("group 1: K1 rows into this wave's part of the still unused K slot 2; K0, K1; V1 and K2 rows")
    e(f"s_add_u32 s{sAlt}, s{sAlt}, 32768")
    e(f"s_add_u32 s{sTmp}, s{sKnext}, {CH}")
    for t in rawdma_l(sK, sTmp, sAlt, fl=opt.nt0): e(t)
    lst(5)
    e(f"s_add_u32 s{sKnext}, s{sKnext}, {2*CH}")
    e(f"s_sub_u32 s{sAlt}, s{sM0R}, s{sAlt}")
    e(f"s_mov_b32 s{sScale}, 1.0")
    if opt.dry:
        c("run the normalisation once on whatever is staged: brings its code into the instruction cache")
        e(f"s_call_b64 s[{sRet}:{sRet+1}], L_prep")
        e(f"v_xor_b32 v{vKw}, 0x8000, v{vKw}")
    if opt.k0prio: e(f"s_setprio {opt.k0prio}")
    e(f"s_waitcnt vmcnt(4)")
    lst(3)
    e(f"s_call_b64 s[{sRet}:{sRet+1}], L_prep")
    e(f"v_xor_b32 v{vKw}, 0xc000, v{vKw}")
    e(f"v_subrev_u32 v{vNat}, s{sAlt}, v{vNat}")
    e(f"v_subrev_u32 v{vTr}, s{sAlt}, v{vTr}")
    tproc(False)
    e("s_waitcnt lgkmcnt(0)")
    lst(4)
    if opt.qfirst < 2:
        e("s_barrier")
        for t in k0 + k1: e(t)
    if opt.xpos == 0: x3()
    e(f"s_setprio {opt.g1prio}")
    e(f"s_waitcnt vmcnt({4 if opt.xpos == 0 else 0})")
    lst(0)
    if opt.xpos == 1: x3()
    if opt.bpos == 1:
        lst(6); e("s_barrier"); lst(2)
    e(f"s_call_b64 s[{sRet}:{sRet+1}], L_prep")
    e(f"v_xor_b32 v{vKw}, 0x4000, v{vKw}")
    e(f"v_add_u32 v{vNat}, s{sAlt}, v{vNat}")
    e(f"v_add_u32 v{vTr}, s{sAlt}, v{vTr}")
    if opt.qfirst == 2:
        e("s_barrier")
        for t in k0 + k1: e(t)
    if opt.xpos == 2: x3()
    if opt.bpos == 0:
        e("s_waitcnt lgkmcnt(0)")
        lst(6); e("s_barrier"); lst(2)
    qreads()
    e(f"ds_write_b32 v{vFw}, v{vCnt}")
    e("s_waitcnt lgkmcnt(1)")
    lab("L_fill")
    e(m1(0)); e(m2(0))
    e("s_nop 1")
    e("s_branch L_st5")
    lab("L_st4")
    c("group 0: V0; Q rows -> fragments for this wave and its partner")
    vtwo(0)
    if opt.v1pos == 0: vtwo(1)
    n1 = 4 if opt.v1pos == 0 else 0
    lst(5)
    e(f"s_add_u32 s{sKnext}, s{sKnext}, {3*CH}")
    e(f"s_waitcnt vmcnt({8 + n1})")
    tproc(True)
    lst(3); lst(4)
    if not opt.qfirst:
        e("s_barrier")
        for t in k0 + k1: e(t)
    e(f"s_setprio {opt.p_start}")
    e(f"s_waitcnt vmcnt({4 + n1})")
    lst(0)
    e(f"s_call_b64 s[{sRet}:{sRet+1}], L_prep")
    if opt.qfirst:
        e("s_barrier")
        for t in k0 + k1: e(t)
    qreads()
    e(f"v_xor_b32 v{vKw}, 0x8000, v{vKw}")
    e(f"s_mov_b32 s{sScale}, 1.0")
    e("s_waitcnt lgkmcnt(2)")
    e(m1(0)); e(m2(0))
    e(f"v_mov_b32 v{vP+14}, 0x3f803f80")
    e(f"v_mov_b32 v{vP+15}, 0x3f803f80")
    if opt.v1pos == 1: vtwo(1)
    e(f"s_waitcnt vmcnt({0 if opt.v1wait else 4}) lgkmcnt(0)")
    lst(6)
    e("s_barrier")
    lst(2)
    lab("L_st5")
    e(f"s_cmp_lg_u32 s{sAbsT}, 0")
    e("s_cbranch_scc1 L_special")
    lst(7)
    for t in v0: e(t)
    e(f"s_setprio {opt.pf0}")
    e(f"s_cmp_eq_u32 s{sG}, 0")
    e("s_cbranch_scc1 L_pf")
    e(f"s_setprio {opt.pf1}")
    lab("L_pf")
    wst(); lst(8)
    c("first tile: also computes the scores of tile 1")
    k2 = kread(2, 0); v2 = vread(2, 2); vd = vdma_l()
    ei = 0; nl = 0
    for ch in opt.pat0:
        if ch == 'e': e(ex(0, ei)); ei += 1
        elif ch == 'E': e(m1(1))
        elif ch == 'G': e(m2(1))
        elif ch == 'B': e(m1(2))
        elif ch == 'C': e(m2(2))
        elif ch == 'D': e(sm(0, 0))
        elif ch == 'a': e(v1.pop(0)); nl += 1
        elif ch == 'k': assert not v1; e(k2.pop(0)); nl += 1
        elif ch == 'v': assert not k2; e(v2.pop(0)); nl += 1
        elif ch == 'w': e(f"s_waitcnt lgkmcnt({nl})")
        elif ch == 'V':
            for t in vd[0:3] + ["s_mov_b64 exec, -1"]: e(t)
        elif ch == 'U':
            for t in [vd[3], vd[1], vd[5], vd[6], vd[4]] + vd[7:]: e(t)
    assert ei == 16 and len(v2) == 2
    e(f"s_cmp_eq_u32 s{sG}, 0")
    e("s_cbranch_scc1 L_B1")
    e("s_branch L_A1")

    lab("L_prep")
    for m in range(7): e(f"ds_read_b64 {vr(vP+2*m,2)}, v{vNat} offset:{8*m}")
    for s in tr_reads: e(s)
    for m in range(7):
        e(f"s_waitcnt lgkmcnt({13 - m})")
        if m > 0: e("s_nop 0")
        e(grams[m])
    e("s_nop 4")
    for t in sels: e(t)
    e(norm[0]); e("s_nop 0"); e(norm[1]); e(norm[2]); e("s_nop 0")
    e(f"v_mul_f32 v{vR}, s{sScale}, v{vR}")
    for s in norm[3:]: e(s)
    e("s_waitcnt lgkmcnt(0)")
    e("s_nop 0")
    for s in smalls: e(s)
    for i in range(14):
        e(cvts[i])
        if i % 4 == 3: e(writes[i // 4])
    e(writes[3])
    e(f"v_xor_b32 v{vKw}, 0x8000, v{vKw}")
    e(f"s_setpc_b64 s[{sRet}:{sRet+1}]")

    nskip = [0]
    fcmp = f"v_cmp_ge_u32 vcc, s{sIter}, v{vFlag}" if opt.dsadd else f"v_cmp_lt_u32 vcc, v{vFlag}, v{vCnt}"
    def build_half(name, pats):
        ops = []
        q = dict(n=list(nat_reads), t=list(tr_reads), g=list(grams), x=list(sels), s=list(norm), m=list(smalls), c=list(cvts), W=list(writes))
        cnt = dict(n=0, t=0, g=0, x=0, s=0, m=0, c=0, W=0, X=0)
        def add(t, lid=None, needs=()): ops.append((t, lid, list(needs)))
        for T in range(8):
            j = T // 2
            if T == 1: add(f"L_{name}1:")
            for t in jit_l(): add(t)
            if opt.ws and T in opt.stampT:
                for s in wst_l(): add(s)
            if T % 2 == 0:
                rd_k = kread((j + 2) % 4, j % 2); rd_v = vread((j + 2) % 4, (j + 2) % 4)
                ki = vi = 0
            ei = 0
            for ch in pats[T]:
                if ch == 'e': add(ex(T, ei)); ei += 1
                elif ch == 'A':
                    add(sm(T - 1, 1), needs=[('v', ((T-1)//2), 2), ('v', ((T-1)//2), 3)])
                elif ch == 'B': add(m1(T + 2), needs=[('k', j + 1, 0)])
                elif ch == 'C': add(m2(T + 2), needs=[('k', j + 1, 1)])
                elif ch == 'D': add(sm(T, 0), needs=[('v', j, 0), ('v', j, 1)])
                elif ch == 'k': add(rd_k[ki], lid=('k', j + 2, ki)); ki += 1
                elif ch == 'v': add(rd_v[vi], lid=('v', j + 2, vi)); vi += 1
                elif ch == 'w': add("WAIT")
                elif ch == 'n': add(q['n'][cnt['n']], lid=('n', 0, cnt['n'])); cnt['n'] += 1
                elif ch == 't': add(q['t'][cnt['t']], lid=('t', 0, cnt['t'])); cnt['t'] += 1
                elif ch in '0123':
                    if opt.prio: add(f"s_setprio {opt.pmap[int(ch)]}")
                elif ch == 'g': add(q['g'][cnt['g']], needs=[('n', 0, cnt['g'] // 2)]); cnt['g'] += 1
                elif ch == 'x': assert cnt['g'] == 7; add(q['x'][cnt['x']]); cnt['x'] += 1
                elif ch == 's': assert cnt['x'] == 3; add(q['s'][cnt['s']]); cnt['s'] += 1
                elif ch == 'm': assert cnt['s'] == 6; add(q['m'][cnt['m']], needs=[('t', 0, cnt['m'])]); cnt['m'] += 1
                elif ch == 'c': assert cnt['m'] > cnt['c'] // 2; add(q['c'][cnt['c']]); cnt['c'] += 1
                elif ch == 'W':
                    assert cnt['c'] >= min(14, 4*cnt['W'] + 4)
                    add(q['W'][cnt['W']], lid=('W', 0, cnt['W'])); cnt['W'] += 1
                    if cnt['W'] == 4: pending_xor = True
                elif ch == 'X':
                    l = rawnext_l()
                    parts = [l[0:3], l[3:4], l[4:5], l[5:]]
                    for t in parts[cnt['X']]: add(t)
                    cnt['X'] += 1
                elif ch == 'Y': add("s_waitcnt vmcnt(2)")
                elif ch == 'z': add(f"s_cmp_ge_u32 s{sIter}, 5")
                elif ch == '[':
                    nskip[0] += 1; add(f"s_cbranch_scc1 L_skip{nskip[0]}")
                elif ch == ']': add(f"L_skip{nskip[0]}:")
                elif ch == 'V':
                    add(f"s_mov_b32 m0, s{sM0V}")
                    add(f"s_mov_b64 exec, s[{sExV}:{sExV+1}]")
                    add(f"buffer_load_dwordx4 v{vVoff}, s[{sV}:{sV+3}], s{sVoffs} offen{opt.ntl} lds")
                    add(f"s_mov_b64 exec, -1")
                elif ch == 'U':
                    add(f"s_add_u32 m0, s{sM0V}, 128")
                    add(f"s_mov_b64 exec, s[{sExV}:{sExV+1}]")
                    add(f"buffer_load_dwordx4 v{vVoff}, s[{sV}:{sV+3}], s{sVoffs} offen offset:896{opt.ntl} lds")
                    add(f"s_mov_b64 exec, -1")
                elif ch == 'p':
                    if opt.v1wait: continue
                    add("s_waitcnt vmcnt(6)")
                    add(f"ds_write_b32 v{vFw}, v{vCnt}", lid=('p', 0, 0))
                elif ch == 'q': add(f"s_cmp_eq_u32 s{sIter}, 7")
                elif ch == 'T': add("s_cbranch_scc1 L_tail")
                elif ch == 'y': add("s_waitcnt vmcnt(0)")
                elif ch == 'f': add(f"ds_read_b32 v{vFlag}, v{vFr}", lid=('f', 0, 0))
                elif ch == 'F':
                    add(fcmp, needs=[('f', 0, 0)])
                    if opt.add64:
                        add(f"v_lshl_add_u64 {vr(vKr,2)}, {vr(vKr,2)}, 0, s[{sD}:{sD+1}]")
                    else:
                        add(f"v_xor_b32 v{vKr}, s{sX}, v{vKr}")
                        add(f"v_xor_b32 v{vVr}, s{sX}, v{vVr}")
                    add(f"s_cbranch_vccnz L_spin{name}")
                    add(f"L_back{name}:")
                    if not opt.dsadd: add(f"v_add_u32 v{vCnt}, 1, v{vCnt}")
                    if not opt.add64: add(f"s_xor_b32 s{sX}, s{sX}, 0x8000")
                elif ch == 'j':
                    if opt.add64:
                        jj = [f"s_cmp_eq_u32 s{sIter}, 3", f"s_cselect_b64 s[{sD}:{sD+1}], s[{sD+2}:{sD+3}], s[{sD+4}:{sD+5}]"]
                        add(jj[cnt.setdefault('j', 0)])
                    cnt['j'] = cnt.get('j', 0) + 1
                elif ch == 'i':
                    it = [f"s_add_u32 s{sIter}, s{sIter}, 1"]
                    add(it[cnt.setdefault('i', 0)]); cnt['i'] += 1
                elif ch == 'a':
                    adv = [f"s_add_u32 s{sM0V}, s{sM0V}, 0x4000", f"s_and_b32 s{sM0V}, s{sM0V}, 0xffff",
                           f"s_add_u32 s{sVoffs}, s{sVoffs}, {CH}"]
                    add(adv[cnt.setdefault('a', 0)]); cnt['a'] += 1
                elif ch == 'P':
                    add(f"ds_add_u32 v{vFw}, v{vCnt}" if opt.dsadd else f"ds_write_b32 v{vFw}, v{vCnt}", lid=('P', 0, 0))
                    if name == 'A':
                        assert cnt['W'] == 4
                        add(f"v_xor_b32 v{vKw}, 0x8000, v{vKw}")
                else: raise ValueError(ch)
            assert ei == 16, (name, T, ei)
            if T % 2 == 1: assert ki == 2 and vi == 4
        if name == 'A':
            assert cnt == dict(n=4, t=7, g=7, x=3, s=6, m=7, c=14, W=4, X=0, a=3, i=1, j=2), cnt
        return ops

    halves = {'A': build_half('A', opt.patA), 'B': build_half('B', opt.patB)}
    def shift(ops):
        out = []
        for t, lid, needs in ops:
            if lid is not None:
                lid = (lid[0], lid[1] - 4, lid[2]) if lid[0] in 'kv' else (lid[0], -1, lid[2])
            out.append((t, lid, []))
        return out
    def resolve(name):
        ops = halves[name]
        res = {}
        for pred in 'AB':
            seq = shift(halves[pred]) + ops
            base = len(seq) - len(ops)
            pos = {lid: i for i, (t, lid, n) in enumerate(seq) if lid is not None}
            waits = [i for i in range(base, len(seq)) if seq[i][0] == "WAIT"]
            covered = -1
            covered = pos[('k', 0, 1)]
            for i in range(base, len(seq)):
                t, lid, needs = seq[i]
                if t == "WAIT":
                    nxt = min([w for w in waits if w > i] + [len(seq)])
                    need = [pos[x] for k in range(i, nxt) for x in seq[k][2] if x in pos]
                    tgt = max(need + [covered])
                    assert tgt < i, ("wait placed before its load", name, seq[tgt][0])
                    n = sum(1 for k in range(tgt + 1, i) if seq[k][1] is not None)
                    res[i - base] = min(res.get(i - base, 15), n)
                    covered = tgt
                for x in needs:
                    if x in pos: assert pos[x] <= covered, ("uncovered", name, t, x)
                    else: assert x[0] == 'v' and x[1] < -2 or x[1] <= -2, x
        out = [(f"s_waitcnt lgkmcnt({res[i]})" if t == "WAIT" else t) for i, (t, lid, n) in enumerate(ops)]
        return [t for t in out if not any(re.search(d, t) for d in opt.drop)]

    L.append(".p2align 3")
    lab("L_A")
    for t in resolve('A'):
        (L.append(t) if t.endswith(":") else e(t))
    lab("L_B")
    for t in resolve('B'):
        (L.append(t) if t.endswith(":") else e(t))
    e(f"s_cmp_lt_u32 s{sIter}, 6")
    e("s_cbranch_scc1 L_A")
    e("s_branch L_B")
    lab("L_tail")
    c("last two tiles; local block 0 goes to the partner wave, local block 1 is finished here")
    e(f"s_lshl_b32 s{sTmp}, s{sWave}, 12")
    e(f"s_add_u32 s{sTmp}, s{sTmp}, {LDS_K}")
    e(f"v_add_u32 v{vT0}, s{sTmp}, v{vL16}")
    e(f"v_xor_b32 v{vT1}, 0x4000, v{vT0}")
    if opt.st_lin:
        e(f"v_add_u32 v{vSS}, s{sM0R}, v{vL16}")
    if opt.otouch:
        c("start the address translation of the output rows; the value is not used")
        e("s_mov_b64 exec, 1")
        e(f"buffer_load_dword v{vFlag}, v{vL16}, s[{sO}:{sO+3}], s{sOoff} offen{' sc1' if opt.otouch == 2 else ''}")
        e("s_mov_b64 exec, -1")
    no = nr = 0
    tv = vread(3, 3)[2:]
    vF = vO + 16
    for T, Tp, Tn, pat in opt.patT:
        jit()
        ei = 0
        for ch in pat:
            if ch == 'e': e(ex(T, ei)); ei += 1
            elif ch == 'A': e(sm(Tp, 1))
            elif ch == 'B': e(m1(Tn))
            elif ch == 'C': e(m2(Tn))
            elif ch == 'D': assert ei >= 10; e(sm(T, 0))
            elif ch == 'w': e("s_waitcnt lgkmcnt(0)")
            elif ch == 'y': e("s_waitcnt vmcnt(0)")
            elif ch == 'n': e("s_nop 0")
            elif ch == 'K': e("s_waitcnt lgkmcnt(2)")
            elif ch == 'v': e(tv.pop(0))
            elif ch == 'b': e("s_barrier")
            elif ch in '0123':
                if opt.prio: e(f"s_setprio {opt.pmap[int(ch)]}")
            elif ch == 'O':
                e(f"ds_write_b128 v{vT0}, {vr(vO+4*no,4)} offset:{1024*no}"); no += 1
            elif ch == 'R':
                e(f"ds_read_b128 {vr(vD+4*nr,4)}, v{vT1} offset:{1024*nr}"); nr += 1
            elif ch == 'a':
                for j in range(0, 16, 2):
                    e(f"v_pk_add_f32 {vr(vF+j,2)}, {vr(vF+j,2)}, {vr(vD+j,2)}")
            else: raise ValueError(ch)
        assert ei == 16
    assert no == 4 and nr == 4
    e("s_nop 1")
    e(sm(7, 1))
    wst()
    e("s_nop 11")
    e(f"v_mov_b32 v{vT0}, v{vF+12}")
    e(f"v_mov_b32 v{vT1}, v{vF+12}")
    e("s_nop 1")
    e(f"v_permlane32_swap_b32 v{vT0}, v{vT1}")
    e(f"v_rcp_f32 v{vB}, v{vT1}")
    e("s_nop 0")
    if True:
        c("rows -> own staging buffer -> whole lines")
        for j in range(4):
            e(f"v_pk_mul_f32 {vr(vF+4*j,2)}, {vr(vF+4*j,2)}, {vr(vB,2)} op_sel_hi:[1,0]")
            e(f"v_pk_mul_f32 {vr(vF+4*j+2,2)}, {vr(vF+4*j+2,2)}, {vr(vB,2)} op_sel_hi:[1,0]")
            e(f"v_cvt_pk_bf16_f32 v{vP+2*j}, v{vF+4*j}, v{vF+4*j+1}")
            e(f"v_cvt_pk_bf16_f32 v{vP+2*j+1}, v{vF+4*j+2}, v{vF+4*j+3}")
            if j == 3: e("s_mov_b32 exec_hi, 0")
            e(f"ds_write_b64 v{vOoff}, {vr(vP+2*j,2)} offset:{8*j}")
        e("s_mov_b32 exec_hi, -1")
        e(f"ds_read_b128 {vr(vD,4)}, v{vSS}")
        e(f"ds_read_b128 {vr(vD+4,4)}, v{vSS} offset:1024")
        e("s_waitcnt lgkmcnt(1)")
        e(f"buffer_store_dwordx4 {vr(vD,4)}, v{vL16}, s[{sO}:{sO+3}], s{sOoff} offen{opt.st_flags}")
        e("s_mov_b32 exec_hi, 0xffff")
        e("s_waitcnt lgkmcnt(0)")
        e(f"buffer_store_dwordx4 {vr(vD+4,4)}, v{vL16}, s[{sO}:{sO+3}], s{sOoff} offen offset:1024{opt.st_flags}")
    if opt.ws:
        e("s_mov_b64 exec, -1")
        if opt.lazy:
            lst(9)
            e("s_waitcnt lgkmcnt(0)")
            for k in range(10):
                e(f"s_sub_u32 s74, s{80+2*k}, s72")
                e(f"v_writelane_b32 v{vSt}, s74, {k}")
            e(f"v_writelane_b32 v{vSt}, s71, 10")
            e("s_mov_b32 s70, 11")
        wst()
        e("s_waitcnt vmcnt(0)")
        wst()
        e("s_memrealtime s[78:79]")
        e("s_load_dwordx2 s[80:81], s[0:1], 48")
        e("s_waitcnt lgkmcnt(0)")
        e("s_mov_b32 s82, 0x1000000"); e("s_mov_b32 s83, 0x00020000")
        e(f"v_writelane_b32 v{vSt}, s70, 31")
        e(f"v_writelane_b32 v{vSt}, s76, 30")
        e(f"v_writelane_b32 v{vSt}, s78, 29")
        e(f"s_lshl_b32 s3, s2, 3"); e(f"s_add_u32 s3, s3, s{sWave}"); e("s_lshl_b32 s3, s3, 7")
        e(f"v_lshlrev_b32 v1, 2, v{vLane}")
        e("s_mov_b32 exec_hi, 0")
        e(f"buffer_store_dword v{vSt}, v1, s[80:83], s3 offen")
    if opt.padto:
        e("s_waitcnt vmcnt(0)")
        lab("L_pspin")
        e("s_memrealtime s[78:79]")
        e("s_waitcnt lgkmcnt(0)")
        e("s_sub_u32 s84, s78, s76")
        e(f"s_cmp_lt_u32 s84, {opt.padto}")
        e("s_cbranch_scc1 L_pspin")
    lab("L_end")
    e("s_endpgm")

    for name in 'AB':
        lab(f"L_spin{name}")
        c("some wave has not yet published the next chunk: wait for it")
        if opt.ws:
            e(f"s_lshl_b32 s{sTmp}, s{sIter}, 2")
            e(f"s_lshl_b32 s{sTmp}, 1, s{sTmp}")
            e(f"s_add_u32 s71, s71, s{sTmp}")
        e(f"s_sleep {opt.sleep}")
        e(f"ds_read_b32 v{vFlag}, v{vFr}")
        e("s_waitcnt lgkmcnt(0)")
        e(fcmp)
        e(f"s_cbranch_vccnz L_spin{name}")
        e(f"s_branch L_back{name}")

    lab("L_special")
    e(f"s_cmp_eq_u32 s{sMode}, 0")
    e("s_cbranch_scc1 L_maxpass")
    c("second pass: put -max into the pad slots of the Q fragments (lanes 32..63)")
    e("s_mov_b32 exec_lo, 0")
    e(f"v_mov_b32 v{vQ+10}, v{vPad}")
    e(f"v_mov_b32 v{vQ+11}, v{vPad+1}")
    e(f"v_mov_b32 v{vQ+14}, v{vPad+2}")
    e(f"v_mov_b32 v{vQ+15}, v{vPad+3}")
    e("s_mov_b32 exec_lo, -1")
    e(f"s_mov_b32 s{sAbsT}, 0")
    e("s_nop 7")
    e("s_branch L_fill")
    lab("L_maxpass")
    mx = [vPad, vPad + 2]
    e(f"v_mov_b32 v{mx[0]}, 0xff800000")
    e(f"v_mov_b32 v{mx[1]}, 0xff800000")
    lab("L_mloop")
    c("chunk sIter is in LDS; group (sIter & 1) normalises chunk sIter + 1 (chunk 1 is done, K2 is staged)")
    e(f"s_add_u32 s{sTmp}, s{sIter}, s{sG}")
    e(f"s_bitcmp1_b32 s{sTmp}, 0")
    e("s_cbranch_scc1 L_mnoprep")
    e(f"s_cmp_eq_u32 s{sIter}, 7")
    e("s_cbranch_scc1 L_mnoprep")
    e(f"s_cmp_eq_u32 s{sIter}, 0")
    e("s_cbranch_scc1 L_mnoprep")
    e(f"s_cmp_eq_u32 s{sIter}, 1")
    e("s_cbranch_scc1 L_mhave")
    for t in rawnext_l(): e(t)
    lab("L_mhave")
    e(f"s_waitcnt vmcnt(0) lgkmcnt(0)")
    e(f"s_call_b64 s[{sRet}:{sRet+1}], L_prep")
    lab("L_mnoprep")
    for j in range(4):
        for s in kread(j, 0): e(s)
        e("s_waitcnt lgkmcnt(0)")
        e(m1(0)); e(m2(0)); e(m1(1)); e(m2(1))
        e("s_nop 15")
        for b in range(2):
            for i in range(0, 16, 2):
                e(f"v_max3_f32 v{mx[b]}, v{vS+16*b+i}, v{vS+16*b+i+1}, v{mx[b]}")
    e("s_barrier")
    e(f"v_xor_b32 v{vKr}, s{sX}, v{vKr}")
    e(f"s_xor_b32 s{sX}, s{sX}, 0x8000")
    e(f"s_add_u32 s{sIter}, s{sIter}, 1")
    e(f"s_cmp_lt_u32 s{sIter}, 8")
    e("s_cbranch_scc1 L_mloop")
    c("combine the two lane halves and the partner wave (whose local blocks are swapped)")
    for b in range(2):
        e(f"v_mov_b32 v{vT0}, v{mx[b]}")
        e("s_nop 1")
        e(f"v_permlane32_swap_b32 v{mx[b]}, v{vT0}")
        e("s_nop 1")
        e(f"v_max_f32 v{mx[b]}, v{mx[b]}, v{vT0}")
    e(f"s_lshl_b32 s{sTmp}, s{sWave}, 12")
    e(f"s_add_u32 s{sTmp}, s{sTmp}, {LDS_K}")
    e(f"v_add_u32 v{vT0}, s{sTmp}, v{vL16}")
    e(f"v_xor_b32 v{vT1}, 0x4000, v{vT0}")
    e("s_waitcnt vmcnt(0) lgkmcnt(0)")
    e(f"ds_write_b32 v{vT0}, v{mx[0]}")
    e(f"ds_write_b32 v{vT0}, v{mx[1]} offset:4")
    e("s_waitcnt lgkmcnt(0)")
    e("s_barrier")
    e(f"ds_read_b64 {vr(vD,2)}, v{vT1}")
    e("s_waitcnt lgkmcnt(0)")
    e("s_barrier")
    e(f"s_mov_b32 s{sTmp}, 0xffff0000")
    for b in range(2):
        m = mx[b]
        e(f"v_max_f32 v{m}, v{m}, v{vD+1-b}")
        c("split -max into three bf16 parts")
        e(f"v_sub_f32 v{m}, 0, v{m}")
        e(f"v_and_b32 v{vT0}, s{sTmp}, v{m}")
        e(f"v_sub_f32 v{m}, v{m}, v{vT0}")
        e(f"v_and_b32 v{vT1}, s{sTmp}, v{m}")
        e(f"v_sub_f32 v{m}, v{m}, v{vT1}")
        e(f"v_lshrrev_b32 v{m+1}, 16, v{m}")
        e(f"v_lshrrev_b32 v{vT0}, 16, v{vT0}")
        e(f"v_or_b32 v{m}, v{vT0}, v{vT1}")
    e(f"s_mov_b32 s{sMode}, 1")
    e("s_branch L_restart")

    txt = HEADER + f"; @launch grid=(256,1,1) block=(512,1,1) lds={LDS_TOTAL}\n"
    txt += DOC
    txt += """.amdgcn_target "amdgcn-amd-amdhsa--gfx950"
.text
.globl standalone__qk_norm__prompt_kernel
.p2align 8
.type standalone__qk_norm__prompt_kernel,@function
standalone__qk_norm__prompt_kernel:
"""
    txt += "\n".join(L) + "\n"
    txt += f""".section .rodata,"a"
.p2align 6
.amdhsa_kernel standalone__qk_norm__prompt_kernel
  .amdhsa_next_free_vgpr {NV}
  .amdhsa_next_free_sgpr {102 if (opt.ws or opt.padto) else 72}
  .amdhsa_accum_offset {(NV+3)//4*4}
  .amdhsa_group_segment_fixed_size 0
  .amdhsa_kernarg_size 56
  .amdhsa_user_sgpr_count 2
  .amdhsa_user_sgpr_kernarg_segment_ptr 1
  .amdhsa_system_sgpr_workgroup_id_x 1
.end_amdhsa_kernel
"""
    return txt

if __name__ == "__main__":
    opt = Opt()
    out = sys.argv[1]
    for a in sys.argv[2:]:
        k, v = a.split("=", 1)
        assert hasattr(opt, k), k
        setattr(opt, k, eval(v))
    open(out, "w").write(gen(opt))
```

```python
import json, sys, gen_final as gm
st = json.load(open(sys.argv[1]))
opt = gm.Opt()
opt.patA = st["A"]; opt.patB = st["B"]; opt.pat0 = st["P0"][0]
opt.patT = [tuple(gm.PAT_T[i][:3]) + (st["T"][i],) for i in range(5)]
for a in sys.argv[3:]:
    k, v = a.split("=", 1); assert hasattr(opt, k); setattr(opt, k, eval(v))
open(sys.argv[2], "w").write(gm.gen(opt))
```

```python
import sys, re

HEADER = """; Kernarg layout for this problem (56 bytes, ptrs only, base s[0:1]):
"""


DOC = """;
;  * P = v_exp_f32(S) stays in f32 registers; v_smfmac_f32_32x32x32_bf16 picks the upper (bf16) halves
"""

PAT_B = [
 "eeA3wkeeeeBkeeeeCvVeeeeDvUee",
 "eeAveeeeBveeeeeCeeeDXXXXee",
 "eeAw2keeeeBkeeeeCveeeeDvee",
 "eeA1veeeeBveeeeC0feeeeDee",
 "eeA3wFkeeeeBkeeeeCveeeeDvee",
 "eeAveeeeBveeeeCeeeeDee",
 "eeA2wkeeeeBakeeeeCaveeeeDaivee",
 "eeA1veeeeBlveeeeC0eeeeDyPee",
]
PAT_A = [
 "eeA3wkeeeeBkeeeeCvVeeeeDvUee",
 "eeAYvneeeeBnveeeCeneeeeDnee",
 "eeA2wtkeeegeBtkeeegeCvteeegeDvtee",
 "geeA1vteeegeBtveeegeC0fteeegeDee",
 "eew3AFkeeexxBexkeseseseCvessseemeDvee",
 "emeAveeecmeBvecceemeCececemeDecec",
 "emeA2wkcecmeeBeakWeecceeCavWecceeceDaivee",
 "eeA1vWeeeeBlvWeeeeC0eeeeDyPee",
]
PAT_C = [
 "eeA3wkeeeeBkeeeeCveeeeDvee",
 "eeAveeeeBveeeeCeeeeDee",
 "eeAw2keeeeBkeeeeCveeeeDvee",
 "eeA1veeeeBveeeeC0feeeeDee",
 "eeA3wFkeeeeBkeeeeCveeeeDvee",
 "eeAveeeeBveeeeCeeeeDee",
 "eeA2wkeeeeBkeeeeCveeeeDvee",
 "eeA1veeeeBveeeeC0eeeeDee",
]
PAT_D = [
 "eeA3wkeeeeBkeeeeCveeeeDvee",
 "eeAveeeeBveeeeCeeeeDee",
 "eeAw2keeeeBkeeeeCveeeeDvee",
]
PAT_T = [
 (3, 2, 6, "eeA1KveeeeBveeeeCDeeee1ee"),
 (4, 3, 5, "eeA3eeeeBeeeeeeCeeeDe"),
 (6, 4, 7, "eeAweeeeBeeeeeCeeeDee"),
 (5, 6, 0, "eeAeeee0eeeeDnnOOOeeOeeee"),
 (7, 5, 0, "eeAwbReeeRRReeeeewaeeDeeee"),
]

class Opt:
    ws = False
    patT = PAT_T
    patC = PAT_C
    patD = PAT_D
    st_flags = ' sc1'
    st_lin = True
    g1prio = 3
    v1pos = 0
    v1wait = 1
    touch = 0
    k1early = 0
    bpos = 0
    lazy = False
    jit = 0
    ap = (0, 0, 0, 0, 0, 0)
    al = 5
    aloff = 0
    otouch = 0
    qfirst = 0
    k0prio = 0
    cpf = 1
    padat = -1
    qdelay = 1
    dry = False
    g1early = 0
    nt0 = ''
    add64 = 0
    dsadd = 1
    ntl = ''
    pf0 = 3
    pf1 = 3
    pat0 = 'eeEaaeeeGaaekeeBVeeekCUeewDvveee'
    v0pos = 1
    xpos = 2
    pmid = 3
    drop = ()
    padto = 0
    force_fallback = False
    patA = PAT_A
    patB = PAT_B
    prio = True
    pmap = '0123'
    p_start = 2
    sleep = 1
    stampT = (4,)

def gen(opt):
    L = []
    def e(s): L.append("    " + s)
    def lab(s): L.append(s + ":")
    def c(s): L.append("    ; " + s)

    HB = 114688
    CH = 14336
    LDS_V = 0
    LDS_K = 65536
    LDS_Q = LDS_K + 3*16384
    LDS_R = 131072
    LDS_F = LDS_R + 8*3584
    LDS_TOTAL = LDS_F + 2048
    vLane, vL16, vVoff, vKw, vKr, vVr, vIdx, vT0 = 0, 1, 2, 3, 4, 5, 6, 7
    vNat, vTr, vMa, vMb, vOoff, vT1, vSS, vR = 8, 9, 10, 11, 12, 13, 14, 15
    vQ = 16
    vO = 32
    vS = 64
    vKf = 128
    vVf = 144
    vP = 176
    vTt = 192
    vB = 206
    vD = 208
    vPad = 236
    vSt, vTv, vNq = 240, 241, 242
    vTq = 247
    vFw, vFr, vFlag, vCnt = 243, 244, 245, 246
    NV = 248
    sK, sV, sO, sR = 20, 24, 28, 48
    sWave, sHead, sQb, sG, sQg = 32, 33, 34, 35, 36
    sIter, sKnext, sVoffs, sM0V, sM0R = 37, 38, 39, 40, 41
    sT, sScale, sEps, sOoff = 42, 43, 44, 45
    sTmp, sTmp2 = 46, 47
    sExV = 52
    sRet = 54
    sMode, sAbsT = 56, 57
    sPre, sX = 58, 59
    sAlt = 60
    sD = 14
    sMk = 64

    def vr(b, n): return f"v[{b}:{b+n-1}]"

    def wst_l():
        if not opt.ws: return []
        return ["s_memtime s[74:75]", "s_waitcnt lgkmcnt(0)", "s_sub_u32 s74, s74, s72", "s_mov_b32 m0, s70", "s_nop 0",
                f"v_writelane_b32 v{vSt}, s74, m0", "s_add_u32 s70, s70, 1"]
    njit = [0]
    def jit_l():
        if not opt.jit: return []
        njit[0] += 1
        return ["s_mul_i32 s63, s63, 0x41c64e6d", "s_add_u32 s63, s63, 12345", "s_bfe_u32 s62, s63, 0x30014", "s_cmp_lg_u32 s62, 0",
                f"s_cbranch_scc1 L_jit{njit[0]}", f"s_sleep {opt.jit}", f"L_jit{njit[0]}:"]
    def jit():
        for t in jit_l(): (L.append(t) if t.endswith(":") else e(t))
    def wst():
        if opt.lazy: return
        for s in wst_l(): e(s)
    def lst(k):
        if k != 1: jit()
        if opt.padto and opt.padat == k: e("s_memrealtime s[76:77]")
        if opt.lazy and (opt.lazy != 2 or k == 9): e(f"s_memtime s[{80+2*k}:{81+2*k}]")

    def rawdma_l(srd, soff, m0=None, fl=None):
        fl = opt.ntl if fl is None else fl
        r = [f"s_mov_b32 m0, s{sM0R if m0 is None else m0}", "s_nop 0"]
        for i in range(3):
            r.append(f"buffer_load_dwordx4 v{vL16}, s[{srd}:{srd+3}], s{soff} offen offset:{1024*i}{fl} lds")
        r.append("s_mov_b32 exec_hi, 0")
        r.append(f"buffer_load_dwordx4 v{vL16}, s[{srd}:{srd+3}], s{soff} offen offset:3072{fl} lds")
        r.append("s_mov_b32 exec_hi, -1")
        return r
    def rawnext_l(fl=None):
        return rawdma_l(sK, sKnext, fl=fl) + [f"s_add_u32 s{sKnext}, s{sKnext}, {2*CH}"]

    def vdma_l(m0=None, off=None, adv=True, fl=None):
        fl = opt.ntl if fl is None else fl
        m0 = sM0V if m0 is None else m0
        off = sVoffs if off is None else off
        r = [f"s_mov_b32 m0, s{m0}",
             f"s_mov_b64 exec, s[{sExV}:{sExV+1}]",
             f"buffer_load_dwordx4 v{vVoff}, s[{sV}:{sV+3}], s{off} offen{fl} lds",
             f"s_add_u32 m0, s{m0}, 128",
             f"s_add_u32 s{sM0V}, s{sM0V}, 0x4000" if adv else "s_nop 0",
             f"buffer_load_dwordx4 v{vVoff}, s[{sV}:{sV+3}], s{off} offen offset:896{fl} lds",
             f"s_mov_b64 exec, -1"]
        if adv:
            r += [f"s_and_b32 s{sM0V}, s{sM0V}, 0xffff", f"s_add_u32 s{sVoffs}, s{sVoffs}, {CH}"]
        return r

    nat_reads = [f"ds_read2_b64 {vr(vP+4*i,4)}, v{vNat} offset0:{2*i} offset1:{2*i+1}" for i in range(3)] + \
                [f"ds_read_b64 {vr(vP+12,2)}, v{vNat} offset:48"]
    tr_reads = [f"ds_read_b64_tr_b16 {vr(vTt+2*m,2)}, v{vTr} offset:{8*m}" for m in range(7)]
    dots = [f"v_dot2_f32_bf16 v{vSS}, v{vP+i}, v{vP+i}, {'0' if i == 0 else 'v%d' % vSS}" for i in range(14)]
    grams = [f"v_mfma_f32_4x4x4_16b_bf16 {vr(vD,4)}, {vr(vP+2*m,2)}, {vr(vP+2*m,2)}, {'0' if m == 0 else vr(vD,4)}" for m in range(7)]
    sels = [f"v_cndmask_b32 v{vSS}, v{vD if i == 0 else vSS}, v{vD+1+i}, s[{sMk+2*i}:{sMk+2*i+1}]" for i in range(3)]
    norm = [f"v_sqrt_f32 v{vSS}, v{vSS}", f"v_add_f32 v{vSS}, s{sEps}, v{vSS}", f"v_rcp_f32 v{vR}, v{vSS}",
            f"v_cvt_pk_bf16_f32 v{vR}, v{vR}, v{vR}", f"v_and_b32 v{vB}, v{vR}, v{vMa}", f"v_and_b32 v{vB+1}, v{vR}, v{vMb}"]
    smalls = [f"v_mfma_f32_4x4x4_16b_bf16 {vr(vD+4*m,4)}, {vr(vTt+2*m,2)}, {vr(vB,2)}, 0" for m in range(7)]
    cvts = [f"v_cvt_pk_bf16_f32 v{vP+i}, v{vD+2*i}, v{vD+2*i+1}" for i in range(14)]
    writes = [f"ds_write_b128 v{vKw}, {vr(vP+4*i,4)} offset:{512*i}" for i in range(4)]

    e("s_load_dwordx4 s[4:7], s[0:1], 0")
    e("s_load_dwordx4 s[8:11], s[0:1], 16")
    e("s_load_dwordx2 s[12:13], s[0:1], 32")
    e("s_cmp_ge_u32 s2, 256")
    e("s_cbranch_scc1 L_end")
    if opt.ws:
        e("s_memtime s[72:73]"); e("s_memrealtime s[76:77]"); e("s_mov_b32 s70, 0"); e("s_mov_b32 s71, 0")
        if opt.lazy == 2: e("s_nop 0"); e("s_nop 0")
    if opt.padto: e("s_memrealtime s[76:77]")
    e(f"v_lshrrev_b32 v{vT0}, 6, v0")
    e(f"v_and_b32 v{vLane}, 63, v0")
    e(f"v_readfirstlane_b32 s{sWave}, v{vT0}")
    if opt.cpf:
        c("pull the kernel's own code into L2 while the first data is on its way: one line per wave")
        e("s_getpc_b64 s[14:15]")
        lab("L_pc")
        e(f"s_and_b32 s3, s2, 120")
        e(f"v_add_u32 v{vT1}, s3, v{vT0}")
        e(f"v_min_u32 v{vT1}, (L_special - L_pc) / 128, v{vT1}")
        e(f"v_lshlrev_b32 v{vT1}, 7, v{vT1}")
        e(f"global_load_dword v{vPad}, v{vT1}, s[14:15]")
    if opt.jit:
        e("s_memtime s[62:63]"); e("s_waitcnt lgkmcnt(0)"); e(f"s_mul_i32 s63, s{sWave}, 977"); e("s_add_u32 s63, s63, s62")
    c("head = (wg&7)*4 + (wg>>6), qblk = (wg>>3)&7")
    e("s_and_b32 s3, s2, 7")
    e(f"s_lshr_b32 s{sHead}, s2, 6")
    e(f"s_lshl2_add_u32 s{sHead}, s3, s{sHead}")
    e(f"s_mov_b32 s{sMode}, 0")
    e(f"v_lshlrev_b32 v{vL16}, 4, v{vLane}")
    lab("L_restart")
    e(f"s_movk_i32 s{sTmp2}, 3584")
    e(f"s_mov_b32 s{sR+2}, {HB}")
    e(f"s_mov_b32 s{sR+3}, 0x00020000")
    e(f"s_mul_i32 s3, s{sHead}, s{sR+2}")
    e(f"s_mul_i32 s{sM0R}, s{sWave}, s{sTmp2}")
    e(f"s_add_u32 s{sM0R}, s{sM0R}, {LDS_R}")
    e(f"s_and_b32 s{sQg}, s{sWave}, 3")
    e(f"s_mul_i32 s{sKnext}, s{sQg}, s{sTmp2}")
    c("waves 0..3 (group 1) start with K0, waves 4..7 (group 0) with the Q rows qblk*256 + qg*64")
    e(f"s_and_b32 s{sTmp}, s2, 56")
    e(f"s_mulk_i32 s{sTmp}, 1792")
    e(f"s_add_u32 s{sOoff}, s{sTmp}, s{sKnext}")
    e(f"s_and_b32 s{sTmp2}, s{sHead}, 15")
    e(f"s_lshl_b32 s{sTmp2}, s{sTmp2}, 1")
    e(f"v_mov_b32 v{vTv}, s{sTmp2}")
    if opt.touch:
        e(f"s_lshr_b32 s{sPre}, s{sTmp}, 3")
        e(f"s_add_u32 s{sPre}, s{sPre}, {CH}")
        e(f"s_lshl_b32 s{sTmp2}, s{sQg}, 2")
        e(f"v_and_or_b32 v{vT0}, v{vLane}, 3, s{sTmp2}")
        e(f"v_min_u32 v{vT0}, 13, v{vT0}")
        e(f"v_lshlrev_b32 v{vT0}, 7, v{vT0}")
    e(f"s_mov_b32 m0, s{sM0R}")
    e(f"s_cmp_lt_u32 s{sWave}, 4")
    e(f"s_cselect_b32 s{sG}, 1, 0")
    e(f"s_cselect_b32 s{sTmp}, s{sKnext}, s{sOoff}")
    e("s_waitcnt lgkmcnt(0)")
    e(f"s_cselect_b32 s{sR}, s6, s4")
    e(f"s_cselect_b32 s{sR+1}, s7, s5")
    e(f"global_load_ushort v{vTv}, v{vTv}, s[10:11]")
    e(f"s_add_u32 s{sR}, s{sR}, s3")
    e(f"s_addc_u32 s{sR+1}, s{sR+1}, 0")
    def touch():
        c("group 1 touches this block's share of K1: an L2 hit for the head's 8 blocks once it is fetched")
        e(f"s_cmp_eq_u32 s{sG}, 0")
        e("s_cbranch_scc1 L_nt")
        e(f"buffer_load_dword v{vFlag}, v{vT0}, s[{sR}:{sR+3}], s{sPre} offen{opt.nt0 if opt.touch & 2 else ''}")
        lab("L_nt")
    if opt.touch: touch()
    for t in rawdma_l(sR, sTmp, fl=opt.nt0)[2:]: e(t)
    lst(1)
    for srd, p in ((sK, 6), (sV, 8), (sO, 12)):
        e(f"s_add_u32 s{srd}, s{p}, s3")
        e(f"s_addc_u32 s{srd+1}, s{p+1}, 0")
        e(f"s_mov_b32 s{srd+2}, s{sR+2}")
        e(f"s_mov_b32 s{srd+3}, 0x00020000")
    c("output rows of this wave: + G*32")
    e(f"s_mul_i32 s{sTmp}, s{sG}, 1792")
    e(f"s_add_u32 s{sOoff}, s{sOoff}, s{sTmp}")
    e(f"s_mov_b32 s{sExV}, 0x7f7f7f7f")
    e(f"s_mov_b32 s{sExV+1}, s{sExV}")
    e(f"s_lshl_b32 s{sM0V}, s{sWave}, 11")
    c("vVoff = (lane>>3)*112 + (lane&7)*16 = lane*16 - (lane>>3)*16")
    e(f"v_lshrrev_b32 v{vT0}, 3, v{vLane}")
    e(f"v_and_b32 v{vT1}, 15, v{vLane}")
    e(f"v_sub_u32 v{vVoff}, v{vLane}, v{vT0}")
    e(f"v_lshrrev_b32 v{vSS}, 4, v{vLane}")
    e(f"v_lshlrev_b32 v{vVoff}, 4, v{vVoff}")
    c("ones pads in the V ring: lane -> slot lane>>4, pair lane&15")
    e(f"v_lshl_add_u32 v{vT1}, v{vSS}, 7, v{vT1}")
    e(f"v_mov_b32 v{vD}, 0x3f80")
    e(f"v_mov_b32 v{vD+1}, 0")
    e(f"v_lshl_add_u32 v{vT1}, v{vT1}, 7, s{sM0V}")
    e(f"ds_write_b64 v{vT1}, {vr(vD,2)} offset:112")
    c("progress flags: one word per wave")
    if opt.dsadd:
        e(f"s_lshl_b32 s{sTmp}, s{sWave}, 8")
        e(f"s_add_u32 s{sTmp}, s{sTmp}, {LDS_F}")
        e(f"v_lshl_add_u32 v{vFw}, v{vLane}, 2, s{sTmp}")
    else:
        e(f"s_lshl_b32 s{sTmp}, s{sWave}, 2")
        e(f"s_add_u32 s{sTmp}, s{sTmp}, {LDS_F}")
        e(f"v_mov_b32 v{vFw}, s{sTmp}")
    e(f"v_mov_b32 v{vCnt}, 0" if not opt.v1wait else f"v_sub_u32 v{vCnt}, 1, s{sG}")
    e(f"v_and_b32 v{vT0}, 3, v{vLane}")
    e(f"v_bfe_u32 v{vSS}, v{vLane}, 2, 2")
    e(f"ds_write_b32 v{vFw}, v{vCnt}")
    c("staging addresses")
    e(f"v_lshl_add_u32 v{vSS}, v{vT0}, 2, v{vSS}")
    e(f"v_mul_u32_u24 v{vNat}, 56, v{vLane}")
    e(f"v_and_or_b32 v{vSS}, v{vLane}, 48, v{vSS}")
    e(f"v_lshlrev_b32 v{vT0}, 4, v{vT0}")
    e(f"v_mul_u32_u24 v{vTr}, 56, v{vSS}")
    e(f"v_mov_b32 v{vMa}, 0xffff")
    e(f"v_mov_b32 v{vMb}, 0")
    e(f"v_add_u32 v{vNat}, s{sM0R}, v{vNat}")
    e(f"v_add_u32 v{vTr}, s{sM0R}, v{vTr}")
    e(f"v_lshlrev_b64 {vr(vMa,2)}, v{vT0}, {vr(vMa,2)}")
    c("frag write address: (lane>>5)*2048 + (lane&31)*16 + qg*4096 + K slot 0 (group 1) / slot 3 (group 0: Q fragments, later K3)")
    e(f"v_lshrrev_b32 v{vR}, 5, v{vLane}")
    e(f"s_lshl_b32 s{sAlt}, s{sQg}, 12")
    e(f"s_cmp_eq_u32 s{sG}, 0")
    e(f"s_cselect_b32 s{sX}, {LDS_Q - LDS_K}, 0")
    e(f"s_add_u32 s{sAlt}, s{sAlt}, {LDS_K}")
    e(f"s_add_u32 s{sX}, s{sX}, s{sAlt}")
    e(f"v_mul_u32_u24 v{vKw}, 1536, v{vR}")
    e(f"v_mov_b32 v{vP+14}, 0x3f803f80")
    e(f"v_add3_u32 v{vKw}, v{vKw}, v{vL16}, s{sX}")
    e(f"v_mov_b32 v{vP+15}, v{vP+14}")
    e(f"s_mov_b32 s{sEps}, 0x358637bd")
    e(f"s_mov_b32 s{sMk}, 0x22222222")
    e(f"s_mov_b32 s{sMk+1}, s{sMk}")
    e(f"s_lshl_b64 s[{sMk+2}:{sMk+3}], s[{sMk}:{sMk+1}], 1")
    e(f"s_lshl_b64 s[{sMk+4}:{sMk+5}], s[{sMk}:{sMk+1}], 2")
    c("output row offset in the staging buffer: (lane&31)*56 + h*32 = lane*56 - h*1760")
    e(f"v_mul_u32_u24 v{vT0}, 1760, v{vR}")
    c("Q fragment addresses: local block 1 is this wave's own block G")
    e(f"s_lshl_b32 s{sTmp}, s{sG}, 11")
    e(f"s_add_u32 s{sTmp}, s{sTmp}, s{sAlt}")
    e(f"s_add_u32 s{sTmp}, s{sTmp}, {LDS_Q - LDS_K}")
    e(f"v_sub_u32 v{vOoff}, v{vNat}, v{vT0}")
    e(f"v_add_u32 v{vTq}, s{sTmp}, v{vL16}")
    e(f"v_mov_b64 {vr(vVf+28,2)}, 0")
    e(f"v_xor_b32 v{vNq}, 0x800, v{vTq}")
    e(f"v_mov_b64 {vr(vVf+30,2)}, 0")
    c("V transpose-read address: 512*b5 + 128*b3 + 8*sel(b4,b2,b1,b0); sel = pi + 7*b2 with pi = 2*b4 + b1 + 4*b0, 14 (the pad) if pi == 7")
    tab = 0
    for idx in range(16):
        b0, b1, b2, b4 = idx & 1, (idx >> 1) & 1, (idx >> 2) & 1, (idx >> 3) & 1
        pi = 2*b4 + b1 + 4*b0
        tab |= (14 if pi == 7 else pi + 7*b2) << (4*idx)
    e(f"s_mov_b32 s{sTmp}, {hex(tab & 0xffffffff)}")
    e(f"s_mov_b32 s{sTmp2}, {hex(tab >> 32)}")
    e(f"v_mfma_i32_32x32x32_i8 {vr(vO,16)}, {vr(vVf+28,4)}, {vr(vVf+28,4)}, 0")
    e(f"v_and_b32 v{vFr}, 7, v{vLane}")
    e(f"v_lshlrev_b32 v{vT0}, 1, v{vLane}")
    e(f"v_lshlrev_b32 v{vFr}, 2, v{vFr}")
    e(f"v_and_b32 v{vVr}, 40, v{vLane}")
    e(f"v_and_or_b32 v{vT0}, v{vT0}, 32, v{vFr}")
    e(f"v_lshlrev_b32 v{vVr}, 4, v{vVr}")
    e(f"v_lshrrev_b64 {vr(vB,2)}, v{vT0}, s[{sTmp}:{sTmp2}]")
    e(f"v_mfma_i32_32x32x32_i8 {vr(vO+16,16)}, {vr(vVf+28,4)}, {vr(vVf+28,4)}, 0")
    e(f"s_lshl_b32 s{sTmp2}, s{sG}, 13")
    e(f"v_and_b32 v{vB}, 15, v{vB}")
    if opt.dsadd: e(f"v_mul_u32_u24 v{vFr}, 65, v{vFr}")
    e(f"v_add_u32 v{vFr}, {LDS_F}, v{vFr}")
    e(f"v_lshl_add_u32 v{vVr}, v{vB}, 3, v{vVr}")
    e(f"v_mov_b32 v{vCnt}, 1")
    e(f"v_add_u32 v{vVr}, s{sTmp2}, v{vVr}")
    e(f"s_add_u32 s{sTmp2}, s{sTmp2}, {LDS_K}")
    e(f"v_mov_b32 v{vIdx}, 0xdddddddd")
    e(f"v_add_u32 v{vKr}, s{sTmp2}, v{vL16}")
    e(f"s_mov_b32 s{sIter}, 0")
    e(f"s_movk_i32 s{sX}, 0x4000")
    if opt.add64:
        e(f"s_mov_b32 s{sD+2}, 0xffff4000")
        e(f"s_mov_b32 s{sD+3}, 0xffff3fff")
        e(f"s_mov_b32 s{sD+4}, s{sX}")
        e(f"s_mov_b32 s{sD+5}, s{sX}")
    def kread(tile, buf):
        o = tile * 2048
        return [f"ds_read_b128 {vr(vKf+8*buf,4)}, v{vKr} offset:{o}",
                f"ds_read_b128 {vr(vKf+8*buf+4,4)}, v{vKr} offset:{o+1024}"]
    def vread(tile, buf):
        o = tile * 2048
        return [f"ds_read_b64_tr_b16 {vr(vVf+8*buf+4*s+2*u,2)}, v{vVr} offset:{o+s*1024+u*256}" for s in range(2) for u in range(2)]
    def m1(T):
        return f"v_mfma_f32_32x32x16_bf16 {vr(vS+16*(T%4),16)}, {vr(vKf+8*((T//2)%2),4)}, {vr(vQ+4*(T%2),4)}, 0"
    def m2(T):
        return f"v_mfma_f32_32x32x16_bf16 {vr(vS+16*(T%4),16)}, {vr(vKf+8*((T//2)%2)+4,4)}, {vr(vQ+8+4*(T%2),4)}, {vr(vS+16*(T%4),16)}"
    def sm(T, s):
        return f"v_smfmac_f32_32x32x32_bf16 {vr(vO+16*(T%2),16)}, {vr(vVf+8*((T//2)%4)+4*s,4)}, {vr(vS+16*(T%4)+8*s,8)}, v{vIdx}"
    def ex(T, j):
        r = vS + 16*(T%4) + j
        return f"v_exp_f32 v{r}, v{r}"

    def vtwo(chunk):
        for half in range(2):
            e(f"s_lshl_b32 s{sTmp}, s{sQg}, 11")
            e(f"s_mul_i32 s{sTmp2}, s{sQg}, 1792")
            if chunk or half:
                e(f"s_add_u32 s{sTmp}, s{sTmp}, {chunk*16384 + half*8192}")
                e(f"s_add_u32 s{sTmp2}, s{sTmp2}, {chunk*CH + half*7168}")
            for t in vdma_l(m0=sTmp, off=sTmp2, adv=False, fl=opt.nt0): e(t)
    def tproc(q):
        e(f"v_lshlrev_b32 v{vTv}, 16, v{vTv}")
        if q:
            c("c = t*log2e")
            e(f"v_mul_f32 v{vT0}, 0x3fb8aa3b, v{vTv}")
        else: e("s_nop 0")
        e(f"v_readfirstlane_b32 s{sAbsT}, v{vTv}")
        if q:
            e(f"v_readfirstlane_b32 s{sScale}, v{vT0}")
            e(f"v_mov_b32 v{vP+15}, 0")
        else: e("s_nop 1")
        c("the shift |t|*log2e bounds every logit; it is used only while it cannot underflow a row (|t| <= 16)")
        e(f"s_and_b32 s{sAbsT}, s{sAbsT}, 0x7fffffff")
        if q:
            e(f"s_or_b32 s{sTmp2}, s{sScale}, 0x80000000")
            e(f"s_lshr_b32 s{sTmp2}, s{sTmp2}, 16")
        e(f"s_cmp_gt_u32 s{sAbsT}, {'0x41800000' if not opt.force_fallback else '0'}")
        if q: e(f"s_cselect_b32 s{sTmp2}, 0, s{sTmp2}")
        e(f"s_cselect_b32 s{sAbsT}, 1, 0")
        if q: e(f"v_mov_b32 v{vP+14}, s{sTmp2}")
    def qreads():
        e(f"ds_read_b128 {vr(vQ,4)}, v{vNq}")
        e(f"ds_read_b128 {vr(vQ+8,4)}, v{vNq} offset:1024")
        e(f"ds_read_b128 {vr(vQ+4,4)}, v{vTq}")
        e(f"ds_read_b128 {vr(vQ+12,4)}, v{vTq} offset:1024")
    def x3():
        for t in rawnext_l(fl=opt.nt0): e(t)
    v0 = vread(0, 0); v1 = vread(1, 1); k0 = kread(0, 0); k1 = kread(1, 1)
    e(f"s_mul_i32 s{sVoffs}, s{sWave}, 1792")
    e(f"s_add_u32 s{sM0V}, s{sM0V}, 0x8000")
    e(f"s_add_u32 s{sVoffs}, s{sVoffs}, {2*CH}")
    e(f"s_cmp_eq_u32 s{sG}, 0")
    e("s_cbranch_scc1 L_st4")
    c("group 1: K1 rows into this wave's part of the still unused K slot 2; K0, K1; V1 and K2 rows")
    e(f"s_add_u32 s{sAlt}, s{sAlt}, 32768")
    e(f"s_add_u32 s{sTmp}, s{sKnext}, {CH}")
    for t in rawdma_l(sK, sTmp, sAlt, fl=opt.nt0): e(t)
    lst(5)
    e(f"s_add_u32 s{sKnext}, s{sKnext}, {2*CH}")
    e(f"s_sub_u32 s{sAlt}, s{sM0R}, s{sAlt}")
    e(f"s_mov_b32 s{sScale}, 1.0")
    if opt.dry:
        c("run the normalisation once on whatever is staged: brings its code into the instruction cache")
        e(f"s_call_b64 s[{sRet}:{sRet+1}], L_prep")
        e(f"v_xor_b32 v{vKw}, 0x8000, v{vKw}")
    for _ in range(opt.ap[2]): e("s_nop 0")
    if opt.k0prio: e(f"s_setprio {opt.k0prio}")
    e(f"s_waitcnt vmcnt(4)")
    lst(3)
    e(f"s_call_b64 s[{sRet}:{sRet+1}], L_prep")
    e(f"v_xor_b32 v{vKw}, 0xc000, v{vKw}")
    e(f"v_subrev_u32 v{vNat}, s{sAlt}, v{vNat}")
    e(f"v_subrev_u32 v{vTr}, s{sAlt}, v{vTr}")
    tproc(False)
    e("s_waitcnt lgkmcnt(0)")
    lst(4)
    if opt.qfirst < 2:
        e("s_barrier")
        for t in k0 + k1: e(t)
    if opt.xpos == 0: x3()
    for _ in range(opt.ap[3]): e("s_nop 0")
    e(f"s_setprio {opt.g1prio}")
    e(f"s_waitcnt vmcnt({4 if opt.xpos == 0 else 0})")
    lst(0)
    if opt.xpos == 1: x3()
    if opt.bpos == 1:
        lst(6); e("s_barrier"); lst(2)
    e(f"s_call_b64 s[{sRet}:{sRet+1}], L_prep")
    e(f"v_xor_b32 v{vKw}, 0x4000, v{vKw}")
    e(f"v_add_u32 v{vNat}, s{sAlt}, v{vNat}")
    e(f"v_add_u32 v{vTr}, s{sAlt}, v{vTr}")
    if opt.qfirst == 2:
        e("s_barrier")
        for t in k0 + k1: e(t)
    if opt.xpos == 2: x3()
    if opt.bpos == 0:
        e("s_waitcnt lgkmcnt(0)")
        lst(6); e("s_barrier"); lst(2)
    qreads()
    e(f"ds_write_b32 v{vFw}, v{vCnt}")
    e("s_waitcnt lgkmcnt(1)")
    lab("L_fill")
    e(m1(0)); e(m2(0))
    e("s_nop 1")
    e("s_branch L_st5")
    if opt.ap[1]:
        L.append(".p2align 5")
        for _ in range(opt.ap[1] - 1): e("s_nop 0")
    lab("L_st4")
    c("group 0: V0; Q rows -> fragments for this wave and its partner")
    vtwo(0)
    if opt.v1pos == 0: vtwo(1)
    n1 = 4 if opt.v1pos == 0 else 0
    lst(5)
    e(f"s_add_u32 s{sKnext}, s{sKnext}, {3*CH}")
    for _ in range(opt.ap[4]): e("s_nop 0")
    e(f"s_waitcnt vmcnt({8 + n1})")
    tproc(True)
    lst(3); lst(4)
    if not opt.qfirst:
        e("s_barrier")
        for t in k0 + k1: e(t)
    e(f"s_setprio {opt.p_start}")
    e(f"s_waitcnt vmcnt({4 + n1})")
    lst(0)
    e(f"s_call_b64 s[{sRet}:{sRet+1}], L_prep")
    if opt.qfirst:
        e("s_barrier")
        for t in k0 + k1: e(t)
    qreads()
    e(f"v_xor_b32 v{vKw}, 0x8000, v{vKw}")
    e(f"s_mov_b32 s{sScale}, 1.0")
    e("s_waitcnt lgkmcnt(2)")
    e(m1(0)); e(m2(0))
    e(f"v_mov_b32 v{vP+14}, 0x3f803f80")
    e(f"v_mov_b32 v{vP+15}, 0x3f803f80")
    for _ in range(opt.ap[5]): e("s_nop 0")
    if opt.v1pos == 1: vtwo(1)
    e(f"s_waitcnt vmcnt({0 if opt.v1wait else 4}) lgkmcnt(0)")
    lst(6)
    e("s_barrier")
    lst(2)
    lab("L_st5")
    e(f"s_cmp_lg_u32 s{sAbsT}, 0")
    e("s_cbranch_scc1 L_special")
    lst(7)
    for t in v0: e(t)
    e(f"s_setprio {opt.pf0}")
    e(f"s_cmp_eq_u32 s{sG}, 0")
    e("s_cbranch_scc1 L_pf")
    e(f"s_setprio {opt.pf1}")
    lab("L_pf")
    wst(); lst(8)
    c("first tile: also computes the scores of tile 1")
    k2 = kread(2, 0); v2 = vread(2, 2); vd = vdma_l()
    ei = 0; nl = 0
    for ch in opt.pat0:
        if ch == 'e': e(ex(0, ei)); ei += 1
        elif ch == 'E': e(m1(1))
        elif ch == 'G': e(m2(1))
        elif ch == 'B': e(m1(2))
        elif ch == 'C': e(m2(2))
        elif ch == 'D': e(sm(0, 0))
        elif ch == 'a': e(v1.pop(0)); nl += 1
        elif ch == 'k': assert not v1; e(k2.pop(0)); nl += 1
        elif ch == 'v': assert not k2; e(v2.pop(0)); nl += 1
        elif ch == 'w': e(f"s_waitcnt lgkmcnt({nl})")
        elif ch == 'V':
            for t in vd[0:3] + ["s_mov_b64 exec, -1"]: e(t)
        elif ch == 'U':
            for t in [vd[3], vd[1], vd[5], vd[6]]: e(t)
    assert ei == 16 and len(v2) == 2
    e(f"s_cmp_eq_u32 s{sG}, 0")
    e("s_cbranch_scc1 L_B1")
    e("s_branch L_A1")

    if opt.ap[0]:
        L.append(".p2align 5")
        for _ in range(opt.ap[0] - 1): e("s_nop 0")
    lab("L_prep")
    for m in range(7): e(f"ds_read_b64 {vr(vP+2*m,2)}, v{vNat} offset:{8*m}")
    for s in tr_reads: e(s)
    for m in range(7):
        e(f"s_waitcnt lgkmcnt({13 - m})")
        if m > 0: e("s_nop 0")
        e(grams[m])
    e("s_nop 4")
    for t in sels: e(t)
    e(norm[0]); e("s_nop 0"); e(norm[1]); e(norm[2]); e("s_nop 0")
    e(f"v_mul_f32 v{vR}, s{sScale}, v{vR}")
    for s in norm[3:]: e(s)
    e("s_waitcnt lgkmcnt(0)")
    e("s_nop 0")
    for s in smalls: e(s)
    for i in range(14):
        e(cvts[i])
        if i % 4 == 3: e(writes[i // 4])
    e(writes[3])
    e(f"v_xor_b32 v{vKw}, 0x8000, v{vKw}")
    e(f"s_setpc_b64 s[{sRet}:{sRet+1}]")

    nskip = [0]
    fcmp = f"v_cmp_ge_u32 vcc, s{sIter}, v{vFlag}" if opt.dsadd else f"v_cmp_lt_u32 vcc, v{vFlag}, v{vCnt}"
    def build_half(name, pats):
        ops = []
        q = dict(n=list(nat_reads), t=list(tr_reads), g=list(grams), x=list(sels), s=list(norm), m=list(smalls), c=list(cvts), W=list(writes))
        cnt = dict(n=0, t=0, g=0, x=0, s=0, m=0, c=0, W=0, X=0)
        def add(t, lid=None, needs=()): ops.append((t, lid, list(needs)))
        for T in range(len(pats)):
            j = T // 2
            if T == 1 and name in 'AB': add(f"L_{name}1:")
            for t in jit_l(): add(t)
            if opt.ws and T in opt.stampT:
                for s in wst_l(): add(s)
            if T % 2 == 0:
                rd_k = kread((j + 2) % 4, j % 2); rd_v = vread((j + 2) % 4, (j + 2) % 4)
                ki = vi = 0
            ei = 0
            for ch in pats[T]:
                if ch == 'e': add(ex(T, ei)); ei += 1
                elif ch == '#': add(ex(T, ei).replace("v_exp_f32", "v_exp_f32_e64")); ei += 1
                elif ch == 'A':
                    add(sm(T - 1, 1), needs=[('v', ((T-1)//2), 2), ('v', ((T-1)//2), 3)])
                elif ch == 'B': add(m1(T + 2), needs=[('k', j + 1, 0)])
                elif ch == 'C': add(m2(T + 2), needs=[('k', j + 1, 1)])
                elif ch == 'D': add(sm(T, 0), needs=[('v', j, 0), ('v', j, 1)])
                elif ch == 'k': add(rd_k[ki], lid=('k', j + 2, ki)); ki += 1
                elif ch == 'v': add(rd_v[vi], lid=('v', j + 2, vi)); vi += 1
                elif ch == 'w': add("WAIT")
                elif ch == 'n': add(q['n'][cnt['n']], lid=('n', 0, cnt['n'])); cnt['n'] += 1
                elif ch == 't': add(q['t'][cnt['t']], lid=('t', 0, cnt['t'])); cnt['t'] += 1
                elif ch in '0123':
                    if opt.prio: add(f"s_setprio {opt.pmap[int(ch)]}")
                elif ch == 'g': add(q['g'][cnt['g']], needs=[('n', 0, cnt['g'] // 2)]); cnt['g'] += 1
                elif ch == 'x': assert cnt['g'] == 7; add(q['x'][cnt['x']]); cnt['x'] += 1
                elif ch == 's': assert cnt['x'] == 3; add(q['s'][cnt['s']]); cnt['s'] += 1
                elif ch == 'm': assert cnt['s'] == 6; add(q['m'][cnt['m']], needs=[('t', 0, cnt['m'])]); cnt['m'] += 1
                elif ch == 'c': assert cnt['m'] > cnt['c'] // 2; add(q['c'][cnt['c']]); cnt['c'] += 1
                elif ch == 'W':
                    assert cnt['c'] >= min(14, 4*cnt['W'] + 4)
                    add(q['W'][cnt['W']], lid=('W', 0, cnt['W'])); cnt['W'] += 1
                    if cnt['W'] == 4: pending_xor = True
                elif ch == 'X':
                    l = rawnext_l() + [f"s_min_u32 s{sKnext}, s{sKnext}, {HB - 3584}"]
                    parts = [l[0:3], l[3:4], l[4:5], l[5:]]
                    for t in parts[cnt['X']]: add(t)
                    cnt['X'] += 1
                elif ch == 'Y': add("s_waitcnt vmcnt(2)")
                elif ch == 'l': add(f"s_cmp_lt_u32 s{sIter}, 6")
                elif ch == 'z': add(f"s_cmp_ge_u32 s{sIter}, 5")
                elif ch == '[':
                    nskip[0] += 1; add(f"s_cbranch_scc1 L_skip{nskip[0]}")
                elif ch == ']': add(f"L_skip{nskip[0]}:")
                elif ch == 'V':
                    add(f"s_mov_b32 m0, s{sM0V}")
                    add(f"s_mov_b64 exec, s[{sExV}:{sExV+1}]")
                    add(f"buffer_load_dwordx4 v{vVoff}, s[{sV}:{sV+3}], s{sVoffs} offen{opt.ntl} lds")
                    add(f"s_mov_b64 exec, -1")
                elif ch == 'U':
                    add(f"s_add_u32 m0, s{sM0V}, 128")
                    add(f"s_mov_b64 exec, s[{sExV}:{sExV+1}]")
                    add(f"buffer_load_dwordx4 v{vVoff}, s[{sV}:{sV+3}], s{sVoffs} offen offset:896{opt.ntl} lds")
                    add(f"s_mov_b64 exec, -1")
                elif ch == 'p':
                    if opt.v1wait: continue
                    add("s_waitcnt vmcnt(6)")
                    add(f"ds_write_b32 v{vFw}, v{vCnt}", lid=('p', 0, 0))
                elif ch == 'q': add(f"s_cmp_eq_u32 s{sIter}, 7")
                elif ch == 'T': add("s_cbranch_scc1 L_tail")
                elif ch == 'y': add("s_waitcnt vmcnt(0)")
                elif ch == 'f': add(f"ds_read_b32 v{vFlag}, v{vFr}", lid=('f', 0, 0))
                elif ch == 'F':
                    add(fcmp, needs=[('f', 0, 0)])
                    if opt.add64:
                        add(f"v_lshl_add_u64 {vr(vKr,2)}, {vr(vKr,2)}, 0, s[{sD}:{sD+1}]")
                    else:
                        add(f"v_xor_b32 v{vKr}, s{sX}, v{vKr}")
                        add(f"v_xor_b32 v{vVr}, s{sX}, v{vVr}")
                    add(f"s_cbranch_vccnz L_spin{name}")
                    add(f"L_back{name}:")
                    if not opt.dsadd: add(f"v_add_u32 v{vCnt}, 1, v{vCnt}")
                    if not opt.add64: add(f"s_xor_b32 s{sX}, s{sX}, 0x8000")
                elif ch == 'j':
                    if opt.add64:
                        jj = [f"s_cmp_eq_u32 s{sIter}, 3", f"s_cselect_b64 s[{sD}:{sD+1}], s[{sD+2}:{sD+3}], s[{sD+4}:{sD+5}]"]
                        add(jj[cnt.setdefault('j', 0)])
                    cnt['j'] = cnt.get('j', 0) + 1
                elif ch == 'i':
                    it = [f"s_add_u32 s{sIter}, s{sIter}, 1"]
                    add(it[cnt.setdefault('i', 0)]); cnt['i'] += 1
                elif ch == 'a':
                    adv = [f"s_add_u32 s{sM0V}, s{sM0V}, 0x4000", f"s_and_b32 s{sM0V}, s{sM0V}, 0xffff",
                           f"s_add_u32 s{sVoffs}, s{sVoffs}, {CH}"]
                    add(adv[cnt.setdefault('a', 0)]); cnt['a'] += 1
                elif ch == 'P':
                    add(f"ds_add_u32 v{vFw}, v{vCnt}" if opt.dsadd else f"ds_write_b32 v{vFw}, v{vCnt}", lid=('P', 0, 0))
                    if name == 'A':
                        assert cnt['W'] == 4
                        add(f"v_xor_b32 v{vKw}, 0x8000, v{vKw}")
                else: raise ValueError(ch)
            assert ei == 16, (name, T, ei)
            if T % 2 == 1: assert ki == 2 and vi == 4
        if name == 'A':
            assert cnt == dict(n=4, t=7, g=7, x=3, s=6, m=7, c=14, W=4, X=0, a=3, i=1), cnt
        return ops

    halves = {'A': build_half('A', opt.patA), 'B': build_half('B', opt.patB), 'C': build_half('C', opt.patC), 'D': build_half('D', opt.patD)}
    def shift(ops):
        out = []
        for t, lid, needs in ops:
            if lid is not None:
                lid = (lid[0], lid[1] - 4, lid[2]) if lid[0] in 'kv' else (lid[0], -1, lid[2])
            out.append((t, lid, []))
        return out
    def resolve(name):
        ops = halves[name]
        res = {}
        for pred in {'A': 'B', 'B': 'A', 'C': 'AB', 'D': 'C'}[name]:
            seq = shift(halves[pred]) + ops
            base = len(seq) - len(ops)
            pos = {lid: i for i, (t, lid, n) in enumerate(seq) if lid is not None}
            waits = [i for i in range(base, len(seq)) if seq[i][0] == "WAIT"]
            covered = -1
            covered = pos[('k', 0, 1)]
            for i in range(base, len(seq)):
                t, lid, needs = seq[i]
                if t == "WAIT":
                    nxt = min([w for w in waits if w > i] + [len(seq)])
                    need = [pos[x] for k in range(i, nxt) for x in seq[k][2] if x in pos]
                    tgt = max(need + [covered])
                    assert tgt < i, ("wait placed before its load", name, seq[tgt][0])
                    n = sum(1 for k in range(tgt + 1, i) if seq[k][1] is not None)
                    res[i - base] = min(res.get(i - base, 15), n)
                    covered = tgt
                for x in needs:
                    if x in pos: assert pos[x] <= covered, ("uncovered", name, t, x)
                    else: assert x[0] == 'v' and x[1] < -2 or x[1] <= -2, x
        out = [(f"s_waitcnt lgkmcnt({res[i]})" if t == "WAIT" else t) for i, (t, lid, n) in enumerate(ops)]
        return [t for t in out if not any(re.search(d, t) for d in opt.drop)]

    L.append(f".p2align {opt.al}")
    for _ in range(opt.aloff): e("s_nop 0")
    lab("L_A")
    for t in resolve('A'):
        (L.append(t) if t.endswith(":") else e(t))
    e("s_cbranch_scc0 L_C")
    lab("L_B")
    for t in resolve('B'):
        (L.append(t) if t.endswith(":") else e(t))
    e("s_cbranch_scc1 L_A")
    lab("L_C")
    for t in resolve('C') + resolve('D'):
        (L.append(t) if t.endswith(":") else e(t))
    c("last five tiles; local block 0 goes to the partner wave, local block 1 is finished here")
    e(f"s_lshl_b32 s{sTmp}, s{sWave}, 12")
    e(f"s_add_u32 s{sTmp}, s{sTmp}, {LDS_K}")
    e(f"v_add_u32 v{vT0}, s{sTmp}, v{vL16}")
    e(f"v_xor_b32 v{vT1}, 0x4000, v{vT0}")
    if opt.st_lin:
        e(f"v_add_u32 v{vSS}, s{sM0R}, v{vL16}")
    if opt.otouch:
        c("start the address translation of the output rows; the value is not used")
        e("s_mov_b64 exec, 1")
        e(f"buffer_load_dword v{vFlag}, v{vL16}, s[{sO}:{sO+3}], s{sOoff} offen{' sc1' if opt.otouch == 2 else ''}")
        e("s_mov_b64 exec, -1")
    no = nr = 0
    tv = vread(3, 3)[2:]
    vF = vO + 16
    for T, Tp, Tn, pat in opt.patT:
        jit()
        ei = 0
        for ch in pat:
            if ch == 'e': e(ex(T, ei)); ei += 1
            elif ch == '#': e(ex(T, ei).replace("v_exp_f32", "v_exp_f32_e64")); ei += 1
            elif ch == 'A': e(sm(Tp, 1))
            elif ch == 'B': e(m1(Tn))
            elif ch == 'C': e(m2(Tn))
            elif ch == 'D': assert ei >= 10; e(sm(T, 0))
            elif ch == 'w': e("s_waitcnt lgkmcnt(0)")
            elif ch == 'y': e("s_waitcnt vmcnt(0)")
            elif ch == 'n': e("s_nop 0")
            elif ch == 'K': e("s_waitcnt lgkmcnt(2)")
            elif ch == 'v': e(tv.pop(0))
            elif ch == 'b': e("s_barrier")
            elif ch in '0123':
                if opt.prio: e(f"s_setprio {opt.pmap[int(ch)]}")
            elif ch == 'O':
                e(f"ds_write_b128 v{vT0}, {vr(vO+4*no,4)} offset:{1024*no}"); no += 1
            elif ch == 'R':
                e(f"ds_read_b128 {vr(vD+4*nr,4)}, v{vT1} offset:{1024*nr}"); nr += 1
            elif ch == 'a':
                for j in range(0, 16, 2):
                    e(f"v_pk_add_f32 {vr(vF+j,2)}, {vr(vF+j,2)}, {vr(vD+j,2)}")
            else: raise ValueError(ch)
        assert ei == 16
    assert no == 4 and nr == 4
    e("s_nop 1")
    e(sm(7, 1))
    wst()
    e("s_nop 11")
    e(f"v_mov_b32 v{vT0}, v{vF+12}")
    e(f"v_mov_b32 v{vT1}, v{vF+12}")
    e("s_nop 1")
    e(f"v_permlane32_swap_b32 v{vT0}, v{vT1}")
    e(f"v_rcp_f32 v{vB}, v{vT1}")
    e("s_nop 0")
    if True:
        c("rows -> own staging buffer -> whole lines")
        for j in range(4):
            e(f"v_pk_mul_f32 {vr(vF+4*j,2)}, {vr(vF+4*j,2)}, {vr(vB,2)} op_sel_hi:[1,0]")
            e(f"v_pk_mul_f32 {vr(vF+4*j+2,2)}, {vr(vF+4*j+2,2)}, {vr(vB,2)} op_sel_hi:[1,0]")
            e(f"v_cvt_pk_bf16_f32 v{vP+2*j}, v{vF+4*j}, v{vF+4*j+1}")
            e(f"v_cvt_pk_bf16_f32 v{vP+2*j+1}, v{vF+4*j+2}, v{vF+4*j+3}")
            if j == 3: e("s_mov_b32 exec_hi, 0")
            e(f"ds_write_b64 v{vOoff}, {vr(vP+2*j,2)} offset:{8*j}")
        e("s_mov_b32 exec_hi, -1")
        e(f"ds_read_b128 {vr(vD,4)}, v{vSS}")
        e(f"ds_read_b128 {vr(vD+4,4)}, v{vSS} offset:1024")
        e("s_waitcnt lgkmcnt(1)")
        e(f"buffer_store_dwordx4 {vr(vD,4)}, v{vL16}, s[{sO}:{sO+3}], s{sOoff} offen{opt.st_flags}")
        e("s_mov_b32 exec_hi, 0xffff")
        e("s_waitcnt lgkmcnt(0)")
        e(f"buffer_store_dwordx4 {vr(vD+4,4)}, v{vL16}, s[{sO}:{sO+3}], s{sOoff} offen offset:1024{opt.st_flags}")
    if opt.ws:
        e("s_mov_b64 exec, -1")
        if opt.lazy:
            lst(9)
            e("s_waitcnt lgkmcnt(0)")
            for k in range(10):
                e(f"s_sub_u32 s74, s{80+2*k}, s72")
                e(f"v_writelane_b32 v{vSt}, s74, {k}")
            e(f"v_writelane_b32 v{vSt}, s71, 10")
            e("s_mov_b32 s70, 11")
        wst()
        e("s_waitcnt vmcnt(0)")
        wst()
        e("s_memrealtime s[78:79]")
        e("s_load_dwordx2 s[80:81], s[0:1], 48")
        e("s_waitcnt lgkmcnt(0)")
        e("s_mov_b32 s82, 0x1000000"); e("s_mov_b32 s83, 0x00020000")
        e(f"v_writelane_b32 v{vSt}, s70, 31")
        e(f"v_writelane_b32 v{vSt}, s76, 30")
        e(f"v_writelane_b32 v{vSt}, s78, 29")
        e(f"s_lshl_b32 s3, s2, 3"); e(f"s_add_u32 s3, s3, s{sWave}"); e("s_lshl_b32 s3, s3, 7")
        e(f"v_lshlrev_b32 v1, 2, v{vLane}")
        e("s_mov_b32 exec_hi, 0")
        e(f"buffer_store_dword v{vSt}, v1, s[80:83], s3 offen")
    if opt.padto:
        e("s_waitcnt vmcnt(0)")
        lab("L_pspin")
        e("s_memrealtime s[78:79]")
        e("s_waitcnt lgkmcnt(0)")
        e("s_sub_u32 s84, s78, s76")
        e(f"s_cmp_lt_u32 s84, {opt.padto}")
        e("s_cbranch_scc1 L_pspin")
    lab("L_end")
    e("s_endpgm")

    for name in 'ABC':
        lab(f"L_spin{name}")
        c("some wave has not yet published the next chunk: wait for it")
        if opt.ws:
            e(f"s_lshl_b32 s{sTmp}, s{sIter}, 2")
            e(f"s_lshl_b32 s{sTmp}, 1, s{sTmp}")
            e(f"s_add_u32 s71, s71, s{sTmp}")
        e(f"s_sleep {opt.sleep}")
        e(f"ds_read_b32 v{vFlag}, v{vFr}")
        e("s_waitcnt lgkmcnt(0)")
        e(fcmp)
        e(f"s_cbranch_vccnz L_spin{name}")
        e(f"s_branch L_back{name}")

    lab("L_special")
    e(f"s_cmp_eq_u32 s{sMode}, 0")
    e("s_cbranch_scc1 L_maxpass")
    c("second pass: put -max into the pad slots of the Q fragments (lanes 32..63)")
    e("s_mov_b32 exec_lo, 0")
    e(f"v_mov_b32 v{vQ+10}, v{vPad}")
    e(f"v_mov_b32 v{vQ+11}, v{vPad+1}")
    e(f"v_mov_b32 v{vQ+14}, v{vPad+2}")
    e(f"v_mov_b32 v{vQ+15}, v{vPad+3}")
    e("s_mov_b32 exec_lo, -1")
    e(f"s_mov_b32 s{sAbsT}, 0")
    e("s_nop 7")
    e("s_branch L_fill")
    lab("L_maxpass")
    mx = [vPad, vPad + 2]
    e(f"v_mov_b32 v{mx[0]}, 0xff800000")
    e(f"v_mov_b32 v{mx[1]}, 0xff800000")
    lab("L_mloop")
    c("chunk sIter is in LDS; group (sIter & 1) normalises chunk sIter + 1 (chunk 1 is done, K2 is staged)")
    e(f"s_add_u32 s{sTmp}, s{sIter}, s{sG}")
    e(f"s_bitcmp1_b32 s{sTmp}, 0")
    e("s_cbranch_scc1 L_mnoprep")
    e(f"s_cmp_eq_u32 s{sIter}, 7")
    e("s_cbranch_scc1 L_mnoprep")
    e(f"s_cmp_eq_u32 s{sIter}, 0")
    e("s_cbranch_scc1 L_mnoprep")
    e(f"s_cmp_eq_u32 s{sIter}, 1")
    e("s_cbranch_scc1 L_mhave")
    for t in rawnext_l(): e(t)
    lab("L_mhave")
    e(f"s_waitcnt vmcnt(0) lgkmcnt(0)")
    e(f"s_call_b64 s[{sRet}:{sRet+1}], L_prep")
    lab("L_mnoprep")
    for j in range(4):
        for s in kread(j, 0): e(s)
        e("s_waitcnt lgkmcnt(0)")
        e(m1(0)); e(m2(0)); e(m1(1)); e(m2(1))
        e("s_nop 15")
        for b in range(2):
            for i in range(0, 16, 2):
                e(f"v_max3_f32 v{mx[b]}, v{vS+16*b+i}, v{vS+16*b+i+1}, v{mx[b]}")
    e("s_barrier")
    e(f"v_xor_b32 v{vKr}, s{sX}, v{vKr}")
    e(f"s_xor_b32 s{sX}, s{sX}, 0x8000")
    e(f"s_add_u32 s{sIter}, s{sIter}, 1")
    e(f"s_cmp_lt_u32 s{sIter}, 8")
    e("s_cbranch_scc1 L_mloop")
    c("combine the two lane halves and the partner wave (whose local blocks are swapped)")
    for b in range(2):
        e(f"v_mov_b32 v{vT0}, v{mx[b]}")
        e("s_nop 1")
        e(f"v_permlane32_swap_b32 v{mx[b]}, v{vT0}")
        e("s_nop 1")
        e(f"v_max_f32 v{mx[b]}, v{mx[b]}, v{vT0}")
    e(f"s_lshl_b32 s{sTmp}, s{sWave}, 12")
    e(f"s_add_u32 s{sTmp}, s{sTmp}, {LDS_K}")
    e(f"v_add_u32 v{vT0}, s{sTmp}, v{vL16}")
    e(f"v_xor_b32 v{vT1}, 0x4000, v{vT0}")
    e("s_waitcnt vmcnt(0) lgkmcnt(0)")
    e(f"ds_write_b32 v{vT0}, v{mx[0]}")
    e(f"ds_write_b32 v{vT0}, v{mx[1]} offset:4")
    e("s_waitcnt lgkmcnt(0)")
    e("s_barrier")
    e(f"ds_read_b64 {vr(vD,2)}, v{vT1}")
    e("s_waitcnt lgkmcnt(0)")
    e("s_barrier")
    e(f"s_mov_b32 s{sTmp}, 0xffff0000")
    for b in range(2):
        m = mx[b]
        e(f"v_max_f32 v{m}, v{m}, v{vD+1-b}")
        c("split -max into three bf16 parts")
        e(f"v_sub_f32 v{m}, 0, v{m}")
        e(f"v_and_b32 v{vT0}, s{sTmp}, v{m}")
        e(f"v_sub_f32 v{m}, v{m}, v{vT0}")
        e(f"v_and_b32 v{vT1}, s{sTmp}, v{m}")
        e(f"v_sub_f32 v{m}, v{m}, v{vT1}")
        e(f"v_lshrrev_b32 v{m+1}, 16, v{m}")
        e(f"v_lshrrev_b32 v{vT0}, 16, v{vT0}")
        e(f"v_or_b32 v{m}, v{vT0}, v{vT1}")
    e(f"s_mov_b32 s{sMode}, 1")
    e("s_branch L_restart")

    txt = HEADER + f"; @launch grid=(256,1,1) block=(512,1,1) lds={LDS_TOTAL}\n"
    txt += DOC
    txt += """.amdgcn_target "amdgcn-amd-amdhsa--gfx950"
.text
.globl standalone__qk_norm__prompt_kernel
.p2align 8
.type standalone__qk_norm__prompt_kernel,@function
standalone__qk_norm__prompt_kernel:
"""
    txt += "\n".join(L) + "\n"
    txt += f""".section .rodata,"a"
.p2align 6
.amdhsa_kernel standalone__qk_norm__prompt_kernel
  .amdhsa_next_free_vgpr {NV}
  .amdhsa_next_free_sgpr {102 if (opt.ws or opt.padto) else 72}
  .amdhsa_accum_offset {(NV+3)//4*4}
  .amdhsa_group_segment_fixed_size 0
  .amdhsa_kernarg_size 56
  .amdhsa_user_sgpr_count 2
  .amdhsa_user_sgpr_kernarg_segment_ptr 1
  .amdhsa_system_sgpr_workgroup_id_x 1
.end_amdhsa_kernel
"""
    return txt

if __name__ == "__main__":
    opt = Opt()
    out = sys.argv[1]
    for a in sys.argv[2:]:
        k, v = a.split("=", 1)
        assert hasattr(opt, k), k
        setattr(opt, k, eval(v))
    open(out, "w").write(gen(opt))
```

```python
import json, sys, gen31 as gm
st = json.load(open(sys.argv[1]))
opt = gm.Opt()
opt.patA = st["A"]; opt.patB = st["B"]; opt.patC = st["C"]; opt.patD = st["D"]; opt.pat0 = st["P0"][0]
opt.patT = [tuple(gm.PAT_T[i][:3]) + (st["T"][i],) for i in range(5)]
for a in sys.argv[3:]:
    k, v = a.split("=", 1); assert hasattr(opt, k); setattr(opt, k, eval(v))
open(sys.argv[2], "w").write(gm.gen(opt))
```
